```python
import torch

def _softmax(x, axis=-1):
    return torch.softmax(x, dim=axis)

def _gelu(x):
    return torch.nn.functional.gelu(x, approximate='tanh')

def _silu(x):
    return torch.nn.functional.silu(x)

def _sigmoid(x):
    return torch.sigmoid(x)

def _layernorm(x, axis=-1, eps=1e-05):
    m = x.mean(dim=axis, keepdim=True)
    v = x.var(dim=axis, keepdim=True, unbiased=False)
    return (x - m) / torch.sqrt(v + eps)

def _scatter_add(tgt, idx, src, axis=0):
    return tgt.clone().index_add_(axis, idx, src)

def _segment_sum(src, seg, n):
    out = torch.zeros((n,) + src.shape[1:], dtype=src.dtype)
    return out.index_add_(0, seg, src)

def _pad(x, pw):
    flat = tuple((v for pair in reversed(pw) for v in pair))
    return torch.nn.functional.pad(x, flat)
kernel_name = 'standalone__conformer_family_e_branchformer__speech'

def setup_inputs():

    _w = lambda a: (lambda t: t.to(torch.bfloat16) if t.is_floating_point() else t)(torch.as_tensor(a))
    B, T, D, K = (2, 1000, 512, 31)
    return {'x': _w((lambda *s: torch.randn(*s, dtype=torch.bfloat16) * 0.05)(B, T, D)), 'w_qkv': _w((lambda *s: torch.randn(*s, dtype=torch.bfloat16) * 0.05)(D, 3 * D)), 'w_att_out': _w((lambda *s: torch.randn(*s, dtype=torch.bfloat16) * 0.05)(D, D)), 'w_mlp_in': _w((lambda *s: torch.randn(*s, dtype=torch.bfloat16) * 0.05)(D, 2 * D)), 'dw_csgu': _w((lambda *s: torch.randn(*s, dtype=torch.bfloat16) * 0.05)(K, D)), 'w_mlp_out': _w((lambda *s: torch.randn(*s, dtype=torch.bfloat16) * 0.05)(D, D)), 'dw_merge': _w((lambda *s: torch.randn(*s, dtype=torch.bfloat16) * 0.05)(K, 2 * D)), 'w_merge': _w((lambda *s: torch.randn(*s, dtype=torch.bfloat16) * 0.05)(2 * D, D))}

def reference(x, w_qkv, w_att_out, w_mlp_in, dw_csgu, w_mlp_out, dw_merge, w_merge):
    B, T, D = x.shape
    K = dw_csgu.shape[0]
    pad = K // 2
    xa = _layernorm(x, axis=-1)
    qkv = torch.einsum('btd,de->bte', xa, w_qkv)
    q, k, v = (qkv[..., :D].clone(), qkv[..., D:2 * D].clone(), qkv[..., 2 * D:].clone())
    scores = torch.einsum('btd,bsd->bts', q, k) * D ** (-0.5)
    p = _softmax(scores, axis=-1)
    attn = torch.einsum('bts,bsd->btd', p, v)
    glob = torch.einsum('btd,de->bte', attn, w_att_out)
    xc = _layernorm(x, axis=-1)
    h = _gelu(torch.einsum('btd,de->bte', xc, w_mlp_in))
    u, g = (h[..., :D].clone(), h[..., D:].clone())
    g = _layernorm(g, axis=-1)
    gp = _pad(g, ((0, 0), (pad, pad), (0, 0)))
    gc = torch.zeros_like(g)
    for i in range(K):
        gc = gc + gp[:, i:i + T, :] * dw_csgu[i][None, None, :]
    loc = torch.einsum('btd,de->bte', u * gc, w_mlp_out)
    m = torch.concatenate([glob, loc], axis=-1)
    mp = _pad(m, ((0, 0), (pad, pad), (0, 0)))
    mc = torch.zeros_like(m)
    for i in range(K):
        mc = mc + mp[:, i:i + T, :] * dw_merge[i][None, None, :]
    m = m + mc
    return x + torch.einsum('btc,cd->btd', m, w_merge)
```

```python
import re

TRANS = ("v_exp_f32", "v_log_f32", "v_rcp_f32", "v_rsq_f32", "v_sqrt_f32", "v_sin_f32", "v_cos_f32")

def vr(b, n=1):
    return f"v{b}" if n == 1 else f"v[{b}:{b+n-1}]"
def sr(b, n=1):
    return f"s{b}" if n == 1 else f"s[{b}:{b+n-1}]"
def ar(b, n=1):
    return f"a{b}" if n == 1 else f"a[{b}:{b+n-1}]"

_reg_re = re.compile(r"^(-|abs\()?\s*([vsa])(?:(\d+)|\[(\d+):(\d+)\])\)?$")

def regs_of(tok):
    tok = tok.strip()
    if tok in ("vcc", "vcc_lo", "vcc_hi"): return {("s", "vcc")}
    if tok in ("exec", "exec_lo", "exec_hi"): return {("s", "exec")}
    if tok == "m0": return {("s", "m0")}
    m = _reg_re.match(tok)
    if not m: return set()
    k = m.group(2)
    if m.group(3) is not None: return {(k, int(m.group(3)))}
    return {(k, i) for i in range(int(m.group(4)), int(m.group(5)) + 1)}

class Ins:
    __slots__ = ("text", "op", "ops", "mods", "cls", "w", "r", "states", "label", "target", "passes", "srcc", "dpp", "storedata")
    def __init__(self, text):
        self.text = text
        self.label = None; self.target = None; self.passes = 0; self.srcc = set(); self.dpp = False
        self.storedata = set()
        t = text.split(";")[0].strip()
        if t.endswith(":"):
            self.label = t[:-1]; self.op = ""; self.cls = "label"; self.w = set(); self.r = set(); self.states = 0; return
        if t.startswith(".") or t == "":
            self.op = ""; self.cls = "dir"; self.w = set(); self.r = set(); self.states = 0; return
        parts = t.split(None, 1)
        self.op = op = parts[0]
        rest = parts[1] if len(parts) > 1 else ""
        ops = []; depth = 0; cur = ""
        for ch in rest:
            if ch == "[": depth += 1
            if ch == "]": depth -= 1
            if ch == "," and depth == 0: ops.append(cur.strip()); cur = ""
            else: cur += ch
        if cur.strip(): ops.append(cur.strip())
        mods = ""
        if ops:
            last = ops[-1].split(None, 1)
            ops[-1] = last[0]
            if len(last) > 1: mods = last[1]
        self.ops = ops; self.mods = mods
        self.states = 1
        R = [regs_of(o) for o in ops]
        w = set(); r = set()
        def allr(idx):
            s = set()
            for i in idx:
                if i < len(R): s |= R[i]
            return s
        n = len(ops)
        if op == "s_nop":
            self.cls = "nop"; self.states = int(ops[0], 0) + 1
        elif op.startswith("v_mfma"):
            self.cls = "mfma"
            w = R[0]; r = allr(range(1, n)); self.srcc = R[3] if n > 3 else set()
            if "32x32x16" in op or "32x32x8" in op: self.passes = 8
            elif "16x16x32" in op or "16x16x16" in op: self.passes = 4
            elif "4x4x4" in op: self.passes = 2
            else: raise ValueError(op)
        elif op.startswith("v_"):
            self.cls = "valu"
            if "row_" in mods or "quad_perm" in mods or op.endswith("_dpp"):
                self.dpp = True
            if op.startswith("v_cmp"):
                w = R[0]; r = allr(range(1, n))
            elif op.startswith("v_readfirstlane") or op.startswith("v_readlane"):
                w = R[0]; r = allr(range(1, n))
            elif op.startswith("v_permlane16_swap") or op.startswith("v_permlane32_swap"):
                w = R[0] | R[1]; r = R[0] | R[1]
            elif op.startswith(("v_add_co_u32", "v_sub_co_u32", "v_addc_co_u32", "v_subb_co_u32")):
                w = R[0] | R[1]; r = allr(range(2, n))
            else:
                w = R[0]; r = allr(range(1, n))
                if op.startswith(("v_fmac", "v_dot2c", "v_mac", "v_writelane", "v_pk_fmac")) or self.dpp:
                    r |= R[0]
                if op.startswith("v_cndmask") and n == 3: r |= {("s", "vcc")}
        elif op.startswith("ds_"):
            self.cls = "ds"
            if op.startswith(("ds_read", "ds_bpermute", "ds_permute", "ds_swizzle")):
                w = R[0]; r = allr(range(1, n))
            else:
                r = allr(range(n))
        elif op.startswith(("buffer_", "global_")):
            self.cls = "vmem"
            lds = " lds" in (" " + mods) or "_lds_" in op
            if op.startswith(("buffer_wbl2", "buffer_inv")):
                pass
            elif "load" in op and not lds:
                w = R[0]; r = allr(range(1, n))
            elif "load" in op and lds:
                r = allr(range(n)) | {("s", "m0")}
                self.cls = "vmem_lds"
            elif "atomic" in op:
                r = allr(range(n))
                if "sc0" in mods: w = R[0]
            else:
                r = allr(range(n))
                if op.startswith("buffer_store"):
                    if op.endswith(("x3", "x4")): self.storedata = R[0]
                else:
                    if op.endswith(("x3", "x4")): self.storedata = R[1]
        elif op.startswith("s_"):
            self.cls = "salu"
            if op.startswith(("s_cbranch", "s_branch")):
                self.target = ops[0]; self.cls = "branch"
                if "vcc" in op: r = {("s", "vcc")}
                if "exec" in op: r = {("s", "exec")}
            elif op.startswith(("s_waitcnt", "s_barrier", "s_endpgm", "s_setprio", "s_sleep", "s_cmp", "s_bitcmp")):
                r = allr(range(n))
            elif op.startswith("s_load") or op.startswith("s_memtime") or op.startswith("s_memrealtime") or op.startswith("s_buffer_load"):
                self.cls = "smem"; w = R[0]; r = allr(range(1, n))
            elif "saveexec" in op:
                w = R[0] | {("s", "exec")}; r = allr(range(1, n)) | {("s", "exec")}
            else:
                w = R[0]; r = allr(range(1, n))
        else:
            raise ValueError("unknown instruction: " + text)
        self.w = w; self.r = r

def isv(x): return x[0] in ("v", "a")

def required(p, c):
    req = 0
    if p.cls == "valu":
        pv = {x for x in p.w if isv(x)}
        ps = {x for x in p.w if x[0] == "s"}
        if c.cls == "mfma" and (pv & c.r): req = max(req, 2)
        if c.cls == "valu":
            if c.dpp and (pv & c.r): req = max(req, 2)
            if c.op.startswith("v_permlane") and (pv & c.r): req = max(req, 2)
            if c.op.startswith(("v_readfirstlane", "v_readlane")) and (pv & c.r): req = max(req, 1)
            if ps & c.r:
                req = max(req, 4 if c.op.startswith(("v_readlane", "v_writelane")) else 2)
            if p.op.startswith(TRANS) and (pv & c.r) and not c.op.startswith(TRANS): req = max(req, 1)
            if p.op.startswith(TRANS) and (pv & c.r): req = max(req, 1)
            if ("op_sel" in p.mods and not p.op.startswith("v_pk")) or "sdwa" in p.op or "dst_sel" in p.mods:
                if pv & (c.r | c.w): req = max(req, 1)
            if p.op.startswith("v_dot2") and (pv & (c.r | c.w)):
                same = (c.op == p.op)
                if same:
                    ab = set()
                    if c.op.startswith("v_dot2c"):
                        for o in c.ops[1:3]: ab |= regs_of(o)
                    else:
                        for o in c.ops[1:3]: ab |= regs_of(o)
                    if pv & ab: req = max(req, 3)
                else:
                    req = max(req, 3)
            if ("s", "exec") in p.w:
                req = max(req, 5 if c.dpp else 0)
        if p.op.startswith("v_dot2") and c.cls in ("mfma", "ds", "vmem", "vmem_lds") and (pv & c.r): req = max(req, 3)
        if c.cls in ("vmem", "vmem_lds") and (ps & c.r): req = max(req, 5)
        if c.cls in ("salu", "branch", "smem") and (ps & c.r): req = max(req, 1 if c.cls != "branch" else 5)
        if c.cls == "mfma" and ("s", "exec") in p.w: req = max(req, 4)
    if p.cls == "mfma":
        tbl_ab = {2: 5, 4: 8, 8: 12, 16: 20}[p.passes]
        tbl_c = {2: 4, 4: 6, 8: 10, 16: 18}[p.passes]
        war = {2: 1, 4: 3, 8: 7, 16: 15}[p.passes]
        if c.cls == "mfma":
            ab = set()
            for o in c.ops[1:3]: ab |= regs_of(o)
            if p.w & ab: req = max(req, tbl_ab)
            if p.w & c.srcc:
                if not (p.w == c.srcc and p.passes == c.passes and p.op == c.op): req = max(req, tbl_c)
                elif p.passes == 2: req = max(req, 2)
            if (p.w & c.w) and not (p.w & c.srcc): req = max(req, tbl_c)
        elif c.cls in ("valu", "ds", "vmem", "vmem_lds"):
            if p.w & (c.r | c.w): req = max(req, tbl_ab)
        if c.cls == "valu" and (p.srcc & c.w): req = max(req, war)
    if p.cls == "salu" and ("s", "m0") in p.w and c.cls == "vmem_lds": req = max(req, 1)
    if p.storedata:
        if c.cls == "valu" and (p.storedata & c.w): req = max(req, 2)
        elif (p.storedata & c.w): req = max(req, 1)
    return req

WINDOW = 24

def need_nops(hist, c):
    d = 0; need = 0
    for p in reversed(hist):
        if p.cls in ("label", "dir"): continue
        rq = required(p, c)
        if rq > d: need = max(need, rq - d)
        d += p.states
        if d >= WINDOW: break
    return need

def mk_nops(n):
    out = []
    while n > 0:
        k = min(n, 16); out.append(Ins(f"  s_nop {k-1}")); n -= k
    return out

def pad_hazards(lines):
    ins = [Ins(l) for l in lines]
    out = []
    for c in ins:
        if c.cls not in ("label", "dir"):
            n = need_nops(out[-WINDOW*2:], c)
            if n: out.extend(mk_nops(n))
        out.append(c)
    changed = True
    while changed:
        changed = False
        labels = {c.label: i for i, c in enumerate(out) if c.cls == "label"}
        for i, c in enumerate(out):
            if c.cls == "branch" and c.target in labels:
                hist = out[max(0, i - WINDOW*2):i + 1]
                j = labels[c.target] + 1
                sim = list(hist); d = 0; worst = 0
                while j < len(out) and d < WINDOW:
                    x = out[j]
                    if x.cls not in ("label", "dir"):
                        dd = 0
                        for p in reversed(sim):
                            if p.cls in ("label", "dir"): continue
                            rq = required(p, x)
                            if rq > dd and p in hist: worst = max(worst, rq - dd)
                            dd += p.states
                            if dd >= WINDOW: break
                        sim.append(x); d += x.states
                        if x.cls == "branch" and x.op == "s_branch": break
                        if x.op == "s_endpgm": break
                    j += 1
                if worst:
                    out[i:i] = mk_nops(worst)
                    changed = True
                    break
    return [c.text for c in out]

class Asm:
    def __init__(self, prefix=""):
        self.lines = []
        self.uid = 0
        self.prefix = prefix
    def __call__(self, s):
        for l in s.split("\n"):
            l = l.strip()
            if l and not l.startswith(";"): self.lines.append("  " + l if not l.endswith(":") else l)
    def label(self, name): self.lines.append(name + ":")
    def newlabel(self, base="L"):
        self.uid += 1
        return f"{self.prefix}{base}_{self.uid}"
    def text(self):
        return "\n".join(pad_hazards(self.lines)) + "\n"

class Alloc:
    def __init__(self, start, limit):
        self.n = start; self.limit = limit; self.hi = start
    def __call__(self, cnt=1, align=1):
        b = (self.n + align - 1) // align * align
        self.n = b + cnt
        assert self.n <= self.limit, f"register overflow {self.n} > {self.limit}"
        self.hi = max(self.hi, self.n)
        return b
    def mark(self): return self.n
    def reset(self, m): self.n = m
```

```python
from asm import *

KA = dict(x=0, w_qkv=8, w_att_out=16, w_mlp_in=24, dw_csgu=32, w_mlp_out=40, dw_merge=48, w_merge=56, out=64, dbg=72, ws=80)

MB = 1 << 20
WS_QKV = 0
WS_UG  = 6 * MB
WS_GST = 10 * MB
WS_SST = 10 * MB + 256 * 1024
WS_PT  = 11 * MB
WS_VP  = 15 * MB
WS_ZT  = 17 * MB
WS_MT  = 19 * MB
WS_MPT = 23 * MB
WS_END = 27 * MB

def srd(a, d, base_lo, base_hi, size, off=0):
    if off:
        a(f"s_add_u32 s{d}, s{base_lo}, {off}")
        a(f"s_addc_u32 s{d+1}, s{base_hi}, 0")
    else:
        a(f"s_mov_b32 s{d}, s{base_lo}")
        a(f"s_mov_b32 s{d+1}, s{base_hi}")
    a(f"s_mov_b32 s{d+2}, {size}")
    a(f"s_mov_b32 s{d+3}, 0x20000")

def interleave(a, mfmas, fillers, lead=0):
    f = list(fillers)
    for x in f[:lead]: a(x)
    f = f[lead:]
    n = len(mfmas)
    per = [len(f) // n + (1 if i < len(f) % n else 0) for i in range(n)]
    k = 0
    for i, m in enumerate(mfmas):
        a(m)
        for x in f[k:k + per[i]]: a(x)
        k += per[i]

KD = """.amdhsa_kernel {name}
  .amdhsa_next_free_vgpr {vgpr}
  .amdhsa_next_free_sgpr {sgpr}
  .amdhsa_accum_offset {acc}
  .amdhsa_group_segment_fixed_size 0
  .amdhsa_kernarg_size 88
  .amdhsa_user_sgpr_count 2
  .amdhsa_user_sgpr_kernarg_segment_ptr 1
  .amdhsa_system_sgpr_workgroup_id_x 1
.end_amdhsa_kernel
"""

class Stream:
    def __init__(self, srd, voffs, soff_imm, lds_imm, s_base, inc, s_lds):
        self.srd = srd; self.voffs = voffs; self.soff_imm = soff_imm; self.lds_imm = lds_imm
        self.s_base = s_base; self.inc = inc; self.s_lds = s_lds
    @property
    def n(self): return len(self.voffs)

def issue_chunk(a, streams, s_kc, s_slot, s_t0, s_t1, s_t2, flags=""):
    for st in streams:
        a(f"s_mul_i32 s{s_t0}, s{s_kc}, {st.inc}")
        a(f"s_add_u32 s{s_t0}, s{s_t0}, s{st.s_base}")
        a(f"s_add_u32 s{s_t1}, s{s_slot}, s{st.s_lds}")
        for v, so, lo in zip(st.voffs, st.soff_imm, st.lds_imm):
            if lo: a(f"s_add_u32 m0, s{s_t1}, {lo}")
            else:  a(f"s_mov_b32 m0, s{s_t1}")
            if so:
                a(f"s_add_u32 s{s_t2}, s{s_t0}, {so}")
                a(f"buffer_load_dwordx4 v{v}, s[{st.srd}:{st.srd+3}], s{s_t2} offen lds {flags}".rstrip())
            else:
                a(f"buffer_load_dwordx4 v{v}, s[{st.srd}:{st.srd+3}], s{s_t0} offen lds {flags}".rstrip())

def dma_list(streams, s_kc, s_slot, s_t0, s_t1, s_t2, flags=""):
    groups = []
    for st in streams:
        pre = [f"s_mul_i32 s{s_t0}, s{s_kc}, {st.inc}",
               f"s_add_u32 s{s_t0}, s{s_t0}, s{st.s_base}",
               f"s_add_u32 s{s_t1}, s{s_slot}, s{st.s_lds}"]
        for v, so, lo in zip(st.voffs, st.soff_imm, st.lds_imm):
            g = pre; pre = []
            g.append(f"s_add_u32 m0, s{s_t1}, {lo}" if lo else f"s_mov_b32 m0, s{s_t1}")
            if so:
                g.append(f"s_add_u32 s{s_t2}, s{s_t0}, {so}")
                g.append(f"buffer_load_dwordx4 v{v}, s[{st.srd}:{st.srd+3}], s{s_t2} offen lds {flags}".rstrip())
            else:
                g.append(f"buffer_load_dwordx4 v{v}, s[{st.srd}:{st.srd+3}], s{s_t0} offen lds {flags}".rstrip())
            groups.append(g)
    return groups

def loader_loop(a, streams, NC, S, stage_bytes, s_kc, s_slot, s_cnt, s_t0, s_t1, s_t2, lds_base=0,
                work=None, work_pre=None, work_post=None, ahead=2, hook=None):
    n = sum(st.n for st in streams)
    assert S >= ahead + 1 and n * ahead <= 63
    def adv():
        a(f"s_add_u32 s{s_kc}, s{s_kc}, 1")
        a(f"s_and_b32 s{s_kc}, s{s_kc}, {NC-1}")
        a(f"s_add_u32 s{s_slot}, s{s_slot}, {stage_bytes}")
        a(f"s_cmp_eq_u32 s{s_slot}, {lds_base + S*stage_bytes}")
        a(f"s_cselect_b32 s{s_slot}, {lds_base}, s{s_slot}")
    def issue(fill):
        gs = dma_list(streams, s_kc, s_slot, s_t0, s_t1, s_t2)
        per = [len(fill) // len(gs) + (1 if i < len(fill) % len(gs) else 0) for i in range(len(gs))]
        k = 0
        for g, p in zip(gs, per):
            for x in g: a(x)
            for x in fill[k:k+p]: a(x)
            k += p
        adv()
    a(f"s_mov_b32 s{s_slot}, {lds_base}")
    for i in range(ahead): issue([])
    if hook: hook()
    a(f"s_waitcnt vmcnt({n*(ahead-1)})")
    a("s_barrier")
    nst = NC - ahead
    L = a.newlabel("LD_st")
    a(f"s_mov_b32 s{s_cnt}, {nst}")
    a.label(L)
    if work_pre: work_pre()
    issue(work() if work else [])
    if work_post: work_post()
    a(f"s_waitcnt vmcnt({n*(ahead-1)})")
    a("s_barrier")
    a(f"s_sub_u32 s{s_cnt}, s{s_cnt}, 1")
    a(f"s_cmp_lg_u32 s{s_cnt}, 0")
    a(f"s_cbranch_scc1 {L}")
    for c_ in range(nst, NC):
        if work_pre: work_pre()
        if work:
            for x in work(): a(x)
        if work_post: work_post()
        if c_ < NC - 1:
            a(f"s_waitcnt vmcnt({n*(NC-2-c_)})")
            a("s_barrier")

STAMPS = False
CYC = False
ST_BASE = 64
def stamp(a, idx, s_wave=None, sD=60):
    if not STAMPS: return
    b = ST_BASE + 4 * idx
    a(f"s_memrealtime s[{b}:{b+1}]")
    a(f"s_memtime s[{b+2}:{b+3}]")
    a("s_waitcnt lgkmcnt(0)")
def stamp_flush(a, s_wave, n=8, sD=60):
    if not STAMPS: return
    L = a.newlabel("ST")
    a(f"s_and_b32 s{sD-1}, s{s_wave}, 3")
    a(f"s_cmp_lg_u32 s{sD-1}, 0")
    a(f"s_cbranch_scc1 {L}")
    a(f"s_lshr_b32 s{sD-1}, s{s_wave}, 2")
    a(f"s_lshl_b32 s{sD-1}, s{sD-1}, 6")
    a(f"s_lshl_b32 s{sD-2}, s2, 7")
    a(f"s_add_u32 s{sD-1}, s{sD-1}, s{sD-2}")
    a("s_mov_b64 exec, 1")
    for i in range(n):
        b = ST_BASE + 4 * i
        a(f"v_mov_b32 v0, s{b}")
        a(f"v_mov_b32 v1, s{b+2}")
        a(f"v_mov_b32 v2, s{sD-1}")
        a(f"buffer_store_dwordx2 v[0:1], v2, s[{sD}:{sD+3}], 0 offen offset:{i*8}")
        a("s_waitcnt vmcnt(0)")
    a.label(L)
def stamp_zero(a, n=8):
    if not STAMPS: return
    for i in range(n):
        a(f"s_mov_b32 s{ST_BASE+4*i}, 0")
        a(f"s_mov_b32 s{ST_BASE+4*i+2}, 0")
def stamp_init(a, ws_lo, ws_hi, phase, sD=60):
    if not STAMPS: return
    srd(a, sD, ws_lo, ws_hi, 256*128, WS_STAMP + phase * 32768)
WS_STAMP = 32 * MB

def r_loader_voff(a, vd, vt, v_lane, s_w, s_t, pitch):
    a(f"""
    v_lshrrev_b32 v{vt}, 3, v{v_lane}
    v_lshrrev_b32 v{vt+1}, 4, v{v_lane}
    s_and_b32 s{s_t}, s{s_w}, 1
    s_lshl_b32 s{s_t}, s{s_t}, 2
    v_add_u32 v{vt+1}, s{s_t}, v{vt+1}
    v_and_b32 v{vt+2}, 7, v{v_lane}
    v_xor_b32 v{vt+2}, v{vt+2}, v{vt+1}
    v_lshlrev_b32 v{vt+2}, 4, v{vt+2}
    v_mul_u32_u24 v{vt}, {pitch}, v{vt}
    v_add_u32 v{vd}, v{vt}, v{vt+2}
    """)
def t64_loader_voff(a, vd, vt, v_lane, pitch):
    a(f"""
    v_lshrrev_b32 v{vt}, 3, v{v_lane}
    v_bfe_u32 v{vt+1}, v{v_lane}, 4, 1
    v_lshlrev_b32 v{vt+1}, 2, v{vt+1}
    v_and_b32 v{vt+2}, 7, v{v_lane}
    v_xor_b32 v{vt+2}, v{vt+2}, v{vt+1}
    v_lshlrev_b32 v{vt+2}, 4, v{vt+2}
    v_mul_u32_u24 v{vt}, {pitch}, v{vt}
    v_add_u32 v{vd}, v{vt}, v{vt+2}
    """)
def t128_loader_voff(a, vd, vt, v_lane, pitch):
    a(f"""
    v_lshrrev_b32 v{vt}, 4, v{v_lane}
    v_lshlrev_b32 v{vt+1}, 2, v{vt}
    v_and_b32 v{vt+2}, 15, v{v_lane}
    v_xor_b32 v{vt+2}, v{vt+2}, v{vt+1}
    v_lshlrev_b32 v{vt+2}, 4, v{vt+2}
    v_mul_u32_u24 v{vt}, {pitch}, v{vt}
    v_add_u32 v{vd}, v{vt}, v{vt+2}
    """)
def r_frag_addrs(a, vd, vt, v_lane, s_rowblk, s_t, base):
    a(f"""
    v_and_b32 v{vt}, 31, v{v_lane}
    v_lshrrev_b32 v{vt+1}, 5, v{v_lane}
    v_lshrrev_b32 v{vt+2}, 1, v{vt}
    v_and_b32 v{vt+2}, 7, v{vt+2}
    v_lshlrev_b32 v{vt+3}, 7, v{vt}
    """)
    if s_rowblk is not None:
        a(f"s_lshl_b32 s{s_t}, s{s_rowblk}, 12")
        a(f"v_add_u32 v{vt+3}, s{s_t}, v{vt+3}")
    if base: a(f"v_add_u32 v{vt+3}, {base}, v{vt+3}")
    for s in range(4):
        a(f"""
        v_add_u32 v{vt+4}, {2*s}, v{vt+1}
        v_xor_b32 v{vt+4}, v{vt+4}, v{vt+2}
        v_lshl_add_u32 v{vd+s}, v{vt+4}, 4, v{vt+3}
        """)
def t_frag_common(a, vt, v_lane):
    a(f"""
    v_lshrrev_b32 v{vt}, 5, v{v_lane}
    v_lshlrev_b32 v{vt}, 3, v{vt}
    v_bfe_u32 v{vt+1}, v{v_lane}, 2, 2
    v_add_u32 v{vt}, v{vt}, v{vt+1}
    v_bfe_u32 v{vt+2}, v{v_lane}, 4, 1
    v_lshlrev_b32 v{vt+2}, 5, v{vt+2}
    v_and_b32 v{vt+3}, 3, v{v_lane}
    v_lshl_add_u32 v{vt+2}, v{vt+3}, 3, v{vt+2}
    """)
def t64_frag_addrs(a, vd, vt, v_lane, base):
    t_frag_common(a, vt, v_lane)
    a(f"""
    v_lshlrev_b32 v{vt+3}, 7, v{vt}
    v_add_u32 v{vt+3}, v{vt+3}, v{vt+2}
    v_add_u32 v{vt+3}, {base}, v{vt+3}
    v_bfe_u32 v{vt+4}, v{v_lane}, 3, 1
    v_lshlrev_b32 v{vt+4}, 6, v{vt+4}
    v_add_u32 v{vd}, v{vt+3}, v{vt+4}
    v_xor_b32 v{vt+4}, 64, v{vt+4}
    v_add_u32 v{vd+1}, v{vt+3}, v{vt+4}
    """)
def t64_frag_addr_blk(a, vd, vt, v_lane, base, s_blk, s_t):
    t_frag_common(a, vt, v_lane)
    a(f"""
    v_lshlrev_b32 v{vt+3}, 7, v{vt}
    v_add_u32 v{vt+3}, v{vt+3}, v{vt+2}
    v_add_u32 v{vt+3}, {base}, v{vt+3}
    v_bfe_u32 v{vt+4}, v{v_lane}, 3, 1
    v_xor_b32 v{vt+4}, s{s_blk}, v{vt+4}
    v_lshlrev_b32 v{vt+4}, 6, v{vt+4}
    v_add_u32 v{vd}, v{vt+3}, v{vt+4}
    """)
def t128_frag_addr_blk(a, vd, vt, v_lane, base, s_blk):
    t_frag_common(a, vt, v_lane)
    a(f"""
    v_lshlrev_b32 v{vt+3}, 8, v{vt}
    v_add_u32 v{vt+3}, v{vt+3}, v{vt+2}
    v_add_u32 v{vt+3}, {base}, v{vt+3}
    v_bfe_u32 v{vt+4}, v{v_lane}, 2, 2
    v_xor_b32 v{vt+4}, s{s_blk}, v{vt+4}
    v_lshlrev_b32 v{vt+4}, 6, v{vt+4}
    v_add_u32 v{vd}, v{vt+3}, v{vt+4}
    """)
def tr2(dst, vaddr, off, pitch):
    return [f"ds_read_b64_tr_b16 v[{dst}:{dst+1}], v{vaddr} offset:{off}",
            f"ds_read_b64_tr_b16 v[{dst+2}:{dst+3}], v{vaddr} offset:{off + 4*pitch}"]

def counted_step(a, mf, need, nxt, prev_n, per=4, extra=None):
    n = len(mf)
    k = 0; issued = 0
    for i in range(n):
        cnt = (prev_n - need[i]) + issued
        a(f"s_waitcnt lgkmcnt({min(cnt, 15)})")
        a(mf[i])
        g = nxt[k:k+per] if i < n - 1 else nxt[k:]
        for x in g: a(x); issued += 1
        k += per
        if extra and i in extra:
            for x in extra[i]: a(x)

class Ring:
    def __init__(self, a, S, stage, s_rs, s_delta, s_neg, s_pos):
        self.a, self.S, self.stage = a, S, stage
        self.s_rs, self.s_delta, self.s_neg, self.s_pos = s_rs, s_delta, s_neg, s_pos
    def init(self):
        a = self.a
        a(f"s_mov_b32 s{self.s_rs}, 0")
        a(f"s_mov_b32 s{self.s_neg}, {(-(self.S-1)*self.stage) & 0xffffffff}")
        a(f"s_mov_b32 s{self.s_pos}, {self.stage}")
    def bump(self, regs):
        a = self.a
        a(f"s_add_u32 s{self.s_rs}, s{self.s_rs}, {self.stage}")
        a(f"s_cmp_eq_u32 s{self.s_rs}, {self.S*self.stage}")
        a(f"s_cselect_b32 s{self.s_delta}, s{self.s_neg}, s{self.s_pos}")
        a(f"s_cselect_b32 s{self.s_rs}, 0, s{self.s_rs}")
        for r in regs: a(f"v_add_u32 v{r}, s{self.s_delta}, v{r}")

def gemm_mainloop(a, NC, ring, addr_regs, reads, mfmas, need, s_cnt, tag, per=4, chunk_hook=None, first_hook=None):
    nr = len(reads(0, 0))
    def chunk(last, par):
        for s in range(4):
            st = s & 1
            if s == 3 and not last:
                a("s_waitcnt lgkmcnt(0)")
                a("s_barrier")
                ring.bump(addr_regs)
            nxt = [] if (s == 3 and last) else reads((s + 1) & 3, st ^ 1)
            ex = chunk_hook(s, last, par) if chunk_hook else None
            counted_step(a, mfmas(st, s, par), need, nxt, nr, per=per, extra=ex)
    a("s_barrier")
    if first_hook: first_hook()
    for x in reads(0, 0): a(x)
    return chunk
```

```python
from common import *
import common, struct
def STAMPS_ON(): return common.STAMPS
def f2u(x): return struct.unpack("<I", struct.pack("<f", x))[0]

X_OFF, WQ_OFF, WM_OFF, STAGE = 0, 16384, 16384 + 12288, 36864
S1, NC1 = 4, 8
T_RSTD, T_NMR, T_CS = 0, 512, 1024
RING = 2048
LDS1 = RING + S1 * STAGE
STG_Q, PQ = RING, 208
STG_M, PM = RING + 128 * 208, 272

def counted_step(a, mf, need, nxt, prev_n, extra=()):
    n = len(mf)
    gaps = [[] for _ in range(n)]
    per = 4
    k = 0
    for i in range(n):
        gaps[i] = list(nxt[k:k+per]); k += per
    assert k >= len(nxt)
    ex = list(extra)
    issued = 0
    for i in range(n):
        cnt = (prev_n - need[i]) + issued
        a(f"s_waitcnt lgkmcnt({min(cnt, 15)})")
        a(mf[i])
        for x in gaps[i]: a(x); issued += 1

def gen_p1(name="p1_kernel", abl=()):
    a = Asm('p1_')
    END = "P1_END"
    sX, sWQ, sWM, sQKV, sUG, sGS = 8, 12, 16, 20, 24, 28
    s_wave, s_rt, s_ct, s_kc, s_slot, s_cnt, s_t0, s_t1, s_t2 = 36, 37, 38, 39, 40, 41, 42, 43, 44
    s_bx, s_bq, s_bm, s_lx, s_lq, s_lm = 45, 46, 47, 48, 49, 50
    s_ones, s_delta, s_neg, s_pos, s_rs = 51, 52, 56, 57, 53
    a(f"""
    s_cmp_ge_u32 s2, 256
    s_cbranch_scc1 {END}
    s_load_dwordx2 s[4:5], s[0:1], {KA['x']}
    s_load_dwordx2 s[6:7], s[0:1], {KA['w_qkv']}
    s_load_dwordx2 s[32:33], s[0:1], {KA['w_mlp_in']}
    s_load_dwordx2 s[34:35], s[0:1], {KA['ws']}
    """)
    stamp_zero(a)
    if STAMPS_ON():
        a("s_memrealtime s[64:65]")
        a("s_memtime s[66:67]")
    a(f"""
    v_lshrrev_b32 v1, 6, v0
    v_and_b32 v2, 63, v0
    v_readfirstlane_b32 s{s_wave}, v1
    s_and_b32 s{s_t0}, s2, 7
    s_lshr_b32 s{s_t1}, s2, 3
    s_lshr_b32 s{s_rt}, s{s_t0}, 1
    s_lshl_b32 s{s_rt}, s{s_rt}, 2
    s_and_b32 s{s_t2}, s{s_t1}, 3
    s_add_u32 s{s_rt}, s{s_rt}, s{s_t2}
    s_and_b32 s{s_ct}, s{s_t0}, 1
    s_lshl_b32 s{s_ct}, s{s_ct}, 3
    s_lshr_b32 s{s_kc}, s{s_t1}, 2
    s_add_u32 s{s_ct}, s{s_ct}, s{s_kc}
    s_lshl_b32 s{s_t2}, s{s_t2}, 1
    s_add_u32 s{s_kc}, s{s_kc}, s{s_t2}
    s_and_b32 s{s_kc}, s{s_kc}, 7
    s_mov_b32 s58, s{s_wave}
    s_cmp_ge_u32 s{s_wave}, 4
    s_cbranch_scc1 P1_LOADER
    s_waitcnt lgkmcnt(0)
    """)
    def out_srds():
        srd(a, sQKV, 34, 35, 2000 * 3072, WS_QKV)
        srd(a, sUG, 34, 35, 1024 * 4096, WS_UG)
        srd(a, sGS, 34, 35, 8 * 2 * 2048 * 4, WS_GST)
        stamp_init(a, 34, 35, 0)
    out_srds()
    v_lane = 2
    def x_addrs(vxa, vt, wv):
        a(f"""
        v_and_b32 v{vt}, 31, v{v_lane}            ; i
        v_lshrrev_b32 v{vt+1}, 5, v{v_lane}       ; h
        v_lshrrev_b32 v{vt+2}, 1, v{vt}
        v_and_b32 v{vt+2}, 7, v{vt+2}             ; f(i)
        s_lshl_b32 s{s_t0}, s{wv}, 5
        v_add_u32 v{vt+3}, s{s_t0}, v{vt}          ; row = 32w + i
        v_lshlrev_b32 v{vt+3}, 7, v{vt+3}          ; row*128
        v_add_u32 v{vt+3}, {RING}, v{vt+3}
        """)
        for s in range(4):
            a(f"""
            v_add_u32 v{vt+4}, {2*s}, v{vt+1}
            v_xor_b32 v{vt+4}, v{vt+4}, v{vt+2}
            v_lshl_add_u32 v{vxa+s}, v{vt+4}, 4, v{vt+3}
            """)
    def bump(regs):
        a(f"s_add_u32 s{s_rs}, s{s_rs}, {STAGE}")
        a(f"s_cmp_eq_u32 s{s_rs}, {S1*STAGE}")
        a(f"s_cselect_b32 s{s_delta}, s{s_neg}, s{s_pos}")
        a(f"s_cselect_b32 s{s_rs}, 0, s{s_rs}")
        for r in regs: a(f"v_add_u32 v{r}, s{s_delta}, v{r}")

    V = Alloc(3, 256)
    vxa = V(4); vwq = V(1); vwm = V(2)
    vt = V(8, 2)
    fx = [V(4, 4), V(4, 4)]
    fw = [[V(4, 4) for _ in range(5)] for _ in range(2)]
    acc = [V(16, 4) for _ in range(5)]
    x_addrs(vxa, vt, s_wave)
    a(f"""
    v_lshrrev_b32 v{vt}, 5, v{v_lane}          ; h
    v_lshlrev_b32 v{vt}, 3, v{vt}              ; 8h
    v_bfe_u32 v{vt+1}, v{v_lane}, 2, 2         ; r
    v_add_u32 v{vt}, v{vt}, v{vt+1}            ; 8h + r
    v_bfe_u32 v{vt+2}, v{v_lane}, 4, 1         ; g16&1
    v_lshlrev_b32 v{vt+2}, 5, v{vt+2}          ; *32 bytes
    v_and_b32 v{vt+3}, 3, v{v_lane}
    v_lshl_add_u32 v{vt+2}, v{vt+3}, 3, v{vt+2} ; + c4*8 bytes
    v_add_u32 v{vt+2}, {RING}, v{vt+2}
    v_mul_u32_u24 v{vwq}, 192, v{vt}
    v_add_u32 v{vwq}, v{vwq}, v{vt+2}
    v_lshlrev_b32 v{vt+3}, 7, v{vt}            ; (8h+r)*128
    v_add_u32 v{vt+3}, v{vt+3}, v{vt+2}
    v_bfe_u32 v{vt+4}, v{v_lane}, 3, 1
    v_lshlrev_b32 v{vt+4}, 6, v{vt+4}          ; swz*64
    v_add_u32 v{vwm}, v{vt+3}, v{vt+4}
    v_xor_b32 v{vt+4}, 64, v{vt+4}
    v_add_u32 v{vwm+1}, v{vt+3}, v{vt+4}
    s_mov_b32 s{s_rs}, 0
    s_mov_b32 s{s_neg}, {(-(S1-1)*STAGE) & 0xffffffff}
    s_mov_b32 s{s_pos}, {STAGE}
    """)
    for b in range(5):
        for i in range(16): a(f"v_mov_b32 v{acc[b]+i}, 0")
    def reads(step, st):
        r = [f"ds_read_b128 v[{fx[st]}:{fx[st]+3}], v{vxa+step} offset:{X_OFF}"]
        for b in range(3):
            for q in range(2):
                r.append(f"ds_read_b64_tr_b16 v[{fw[st][b]+2*q}:{fw[st][b]+2*q+1}], v{vwq} offset:{WQ_OFF + (16*step+4*q)*192 + 64*b}")
        for b in range(2):
            for q in range(2):
                r.append(f"ds_read_b64_tr_b16 v[{fw[st][3+b]+2*q}:{fw[st][3+b]+2*q+1}], v{vwm+b} offset:{WM_OFF + (16*step+4*q)*128}")
        return r
    def mfmas(st):
        m = []
        for b in range(3):
            m.append(f"v_mfma_f32_32x32x16_bf16 v[{acc[b]}:{acc[b]+15}], v[{fw[st][b]}:{fw[st][b]+3}], v[{fx[st]}:{fx[st]+3}], v[{acc[b]}:{acc[b]+15}]")
        for b in range(3, 5):
            m.append(f"v_mfma_f32_32x32x16_bf16 v[{acc[b]}:{acc[b]+15}], v[{fx[st]}:{fx[st]+3}], v[{fw[st][b]}:{fw[st][b]+3}], v[{acc[b]}:{acc[b]+15}]")
        return m
    def chunk(last):
        for s in range(4):
            st = s & 1
            if s == 3 and not last:
                a("s_waitcnt lgkmcnt(0)")
                a("s_barrier")
                bump([vxa, vxa+1, vxa+2, vxa+3, vwq, vwm, vwm+1])
            nxt = [] if (s == 3 and last) else reads((s + 1) & 3, st ^ 1)
            counted_step(a, mfmas(st), [3, 5, 7, 9, 11], nxt, 11)
    a("s_barrier")
    stamp(a, 2)
    for x in reads(0, 0): a(x)
    a(f"s_mov_b32 s{s_cnt}, {NC1-1}")
    a.label("P1_loop")
    chunk(False)
    a(f"s_sub_u32 s{s_cnt}, s{s_cnt}, 1")
    a(f"s_cmp_lg_u32 s{s_cnt}, 0")
    a("s_cbranch_scc1 P1_loop")
    chunk(True)
    stamp(a, 3)
    a("s_barrier")
    stamp(a, 4)
    e = V
    t0 = e(2, 2); v_rstd = e(2, 2); v_nmr = e(2, 2)
    csr = e(16, 4)
    tp = e(4, 4)
    vh16 = e(1); vstq = e(1)
    a(f"""
    v_and_b32 v{t0}, 31, v{v_lane}
    s_lshl_b32 s{s_t0}, s{s_wave}, 5
    v_add_u32 v{vstq}, s{s_t0}, v{t0}
    v_lshlrev_b32 v{t0}, 2, v{vstq}
    ds_read_b32 v{v_rstd}, v{t0} offset:{T_RSTD}
    ds_read_b32 v{v_nmr}, v{t0} offset:{T_NMR}
    v_lshrrev_b32 v{vh16}, 5, v{v_lane}
    v_lshlrev_b32 v{vh16}, 4, v{vh16}
    v_mul_u32_u24 v{vstq}, {PQ}, v{vstq}
    v_lshrrev_b32 v{t0}, 1, v{vh16}
    v_add_u32 v{vstq}, v{vstq}, v{t0}
    """)
    for b in range(3):
        for r in range(4):
            a(f"ds_read_b128 v[{csr+4*r}:{csr+4*r+3}], v{vh16} offset:{T_CS + (32*b + 8*r)*4}")
        a("s_waitcnt lgkmcnt(0)")
        for r in range(4):
            for p in range(2):
                c = csr + 4*r + 2*p; x = acc[b] + 4*r + 2*p
                a(f"v_pk_mul_f32 v[{c}:{c+1}], v[{c}:{c+1}], v[{v_nmr}:{v_nmr+1}] op_sel_hi:[1,0]")
                a(f"v_pk_fma_f32 v[{x}:{x+1}], v[{x}:{x+1}], v[{v_rstd}:{v_rstd+1}], v[{c}:{c+1}] op_sel_hi:[1,0,1]")
        for r in range(4):
            x = acc[b] + 4*r
            a(f"v_cvt_pk_bf16_f32 v{tp+2*(r&1)}, v{x}, v{x+1}")
            a(f"v_cvt_pk_bf16_f32 v{tp+2*(r&1)+1}, v{x+2}, v{x+3}")
            a(f"ds_write_b64 v{vstq}, v[{tp+2*(r&1)}:{tp+2*(r&1)+1}] offset:{STG_Q + (32*b + 8*r)*2}")
    rs = csr
    nm = e(16, 4)
    vcsl = e(2, 2)
    vtk = e(1)
    cA, cB, cOne = e(2, 2), e(2, 2), e(2, 2)
    g2 = e(4, 4)
    a(f"""
    s_lshl_b32 s{s_t0}, s{s_wave}, 7             ; 32w tokens * 4 B
    v_add_u32 v{vtk}, s{s_t0}, v{vh16}
    v_and_b32 v{t0}, 31, v{v_lane}
    v_lshlrev_b32 v{t0}, 2, v{t0}
    ds_read_b32 v{vcsl}, v{t0} offset:{T_CS + 96*4}
    ds_read_b32 v{vcsl+1}, v{t0} offset:{T_CS + 128*4}
    """)
    for r in range(4):
        a(f"ds_read_b128 v[{rs+4*r}:{rs+4*r+3}], v{vtk} offset:{T_RSTD + 8*r*4}")
        a(f"ds_read_b128 v[{nm+4*r}:{nm+4*r+3}], v{vtk} offset:{T_NMR + 8*r*4}")
    LOG2E = 1.4426950408889634
    kA = -2.0 * 0.7978845608028654 * LOG2E
    kB = kA * 0.044715
    a(f"""
    v_mov_b32 v{cA}, {hex(f2u(kA))}
    v_mov_b32 v{cA+1}, {hex(f2u(kA))}
    v_mov_b32 v{cB}, {hex(f2u(kB))}
    v_mov_b32 v{cB+1}, {hex(f2u(kB))}
    v_mov_b32 v{cOne}, 1.0
    v_mov_b32 v{cOne+1}, 1.0
    v_and_b32 v{t0}, 31, v{v_lane}
    v_mul_u32_u24 v{vstq}, {PM}, v{t0}
    s_lshl_b32 s{s_t0}, s{s_wave}, 6             ; 32w tokens * 2 B
    v_add_u32 v{vstq}, s{s_t0}, v{vstq}
    v_lshrrev_b32 v{t0}, 1, v{vh16}
    v_add_u32 v{vstq}, v{vstq}, v{t0}
    s_waitcnt lgkmcnt(0)
    """)
    for b in range(2):
        for r in range(4):
            for p in range(2):
                x = acc[3+b] + 4*r + 2*p
                g = g2 + 2*p
                a(f"v_pk_mul_f32 v[{g}:{g+1}], v[{nm+4*r+2*p}:{nm+4*r+2*p+1}], v[{vcsl}:{vcsl+1}] op_sel:[0,{b}] op_sel_hi:[1,{b}]")
                a(f"v_pk_fma_f32 v[{x}:{x+1}], v[{x}:{x+1}], v[{rs+4*r+2*p}:{rs+4*r+2*p+1}], v[{g}:{g+1}]")
            for p in range(2):
                x = acc[3+b] + 4*r + 2*p; g = g2 + 2*p
                a(f"v_pk_mul_f32 v[{g}:{g+1}], v[{x}:{x+1}], v[{x}:{x+1}]")
            for p in range(2):
                x = acc[3+b] + 4*r + 2*p; g = g2 + 2*p
                a(f"v_pk_fma_f32 v[{g}:{g+1}], v[{g}:{g+1}], v[{cB}:{cB+1}], v[{cA}:{cA+1}]")
            for p in range(2):
                x = acc[3+b] + 4*r + 2*p; g = g2 + 2*p
                a(f"v_pk_mul_f32 v[{g}:{g+1}], v[{g}:{g+1}], v[{x}:{x+1}]")
            for i in range(4): a(f"v_exp_f32 v{g2+i}, v{g2+i}")
            for p in range(2):
                g = g2 + 2*p
                a(f"v_pk_add_f32 v[{g}:{g+1}], v[{g}:{g+1}], v[{cOne}:{cOne+1}]")
            for i in range(4): a(f"v_rcp_f32 v{g2+i}, v{g2+i}")
            for p in range(2):
                x = acc[3+b] + 4*r + 2*p; g = g2 + 2*p
                a(f"v_pk_mul_f32 v[{x}:{x+1}], v[{x}:{x+1}], v[{g}:{g+1}]")
            x = acc[3+b] + 4*r
            a(f"v_cvt_pk_bf16_f32 v{tp+2*(r&1)}, v{x}, v{x+1}")
            a(f"v_cvt_pk_bf16_f32 v{tp+2*(r&1)+1}, v{x+2}, v{x+3}")
            a(f"ds_write_b64 v{vstq}, v[{tp+2*(r&1)}:{tp+2*(r&1)+1}] offset:{STG_M + 32*b*PM + 8*r*2}")
    a(f"s_cmp_lt_u32 s{s_ct}, 8")
    a("s_cbranch_scc1 P1_nostat")
    A0, A1 = acc[3], acc[4]
    S2 = acc[0]
    for i in range(16):
        a(f"v_mul_f32 v{S2+i}, v{A0+i}, v{A0+i}")
    for i in range(16):
        a(f"v_fma_f32 v{S2+i}, v{A1+i}, v{A1+i}, v{S2+i}")
        a(f"v_add_f32 v{A0+i}, v{A0+i}, v{A1+i}")
    for i in range(16):
        a(f"v_permlane16_swap_b32 v{A0+i}, v{S2+i}")
    for i in range(16):
        a(f"v_add_f32 v{A0+i}, v{A0+i}, v{S2+i}")
    Z = acc[1]
    for i in range(8):
        a(f"v_add_f32_dpp v{Z+i}, v{A0+i}, v{A0+i} row_ror:8 row_mask:0xf bank_mask:0x3")
    for i in range(8):
        a(f"v_add_f32_dpp v{Z+i}, v{A0+8+i}, v{A0+8+i} row_ror:8 row_mask:0xf bank_mask:0xc")
    U = acc[2]
    for i in range(4):
        a(f"v_add_f32_dpp v{U+i}, v{Z+i}, v{Z+i} row_half_mirror row_mask:0xf bank_mask:0x5")
    for i in range(4):
        a(f"v_add_f32_dpp v{U+i}, v{Z+4+i}, v{Z+4+i} row_half_mirror row_mask:0xf bank_mask:0xa")
    for i in range(4):
        a(f"v_add_f32_dpp v{U+4+i}, v{U+i}, v{U+i} quad_perm:[1,0,3,2] row_mask:0xf bank_mask:0xf")
    for i in range(4):
        a(f"v_add_f32_dpp v{U+i}, v{U+4+i}, v{U+4+i} quad_perm:[2,3,0,1] row_mask:0xf bank_mask:0xf")
    a(f"""
    v_bfe_u32 v{t0}, v{v_lane}, 3, 1
    v_lshlrev_b32 v{t0}, 4, v{t0}
    v_bfe_u32 v{t0+1}, v{v_lane}, 2, 1
    v_lshl_add_u32 v{t0}, v{t0+1}, 3, v{t0}
    v_lshrrev_b32 v{t0+1}, 5, v{v_lane}
    v_lshl_add_u32 v{t0}, v{t0+1}, 2, v{t0}      ; h -> +4
    s_lshl_b32 s{s_t0}, s{s_rt}, 7
    s_lshl_b32 s{s_t1}, s{s_wave}, 5
    s_add_u32 s{s_t0}, s{s_t0}, s{s_t1}
    v_add_u32 v{t0}, s{s_t0}, v{t0}
    v_lshlrev_b32 v{t0}, 2, v{t0}               ; *4 B
    v_bfe_u32 v{t0+1}, v{v_lane}, 4, 1
    v_lshl_add_u32 v{t0}, v{t0+1}, 13, v{t0}     ; stat * 2048*4
    s_sub_u32 s{s_t1}, s{s_ct}, 8
    s_lshl_b32 s{s_t1}, s{s_t1}, 14             ; part * 2*2048*4
    v_and_b32 v{t0+1}, 3, v{v_lane}
    v_cmp_eq_u32 vcc, 0, v{t0+1}
    s_and_saveexec_b64 s[54:55], vcc
    buffer_store_dwordx4 v[{U}:{U+3}], v{t0}, s[{sGS}:{sGS+3}], s{s_t1} offen
    s_mov_b64 exec, s[54:55]
    """)
    a.label("P1_nostat")
    a("s_waitcnt lgkmcnt(0)")
    stamp(a, 5)
    a("s_barrier")
    a("s_branch P1_STORE")

    a.label("P1_LOADER")
    vx, vq, vm = 3, 4, 7
    vt = 8
    a(f"""
    s_sub_u32 s{s_wave}, s{s_wave}, 4
    v_lshrrev_b32 v{vt}, 3, v{v_lane}
    v_lshrrev_b32 v{vt+1}, 4, v{v_lane}
    s_and_b32 s{s_t0}, s{s_wave}, 1
    s_lshl_b32 s{s_t0}, s{s_t0}, 2
    v_add_u32 v{vt+1}, s{s_t0}, v{vt+1}          ; f = 4(j&1) + (l>>4)
    v_and_b32 v{vt+2}, 7, v{v_lane}
    v_xor_b32 v{vt+2}, v{vt+2}, v{vt+1}
    v_lshlrev_b32 v{vt+2}, 4, v{vt+2}
    v_lshl_add_u32 v{vx}, v{vt}, 10, v{vt+2}
    v_bfe_u32 v{vt+1}, v{v_lane}, 4, 1
    v_lshlrev_b32 v{vt+1}, 2, v{vt+1}
    v_and_b32 v{vt+2}, 7, v{v_lane}
    v_xor_b32 v{vt+2}, v{vt+2}, v{vt+1}
    v_lshlrev_b32 v{vt+2}, 4, v{vt+2}
    v_lshl_add_u32 v{vm}, v{vt}, 11, v{vt+2}
    """)
    for jj in range(3):
        a(f"""
        v_add_u32 v{vt}, {64*jj}, v{v_lane}
        v_mul_u32_u24 v{vt+1}, 43691, v{vt}
        v_lshrrev_b32 v{vt+1}, 19, v{vt+1}          ; row = f/12
        v_mul_u32_u24 v{vt+2}, 12, v{vt+1}
        v_sub_u32 v{vt+2}, v{vt}, v{vt+2}           ; slot
        v_lshlrev_b32 v{vt+2}, 4, v{vt+2}
        v_mul_u32_u24 v{vt+1}, 3072, v{vt+1}
        v_add_u32 v{vq+jj}, v{vt+1}, v{vt+2}
        """)
    a(f"""
    s_lshl_b32 s{s_bx}, s{s_rt}, 17              ; rt*128*1024
    s_lshl_b32 s{s_t0}, s{s_wave}, 13            ; 8 rows * 1024 * w
    s_add_u32 s{s_bx}, s{s_bx}, s{s_t0}
    s_mul_i32 s{s_bq}, s{s_wave}, {16*3072}
    s_mul_i32 s{s_t0}, s{s_ct}, 192
    s_add_u32 s{s_bq}, s{s_bq}, s{s_t0}
    s_mul_i32 s{s_bm}, s{s_wave}, {16*2048}
    s_lshl_b32 s{s_t0}, s{s_ct}, 7
    s_add_u32 s{s_bm}, s{s_bm}, s{s_t0}
    s_lshl_b32 s{s_lx}, s{s_wave}, 10
    s_mul_i32 s{s_lq}, s{s_wave}, 3072
    s_add_u32 s{s_lq}, s{s_lq}, {WQ_OFF}
    s_lshl_b32 s{s_lm}, s{s_wave}, 11
    s_add_u32 s{s_lm}, s{s_lm}, {WM_OFF}
    s_waitcnt lgkmcnt(0)
    """)
    srd(a, sX, 4, 5, 2000 * 1024)
    srd(a, sWQ, 6, 7, 512 * 3072)
    srd(a, sWM, 32, 33, 512 * 2048)
    streams = [
        Stream(sX, [vx]*4, [i*32*1024 for i in range(4)], [X_OFF + i*4096 for i in range(4)], s_bx, 128, s_lx),
        Stream(sWQ, [vq, vq+1, vq+2], [0, 0, 0], [0, 1024, 2048], s_bq, 64*3072, s_lq),
        Stream(sWM, [vm, vm], [0, 8*2048], [0, 1024], s_bm, 64*2048, s_lm),
    ]
    LV = Alloc(16, 128)
    lxa = LV(4); lg = LV(3)
    l_xs, l_xq = LV(1), LV(1); l_cs = LV(3)
    lt = LV(8, 2)
    lfx = LV(16, 4)
    lfw = LV(24, 4)
    first = [True]
    def stats_setup():
        x_addrs(lxa, lt, s_wave)
        a(f"""
        v_lshrrev_b32 v{lt}, 4, v{v_lane}
        v_lshlrev_b32 v{lt}, 2, v{lt}
        v_bfe_u32 v{lt+1}, v{v_lane}, 2, 2
        v_add_u32 v{lt}, v{lt}, v{lt+1}
        v_and_b32 v{lt+1}, 3, v{v_lane}
        v_lshlrev_b32 v{lt+1}, 3, v{lt+1}          ; c4*8 bytes
        v_mul_u32_u24 v{lt+2}, 192, v{lt}
        v_add_u32 v{lt+2}, v{lt+2}, v{lt+1}
        v_add_u32 v{lt+2}, {RING + WQ_OFF}, v{lt+2}
        v_lshlrev_b32 v{lt+3}, 7, v{lt}
        v_add_u32 v{lt+3}, v{lt+3}, v{lt+1}
        v_add_u32 v{lt+3}, {RING + WM_OFF}, v{lt+3}
        v_bfe_u32 v{lt+4}, v{v_lane}, 3, 1
        v_lshlrev_b32 v{lt+4}, 6, v{lt+4}
        """)
        a(f"""
        s_lshl_b32 s{s_t0}, s{s_wave}, 5            ; w*32 bytes
        v_add_u32 v{lg}, s{s_t0}, v{lt+2}
        ; i=1
        s_cmp_lt_u32 s{s_wave}, 2
        s_cbranch_scc0 P1_g1m
        s_add_u32 s{s_t0}, s{s_t0}, 128             ; (w+4)*32
        v_add_u32 v{lg+1}, s{s_t0}, v{lt+2}
        s_lshl_b32 s{s_t0}, s{s_wave}, 5
        v_xor_b32 v{lt+5}, 64, v{lt+4}
        v_add_u32 v{lg+2}, v{lt+3}, v{lt+5}
        v_add_u32 v{lg+2}, s{s_t0}, v{lg+2}
        s_branch P1_gdone
        P1_g1m:
        s_and_b32 s{s_t0}, s{s_wave}, 1
        s_lshl_b32 s{s_t0}, s{s_t0}, 5
        v_add_u32 v{lg+1}, v{lt+3}, v{lt+4}
        v_add_u32 v{lg+1}, s{s_t0}, v{lg+1}
        v_mov_b32 v{lg+2}, v{lg+1}
        P1_gdone:
        """)
        a(f"""
        v_mov_b32 v{l_xs}, 0
        v_mov_b32 v{l_xq}, 0
        v_mov_b32 v{l_cs}, 0
        v_mov_b32 v{l_cs+1}, 0
        v_mov_b32 v{l_cs+2}, 0
        s_mov_b32 s{s_ones}, 0x3f803f80
        s_mov_b32 s{s_rs}, 0
        s_mov_b32 s{s_neg}, {(-(S1-1)*STAGE) & 0xffffffff}
        s_mov_b32 s{s_pos}, {STAGE}
        """)
    lg1 = LV(4)
    def stats_setup2():
        a(f"s_cmp_lt_u32 s{s_wave}, 2")
        a(f"s_cselect_b32 s{s_t0}, {16*192}, {16*128}".replace(f"{16*192}, {16*128}", f"{16*192}, s{s_t1}"))
    def work_pre():
        for s in range(4):
            a(f"ds_read_b128 v[{lfx+4*s}:{lfx+4*s+3}], v{lxa+s} offset:{X_OFF}")
        for j in range(4):
            a(f"ds_read_b64_tr_b16 v[{lfw+2*j}:{lfw+2*j+1}], v{lg} offset:{16*j*192}")
        for j in range(4):
            a(f"ds_read_b64_tr_b16 v[{lfw+8+2*j}:{lfw+8+2*j+1}], v{lg1+j}")
        for j in range(4):
            a(f"ds_read_b64_tr_b16 v[{lfw+16+2*j}:{lfw+16+2*j+1}], v{lg+2} offset:{16*j*128}")
    def work():
        r = ["s_waitcnt lgkmcnt(0)"]
        for i in range(16):
            r.append(f"v_dot2_f32_bf16 v{l_xs}, v{lfx+i}, s{s_ones}, v{l_xs}")
            r.append(f"v_dot2_f32_bf16 v{l_xq}, v{lfx+i}, v{lfx+i}, v{l_xq}")
        for i in range(8):
            for g in range(3):
                r.append(f"v_dot2_f32_bf16 v{l_cs+g}, v{lfw+8*g+i}, s{s_ones}, v{l_cs+g}")
        return r
    def work_post():
        bump([lxa, lxa+1, lxa+2, lxa+3, lg, lg+2, lg1, lg1+1, lg1+2, lg1+3])
    stamp(a, 2)
    stats_done = [False]
    class Pre:
        pass
    def loader():
        loader_loop(a, streams, NC1, S1, STAGE, s_kc, s_slot, s_cnt, s_t0, s_t1, s_t2, lds_base=RING,
                    work=work, work_pre=work_pre, work_post=work_post, hook=hook)
    def hook():
        stats_setup()
        a(f"s_mov_b32 s{s_t1}, {16*128}")
        a(f"s_cmp_lt_u32 s{s_wave}, 2")
        a(f"s_cselect_b32 s{s_t0}, {16*192}, s{s_t1}")
        a(f"v_mov_b32 v{lg1}, v{lg+1}")
        for j in range(1, 4):
            a(f"v_add_u32 v{lg1+j}, s{s_t0}, v{lg1+j-1}")
        out_srds()
    loader()
    a(f"""
    v_mov_b32 v{lt}, v{l_xs}
    v_mov_b32 v{lt+1}, v{l_xq}
    s_nop 1
    v_permlane32_swap_b32 v{l_xs}, v{lt}
    v_permlane32_swap_b32 v{l_xq}, v{lt+1}
    v_add_f32 v{l_xs}, v{l_xs}, v{lt}
    v_add_f32 v{l_xq}, v{l_xq}, v{lt+1}
    v_mul_f32 v{l_xs}, 0x3b000000, v{l_xs}       ; mean
    v_mul_f32 v{l_xq}, 0x3b000000, v{l_xq}       ; E[x^2]
    v_fma_f32 v{lt}, -v{l_xs}, v{l_xs}, v{l_xq}  ; var
    v_max_f32 v{lt}, 0, v{lt}
    v_add_f32 v{lt}, 0x3727c5ac, v{lt}           ; + 1e-5
    v_rsq_f32 v{lt+2}, v{lt}
    v_mul_f32 v{lt+3}, -1.0, v{l_xs}
    v_mul_f32 v{lt+3}, v{lt+3}, v{lt+2}          ; -mean*rstd
    v_and_b32 v{lt}, 31, v{v_lane}
    s_lshl_b32 s{s_t0}, s{s_wave}, 5
    v_add_u32 v{lt}, s{s_t0}, v{lt}
    v_lshlrev_b32 v{lt}, 2, v{lt}
    ds_write_b32 v{lt}, v{lt+2} offset:{T_RSTD}
    ds_write_b32 v{lt}, v{lt+3} offset:{T_NMR}
    """)
    for g in range(3):
        a(f"""
        v_mov_b32 v{lt+4}, v{l_cs+g}
        s_nop 1
        v_permlane16_swap_b32 v{l_cs+g}, v{lt+4}
        v_add_f32 v{l_cs+g}, v{l_cs+g}, v{lt+4}
        v_mov_b32 v{lt+4}, v{l_cs+g}
        s_nop 1
        v_permlane32_swap_b32 v{l_cs+g}, v{lt+4}
        v_add_f32 v{l_cs+g}, v{l_cs+g}, v{lt+4}
        """)
    a(f"""
    v_and_b32 v{lt}, 15, v{v_lane}
    s_lshl_b32 s{s_t0}, s{s_wave}, 4
    v_add_u32 v{lt}, s{s_t0}, v{lt}
    v_lshlrev_b32 v{lt}, 2, v{lt}                ; (16w + j)*4
    ds_write_b32 v{lt}, v{l_cs} offset:{T_CS}
    ds_write_b32 v{lt}, v{l_cs+1} offset:{T_CS + 256}
    s_cmp_lt_u32 s{s_wave}, 2
    s_cbranch_scc0 P1_nog2
    ds_write_b32 v{lt}, v{l_cs+2} offset:{T_CS + 512}
    P1_nog2:
    s_waitcnt lgkmcnt(0)
    """)
    stamp(a, 3)
    a("s_barrier")
    a("s_barrier")

    a.label("P1_STORE")
    d = 8
    a(f"s_mul_i32 s{s_t1}, s{s_rt}, {128*3072}")
    a(f"s_mul_i32 s{s_t2}, s{s_ct}, 192")
    a(f"s_add_u32 s{s_t1}, s{s_t1}, s{s_t2}")
    for i in range(3):
        a(f"""
        v_add_u32 v3, {512*i}, v0
        v_mul_u32_u24 v4, 43691, v3
        v_lshrrev_b32 v4, 19, v4              ; row
        v_mul_u32_u24 v5, 12, v4
        v_sub_u32 v5, v3, v5                  ; slot
        v_lshlrev_b32 v5, 4, v5
        v_mul_u32_u24 v6, {PQ}, v4
        v_add_u32 v6, v6, v5
        ds_read_b128 v[{d+4*i}:{d+4*i+3}], v6 offset:{STG_Q}
        v_mul_u32_u24 v4, 3072, v4
        v_add_u32 v{40+i}, v4, v5
        """)
    for i in range(2):
        a(f"""
        v_add_u32 v3, {512*i}, v0
        v_lshrrev_b32 v4, 4, v3               ; row
        v_and_b32 v5, 15, v3
        v_lshlrev_b32 v5, 4, v5
        v_mul_u32_u24 v6, {PM}, v4
        v_add_u32 v6, v6, v5
        ds_read_b128 v[{d+12+4*i}:{d+12+4*i+3}], v6 offset:{STG_M}
        v_lshl_add_u32 v{44+i}, v4, 12, v5
        """)
    a(f"""
    s_lshl_b32 s{s_t2}, s{s_ct}, 18           ; 64 rows * 4096
    s_lshl_b32 s{s_t0}, s{s_rt}, 8            ; 128 tokens * 2 B
    s_add_u32 s{s_t2}, s{s_t2}, s{s_t0}
    s_waitcnt lgkmcnt(0)
    """)
    for i in range(3):
        a(f"buffer_store_dwordx4 v[{d+4*i}:{d+4*i+3}], v{40+i}, s[{sQKV}:{sQKV+3}], s{s_t1} offen")
    for i in range(2):
        a(f"buffer_store_dwordx4 v[{d+12+4*i}:{d+12+4*i+3}], v{44+i}, s[{sUG}:{sUG+3}], s{s_t2} offen")
    if STAMPS_ON():
        a("s_waitcnt vmcnt(0)")
    stamp(a, 6)
    stamp_flush(a, 58)
    a.label(END)
    a("s_endpgm")
    return a.text(), dict(name=name, vgpr=V.hi, sgpr=100, lds=LDS1, grid=256, block=512)
```

```python
from common import *
import common, struct
def STAMPS_ON(): return common.STAMPS
def f2u(x): return struct.unpack("<I", struct.pack("<f", x))[0]

NC = 8
LDS2 = 131072
Z_RS, Z_NM, Z_WP, Z_GN, Z_PG = 0, 1152, 2304, 7424, 608

def conv_T_addr(a, vd, vt, v_lane, base):
    a(f"""
    v_lshrrev_b32 v{vt}, 4, v{v_lane}
    v_lshlrev_b32 v{vt}, 3, v{vt}
    v_and_b32 v{vt+1}, 15, v{v_lane}
    v_sub_u32 v{vt}, v{vt}, v{vt+1}
    v_add_u32 v{vt}, 15, v{vt}
    v_lshlrev_b32 v{vt}, 1, v{vt}
    v_add_u32 v{vd}, {base}, v{vt}
    """)

def build_filter_table(a, s_dw_srd, s_c0bytes, nch, pitch_bytes, wp_base, vt, s_t, nthreads=512):
    ngran = nch * 10
    a(f"""
    v_mov_b32 v{vt}, 0
    v_mov_b32 v{vt+1}, 0
    v_mov_b32 v{vt+2}, 0
    v_mov_b32 v{vt+3}, 0
    v_lshlrev_b32 v{vt+4}, 4, v0
    v_cmp_gt_u32 vcc, {ngran}, v0
    s_and_saveexec_b64 s[54:55], vcc
    ds_write_b128 v{vt+4}, v[{vt}:{vt+3}] offset:{wp_base}
    s_mov_b64 exec, s[54:55]
    """)
    sh = nch.bit_length() - 1
    per = nthreads // nch
    rounds = (31 + per - 1) // per
    for j in range(rounds):
        a(f"""
        v_lshrrev_b32 v{vt+5}, {sh}, v0
        v_add_u32 v{vt+5}, {per*j}, v{vt+5}          ; tap i
        v_and_b32 v{vt+6}, {nch-1}, v0                ; channel
        v_mul_u32_u24 v{vt+7}, {pitch_bytes}, v{vt+5}
        v_lshl_add_u32 v{vt+7}, v{vt+6}, 1, v{vt+7}
        v_cmp_gt_u32 vcc, 31, v{vt+5}
        v_cndmask_b32 v{vt+7}, -1, v{vt+7}, vcc
        buffer_load_ushort v{vt+8+j}, v{vt+7}, s[{s_dw_srd}:{s_dw_srd+3}], s{s_c0bytes} offen
        v_mul_u32_u24 v{vt+6}, 160, v{vt+6}
        v_lshl_add_u32 v{vt+12+j}, v{vt+5}, 1, v{vt+6}
        """)
    a("s_waitcnt lgkmcnt(0)")
    a("s_barrier")
    a("s_waitcnt vmcnt(0)")
    for j in range(rounds):
        assert 16 + per * rounds - 1 < 80 or True
        a(f"""
        v_lshrrev_b32 v{vt+5}, {sh}, v0
        v_add_u32 v{vt+5}, {per*j}, v{vt+5}
        v_cmp_gt_u32 vcc, 31, v{vt+5}
        s_and_saveexec_b64 s[54:55], vcc
        ds_write_b16 v{vt+12+j}, v{vt+8+j} offset:{wp_base + 32}
        s_mov_b64 exec, s[54:55]
        """)

def gen_p2(name="p2_kernel"):
    a = Asm('p2_')
    END = "P2_END"
    sA, sB, sO1, sO2, sU, sG = 8, 12, 16, 20, 24, 28
    s_wave, s_i0, s_i1, s_kc, s_slot, s_cnt, s_t0, s_t1, s_t2 = 36, 37, 38, 39, 40, 41, 42, 43, 44
    s_b0, s_b1, s_l0, s_l1 = 45, 46, 48, 49
    s_b, s_delta, s_neg, s_pos, s_rs = 51, 52, 56, 57, 53
    s_xcd, s_idx = 47, 50
    v_lane = 2
    a(f"""
    s_cmp_ge_u32 s2, 256
    s_cbranch_scc1 {END}
    s_load_dwordx2 s[4:5], s[0:1], {KA['ws']}
    s_load_dwordx2 s[6:7], s[0:1], {KA['w_att_out']}
    s_load_dwordx2 s[32:33], s[0:1], {KA['dw_csgu']}
    """)
    stamp_zero(a)
    if STAMPS_ON():
        a("s_memrealtime s[64:65]")
        a("s_memtime s[66:67]")
    a(f"""
    v_lshrrev_b32 v1, 6, v0
    v_and_b32 v2, 63, v0
    v_readfirstlane_b32 s{s_wave}, v1
    s_and_b32 s{s_xcd}, s2, 7
    s_lshr_b32 s{s_idx}, s2, 3
    s_mov_b32 s58, s{s_wave}
    s_waitcnt lgkmcnt(0)
    """)
    stamp_init(a, 4, 5, 1)
    a(f"s_cmp_ge_u32 s{s_idx}, 16")
    a("s_cbranch_scc1 P2_VROLE")

    K_OFF, Q_OFF, STAGE, S = 0, 16384, 32768, 4
    a(f"""
    s_lshr_b32 s{s_b}, s{s_xcd}, 2                 ; batch
    s_and_b32 s{s_t0}, s{s_xcd}, 3                 ; quadrant
    s_lshr_b32 s{s_i0}, s{s_t0}, 1
    s_lshl_b32 s{s_i0}, s{s_i0}, 2
    s_and_b32 s{s_t1}, s{s_idx}, 3
    s_add_u32 s{s_i0}, s{s_i0}, s{s_t1}            ; qt
    s_and_b32 s{s_i1}, s{s_t0}, 1
    s_lshl_b32 s{s_i1}, s{s_i1}, 2
    s_lshr_b32 s{s_t2}, s{s_idx}, 2
    s_add_u32 s{s_i1}, s{s_i1}, s{s_t2}            ; kt
    s_lshl_b32 s{s_t1}, s{s_t1}, 1
    s_add_u32 s{s_kc}, s{s_t1}, s{s_t2}
    s_and_b32 s{s_kc}, s{s_kc}, 7
    s_mul_i32 s{s_t0}, s{s_b}, {1000*3072}
    s_add_u32 s{sA}, s4, s{s_t0}
    s_addc_u32 s{sA+1}, s5, 0
    s_mov_b32 s{sA+2}, {1000*3072}
    s_mov_b32 s{sA+3}, 0x20000
    s_lshl_b32 s{s_t0}, s{s_b}, 21                 ; batch * 1024*2048
    s_add_u32 s{s_t0}, s{s_t0}, {WS_PT}
    s_add_u32 s{sO1}, s4, s{s_t0}
    s_addc_u32 s{sO1+1}, s5, 0
    s_mov_b32 s{sO1+2}, {1000*2048}
    s_mov_b32 s{sO1+3}, 0x20000
    """)
    srd(a, sO2, 4, 5, 2*8*2*1024*4, WS_SST)
    a(f"s_cmp_ge_u32 s{s_wave}, 4")
    a("s_cbranch_scc1 P2_S_LOADER")
    V = Alloc(3, 256)
    vq = V(4); vk = V(4); vt = V(8, 2)
    fq = [V(4, 4), V(4, 4)]
    fk = [[V(4, 4) for _ in range(4)] for _ in range(2)]
    acc = [V(16, 4) for _ in range(4)]
    r_frag_addrs(a, vq, vt, v_lane, s_wave, s_t0, Q_OFF)
    r_frag_addrs(a, vk, vt, v_lane, None, s_t0, K_OFF)
    ring = Ring(a, S, STAGE, s_rs, s_delta, s_neg, s_pos); ring.init()
    for b in range(4):
        for i in range(16): a(f"v_mov_b32 v{acc[b]+i}, 0")
    def reads(step, st):
        r = [f"ds_read_b128 v[{fq[st]}:{fq[st]+3}], v{vq+step}"]
        for b in range(4): r.append(f"ds_read_b128 v[{fk[st][b]}:{fk[st][b]+3}], v{vk+step} offset:{b*4096}")
        return r
    def mfmas(st, s, par):
        return [f"v_mfma_f32_32x32x16_bf16 v[{acc[b]}:{acc[b]+15}], v[{fk[st][b]}:{fk[st][b]+3}], v[{fq[st]}:{fq[st]+3}], v[{acc[b]}:{acc[b]+15}]" for b in range(4)]
    chunk = gemm_mainloop(a, NC, ring, [vq+i for i in range(4)] + [vk+i for i in range(4)], reads, mfmas, [2, 3, 4, 5], s_cnt, "S", per=2,
                          first_hook=lambda: stamp(a, 2))
    a(f"s_mov_b32 s{s_cnt}, {NC-1}")
    a.label("P2_S_loop")
    chunk(False, 0)
    a(f"s_sub_u32 s{s_cnt}, s{s_cnt}, 1")
    a(f"s_cmp_lg_u32 s{s_cnt}, 0")
    a("s_cbranch_scc1 P2_S_loop")
    chunk(True, 0)
    stamp(a, 3)
    vm = V(2, 2); vl = V(4, 4); cS = V(2, 2); tp = V(4, 4); vst = V(1)
    CS = 1.4426950408889634 / (512 ** 0.5)
    a(f"s_cmp_lg_u32 s{s_i1}, 7")
    a("s_cbranch_scc1 P2_S_nomask")
    for i in range(4, 16): a(f"v_mov_b32 v{acc[3]+i}, 0xff800000")
    a.label("P2_S_nomask")
    allr = [acc[b] + i for b in range(4) for i in range(16)]
    a(f"v_max3_f32 v{vm}, v{allr[0]}, v{allr[1]}, v{allr[2]}")
    a(f"v_max3_f32 v{vm+1}, v{allr[3]}, v{allr[4]}, v{allr[5]}")
    k = 6; t = 0
    while k < 64:
        if k + 1 < 64:
            a(f"v_max3_f32 v{vm+t}, v{allr[k]}, v{allr[k+1]}, v{vm+t}"); k += 2
        else:
            a(f"v_max_f32 v{vm+t}, v{allr[k]}, v{vm+t}"); k += 1
        t ^= 1
    a(f"""
    v_max_f32 v{vm}, v{vm}, v{vm+1}
    v_mov_b32 v{vm+1}, v{vm}
    s_nop 1
    v_permlane32_swap_b32 v{vm}, v{vm+1}
    v_max_f32 v{vm}, v{vm}, v{vm+1}
    v_mul_f32 v{vm}, {hex(f2u(CS))}, v{vm}
    v_sub_f32 v{vm+1}, 0, v{vm}
    v_mov_b32 v{cS}, {hex(f2u(CS))}
    v_mov_b32 v{cS+1}, {hex(f2u(CS))}
    v_mov_b32 v{vl}, 0
    v_mov_b32 v{vl+1}, 0
    v_mov_b32 v{vl+2}, 0
    v_mov_b32 v{vl+3}, 0
    v_and_b32 v{vt}, 31, v{v_lane}
    s_lshl_b32 s{s_t0}, s{s_wave}, 5
    v_add_u32 v{vt}, s{s_t0}, v{vt}
    v_mul_u32_u24 v{vst}, 272, v{vt}
    v_lshrrev_b32 v{vt+1}, 5, v{v_lane}
    v_lshl_add_u32 v{vst}, v{vt+1}, 3, v{vst}        ; + h*8 bytes
    s_barrier
    """)
    for b in range(4):
        for r in range(4):
            x = acc[b] + 4*r
            for p in range(2):
                a(f"v_pk_fma_f32 v[{x+2*p}:{x+2*p+1}], v[{x+2*p}:{x+2*p+1}], v[{cS}:{cS+1}], v[{vm}:{vm+1}] op_sel:[0,0,1] op_sel_hi:[1,1,1]")
            for i in range(4): a(f"v_exp_f32 v{x+i}, v{x+i}")
            a(f"v_pk_add_f32 v[{vl}:{vl+1}], v[{vl}:{vl+1}], v[{x}:{x+1}]")
            a(f"v_pk_add_f32 v[{vl+2}:{vl+3}], v[{vl+2}:{vl+3}], v[{x+2}:{x+3}]")
            a(f"v_cvt_pk_bf16_f32 v{tp+2*(r&1)}, v{x}, v{x+1}")
            a(f"v_cvt_pk_bf16_f32 v{tp+2*(r&1)+1}, v{x+2}, v{x+3}")
            a(f"ds_write_b64 v{vst}, v[{tp+2*(r&1)}:{tp+2*(r&1)+1}] offset:{(32*b + 8*r)*2}")
    a(f"""
    v_add_f32 v{vl}, v{vl}, v{vl+1}
    v_add_f32 v{vl+2}, v{vl+2}, v{vl+3}
    v_add_f32 v{vl}, v{vl}, v{vl+2}
    v_mov_b32 v{vl+1}, v{vl}
    s_nop 1
    v_permlane32_swap_b32 v{vl}, v{vl+1}
    v_add_f32 v{vl}, v{vl}, v{vl+1}
    v_cmp_gt_u32 vcc, 32, v{v_lane}
    s_nop 1
    v_cndmask_b32 v{vl}, v{vl}, v{vm}, vcc
    s_lshl_b32 s{s_t0}, s{s_i0}, 7
    v_add_u32 v{vt}, s{s_t0}, v{vt}
    v_lshlrev_b32 v{vt}, 2, v{vt}
    v_lshrrev_b32 v{vt+1}, 5, v{v_lane}
    v_lshl_add_u32 v{vt}, v{vt+1}, 12, v{vt}         ; stat * 1024*4
    s_lshl_b32 s{s_t0}, s{s_b}, 3
    s_add_u32 s{s_t0}, s{s_t0}, s{s_i1}
    s_lshl_b32 s{s_t0}, s{s_t0}, 13                 ; (b*8+kt) * 2*1024*4
    buffer_store_dword v{vl}, v{vt}, s[{sO2}:{sO2+3}], s{s_t0} offen
    s_waitcnt lgkmcnt(0)
    """)
    stamp(a, 5)
    a("s_barrier")
    a("s_branch P2_S_STORE")
    a.label("P2_S_LOADER")
    vo, vt_l = 3, 8
    a(f"s_sub_u32 s{s_wave}, s{s_wave}, 4")
    r_loader_voff(a, vo, vt_l, v_lane, s_wave, s_t0, 3072)
    a(f"""
    s_lshl_b32 s{s_b0}, s{s_i1}, 7
    s_lshl_b32 s{s_t0}, s{s_wave}, 3
    s_add_u32 s{s_b0}, s{s_b0}, s{s_t0}
    s_mul_i32 s{s_b0}, s{s_b0}, 3072
    s_add_u32 s{s_b0}, s{s_b0}, 1024               ; k rows
    s_lshl_b32 s{s_b1}, s{s_i0}, 7
    s_add_u32 s{s_b1}, s{s_b1}, s{s_t0}
    s_mul_i32 s{s_b1}, s{s_b1}, 3072               ; q rows
    s_lshl_b32 s{s_l0}, s{s_wave}, 10
    """)
    streams = [
        Stream(sA, [vo]*4, [i*32*3072 for i in range(4)], [Q_OFF + i*4096 for i in range(4)], s_b1, 128, s_l0),
        Stream(sA, [vo]*4, [i*32*3072 for i in range(4)], [K_OFF + i*4096 for i in range(4)], s_b0, 128, s_l0),
    ]
    stamp(a, 2)
    loader_loop(a, streams, NC, S, STAGE, s_kc, s_slot, s_cnt, s_t0, s_t1, s_t2)
    stamp(a, 3)
    a("s_barrier")
    a("s_barrier")
    a.label("P2_S_STORE")
    a(f"""
    s_lshl_b32 s{s_t1}, s{s_i0}, 18              ; qt*128*2048
    s_lshl_b32 s{s_t2}, s{s_i1}, 8               ; kt*256
    s_add_u32 s{s_t1}, s{s_t1}, s{s_t2}
    """)
    for i in range(4):
        a(f"""
        v_add_u32 v3, {512*i}, v0
        v_lshrrev_b32 v4, 4, v3
        v_and_b32 v5, 15, v3
        v_lshlrev_b32 v5, 4, v5
        v_mul_u32_u24 v6, 272, v4
        v_add_u32 v6, v6, v5
        ds_read_b128 v[{8+4*i}:{8+4*i+3}], v6
        v_lshl_add_u32 v{40+i}, v4, 11, v5
        """)
    a("s_waitcnt lgkmcnt(0)")
    for i in range(4):
        a(f"buffer_store_dwordx4 v[{8+4*i}:{8+4*i+3}], v{40+i}, s[{sO1}:{sO1+3}], s{s_t1} offen")
    a("s_branch P2_FIN")

    a.label("P2_VROLE")
    V_OFF, W_OFF, STAGE, S = 0, 16384, 24576, 4
    a(f"""
    s_sub_u32 s{s_idx}, s{s_idx}, 16
    s_lshr_b32 s{s_t0}, s{s_idx}, 3
    s_lshl_b32 s{s_i0}, s{s_xcd}, 1
    s_add_u32 s{s_i0}, s{s_i0}, s{s_t0}            ; rt
    s_and_b32 s{s_i1}, s{s_idx}, 7                 ; ct
    s_lshl_b32 s{s_t0}, s{s_t0}, 2
    s_add_u32 s{s_kc}, s{s_i1}, s{s_t0}
    s_and_b32 s{s_kc}, s{s_kc}, 7
    """)
    srd(a, sA, 4, 5, 2000 * 3072, WS_QKV)
    srd(a, sB, 6, 7, 512 * 1024)
    srd(a, sO1, 4, 5, 2000 * 1024, WS_VP)
    a(f"s_cmp_ge_u32 s{s_wave}, 4")
    a("s_cbranch_scc1 P2_V_LOADER")
    V2 = Alloc(3, 256)
    vv = V2(4); vw = V2(2); vt = V2(8, 2)
    fv = [V2(4, 4), V2(4, 4)]
    fw = [[V2(4, 4) for _ in range(2)] for _ in range(2)]
    acc = [V2(16, 4) for _ in range(2)]
    tp = V2(4, 4); vst = V2(1)
    r_frag_addrs(a, vv, vt, v_lane, s_wave, s_t0, V_OFF)
    t64_frag_addrs(a, vw, vt, v_lane, W_OFF)
    ring = Ring(a, S, STAGE, s_rs, s_delta, s_neg, s_pos); ring.init()
    for b in range(2):
        for i in range(16): a(f"v_mov_b32 v{acc[b]+i}, 0")
    def reads(step, st):
        r = [f"ds_read_b128 v[{fv[st]}:{fv[st]+3}], v{vv+step}"]
        for b in range(2): r += tr2(fw[st][b], vw + b, 16*step*128, 128)
        return r
    def mfmas(st, s, par):
        return [f"v_mfma_f32_32x32x16_bf16 v[{acc[b]}:{acc[b]+15}], v[{fw[st][b]}:{fw[st][b]+3}], v[{fv[st]}:{fv[st]+3}], v[{acc[b]}:{acc[b]+15}]" for b in range(2)]
    chunk = gemm_mainloop(a, NC, ring, [vv+i for i in range(4)] + [vw, vw+1], reads, mfmas, [3, 5], s_cnt, "V", per=5,
                          first_hook=lambda: stamp(a, 2))
    a(f"s_mov_b32 s{s_cnt}, {NC-1}")
    a.label("P2_V_loop")
    chunk(False, 0)
    a(f"s_sub_u32 s{s_cnt}, s{s_cnt}, 1")
    a(f"s_cmp_lg_u32 s{s_cnt}, 0")
    a("s_cbranch_scc1 P2_V_loop")
    chunk(True, 0)
    stamp(a, 3)
    a(f"""
    v_and_b32 v{vt}, 31, v{v_lane}
    s_lshl_b32 s{s_t0}, s{s_wave}, 5
    v_add_u32 v{vt}, s{s_t0}, v{vt}
    v_mul_u32_u24 v{vst}, 144, v{vt}
    v_lshrrev_b32 v{vt+1}, 5, v{v_lane}
    v_lshl_add_u32 v{vst}, v{vt+1}, 3, v{vst}
    s_barrier
    """)
    for b in range(2):
        for r in range(4):
            x = acc[b] + 4*r
            a(f"v_cvt_pk_bf16_f32 v{tp+2*(r&1)}, v{x}, v{x+1}")
            a(f"v_cvt_pk_bf16_f32 v{tp+2*(r&1)+1}, v{x+2}, v{x+3}")
            a(f"ds_write_b64 v{vst}, v[{tp+2*(r&1)}:{tp+2*(r&1)+1}] offset:{(32*b + 8*r)*2}")
    a("s_waitcnt lgkmcnt(0)")
    a("s_barrier")
    a("s_branch P2_V_STORE")
    a.label("P2_V_LOADER")
    vo, vo2, vt_l = 3, 4, 8
    a(f"s_sub_u32 s{s_wave}, s{s_wave}, 4")
    r_loader_voff(a, vo, vt_l, v_lane, s_wave, s_t0, 3072)
    t64_loader_voff(a, vo2, vt_l, v_lane, 1024)
    a(f"""
    s_lshl_b32 s{s_b0}, s{s_i0}, 7
    s_lshl_b32 s{s_t0}, s{s_wave}, 3
    s_add_u32 s{s_b0}, s{s_b0}, s{s_t0}
    s_mul_i32 s{s_b0}, s{s_b0}, 3072
    s_add_u32 s{s_b0}, s{s_b0}, 2048               ; v columns
    s_lshl_b32 s{s_b1}, s{s_wave}, 14              ; 16 rows * 1024
    s_lshl_b32 s{s_t0}, s{s_i1}, 7
    s_add_u32 s{s_b1}, s{s_b1}, s{s_t0}
    s_lshl_b32 s{s_l0}, s{s_wave}, 10
    s_lshl_b32 s{s_l1}, s{s_wave}, 11
    s_add_u32 s{s_l1}, s{s_l1}, {W_OFF}
    """)
    streams = [
        Stream(sA, [vo]*4, [i*32*3072 for i in range(4)], [V_OFF + i*4096 for i in range(4)], s_b0, 128, s_l0),
        Stream(sB, [vo2]*2, [0, 8*1024], [0, 1024], s_b1, 64*1024, s_l1),
    ]
    stamp(a, 2)
    loader_loop(a, streams, NC, S, STAGE, s_kc, s_slot, s_cnt, s_t0, s_t1, s_t2)
    stamp(a, 3)
    a("s_barrier")
    a("s_barrier")
    a.label("P2_V_STORE")
    a(f"""
    s_lshl_b32 s{s_t1}, s{s_i0}, 17              ; rt*128*1024
    s_lshl_b32 s{s_t2}, s{s_i1}, 7               ; ct*128
    s_add_u32 s{s_t1}, s{s_t1}, s{s_t2}
    """)
    for i in range(2):
        a(f"""
        v_add_u32 v3, {512*i}, v0
        v_lshrrev_b32 v4, 3, v3
        v_and_b32 v5, 7, v3
        v_lshlrev_b32 v5, 4, v5
        v_mul_u32_u24 v6, 144, v4
        v_add_u32 v6, v6, v5
        ds_read_b128 v[{8+4*i}:{8+4*i+3}], v6
        v_lshl_add_u32 v{40+i}, v4, 10, v5
        """)
    a("s_waitcnt lgkmcnt(0)")
    for i in range(2):
        a(f"buffer_store_dwordx4 v[{8+4*i}:{8+4*i+3}], v{40+i}, s[{sO1}:{sO1+3}], s{s_t1} offen")
    stamp(a, 4)
    s_c0, s_t0g, s_flat = s_i0, s_i1, s_b0
    a(f"""
    s_barrier
    s_mov_b32 s{s_wave}, s58
    s_lshl_b32 s{s_t0}, s{s_xcd}, 4
    s_add_u32 s{s_t0}, s{s_t0}, s{s_idx}           ; task
    s_lshr_b32 s{s_c0}, s{s_t0}, 3
    s_lshl_b32 s{s_c0}, s{s_c0}, 5                 ; c0
    s_and_b32 s{s_t0}, s{s_t0}, 7                  ; tg
    s_lshr_b32 s{s_b}, s{s_t0}, 2
    s_and_b32 s{s_t0g}, s{s_t0}, 3
    s_lshl_b32 s{s_t0g}, s{s_t0g}, 8               ; t0
    s_mul_i32 s{s_flat}, s{s_b}, 1000
    s_add_u32 s{s_flat}, s{s_flat}, s{s_t0g}
    """)
    srd(a, sG, 4, 5, 8*2*2048*4, WS_GST)
    srd(a, sU, 4, 5, 1024*4096, WS_UG)
    srd(a, sO2, 4, 5, 512*4096, WS_ZT)
    srd(a, sB, 32, 33, 31*1024)
    sM = 98
    a(f"""
    v_add_u32 v3, s{s_t0g}, v0
    v_subrev_u32 v3, 16, v3                        ; t = t0 - 16 + tid
    v_cmp_gt_u32 vcc, 1000, v3
    """)
    a(f"""
    s_mov_b64 s[{sM}:{sM+1}], vcc
    v_add_u32 v4, s{s_flat}, v0
    v_subrev_u32 v4, 16, v4
    v_lshlrev_b32 v4, 2, v4
    v_cndmask_b32 v4, -1, v4, vcc
    """)
    for p in range(8):
        for st in range(2):
            a(f"s_mov_b32 s{s_t0}, {p*16384 + st*8192}")
            a(f"buffer_load_dword v{8+2*p+st}, v4, s[{sG}:{sG+3}], s{s_t0} offen")
    a(f"""
    s_add_u32 s{s_t1}, s{s_c0}, 512
    s_lshl_b32 s{s_t1}, s{s_t1}, 12
    s_lshl_b32 s{s_t2}, s{s_flat}, 1
    s_add_u32 s{s_t1}, s{s_t1}, s{s_t2}
    s_sub_u32 s{s_t1}, s{s_t1}, 32                 ; origin t0-16
    """)
    for j in range(3):
        a(f"""
        v_add_u32 v5, {512*j}, v0
        v_mul_u32_u24 v6, 58255, v5
        v_lshrrev_b32 v6, 21, v6                   ; row = g/36
        v_mul_u32_u24 v7, 36, v6
        v_sub_u32 v7, v5, v7                       ; slot
        v_lshlrev_b32 v7, 4, v7
        v_lshl_add_u32 v{44+j}, v6, 12, v7
        v_mul_u32_u24 v6, {Z_PG}, v6
        v_add_u32 v{48+j}, v6, v7
        v_lshlrev_b32 v{52+j}, 1, v7
        v_cmp_gt_u32 vcc, 1152, v5
        v_cndmask_b32 v{44+j}, -1, v{44+j}, vcc
        buffer_load_dwordx4 v[{28+4*j}:{28+4*j+3}], v{44+j}, s[{sU}:{sU+3}], s{s_t1} offen
        """)
    a(f"s_lshl_b32 s{s_t2}, s{s_c0}, 1")
    build_filter_table(a, sB, s_t2, 32, 1024, Z_WP, 56, s_t0)
    a(f"""
    v_add_f32 v8, v8, v10
    v_add_f32 v9, v9, v11
    v_add_f32 v12, v12, v14
    v_add_f32 v13, v13, v15
    v_add_f32 v16, v16, v18
    v_add_f32 v17, v17, v19
    v_add_f32 v20, v20, v22
    v_add_f32 v21, v21, v23
    v_add_f32 v8, v8, v12
    v_add_f32 v9, v9, v13
    v_add_f32 v16, v16, v20
    v_add_f32 v17, v17, v21
    v_add_f32 v8, v8, v16
    v_add_f32 v9, v9, v17
    v_mul_f32 v8, 0x3b000000, v8
    v_mul_f32 v9, 0x3b000000, v9
    v_fma_f32 v9, -v8, v8, v9
    v_max_f32 v9, 0, v9
    v_add_f32 v9, 0x3727c5ac, v9
    v_rsq_f32 v9, v9
    s_nop 0
    v_cndmask_b32 v9, 0, v9, s[{sM}:{sM+1}]
    v_mul_f32 v8, -1.0, v8
    v_mul_f32 v8, v8, v9
    v_lshlrev_b32 v10, 2, v0
    v_cmp_gt_u32 vcc, 288, v0
    s_and_saveexec_b64 s[54:55], vcc
    ds_write_b32 v10, v9 offset:{Z_RS}
    ds_write_b32 v10, v8 offset:{Z_NM}
    s_mov_b64 exec, s[54:55]
    v_lshrrev_b32 v10, 1, v0
    v_mul_u32_u24 v10, {Z_PG}, v10
    v_and_b32 v11, 1, v0
    v_lshl_add_u32 v10, v11, 4, v10
    v_mov_b32 v12, 0
    v_mov_b32 v13, 0
    v_mov_b32 v14, 0
    v_mov_b32 v15, 0
    v_cmp_gt_u32 vcc, 64, v0
    s_and_saveexec_b64 s[54:55], vcc
    ds_write_b128 v10, v[12:15] offset:{Z_GN + 576}
    s_mov_b64 exec, s[54:55]
    s_waitcnt lgkmcnt(0)
    s_barrier
    """)
    for j in range(3):
        L = a.newlabel("P2_zn")
        a(f"""
        v_add_u32 v5, {512*j}, v0
        v_cmp_gt_u32 vcc, 1152, v5
        s_and_saveexec_b64 s[54:55], vcc
        s_cbranch_execz {L}
        ds_read_b128 v[8:11], v{52+j} offset:{Z_RS}
        ds_read_b128 v[12:15], v{52+j} offset:{Z_RS+16}
        ds_read_b128 v[16:19], v{52+j} offset:{Z_NM}
        ds_read_b128 v[20:23], v{52+j} offset:{Z_NM+16}
        s_waitcnt lgkmcnt(0)
        """)
        d = 28 + 4*j
        for i in range(4):
            a(f"v_lshlrev_b32 v24, 16, v{d+i}")
            a(f"v_and_b32 v25, 0xffff0000, v{d+i}")
            a(f"v_fma_f32 v24, v24, v{8+2*i}, v{16+2*i}")
            a(f"v_fma_f32 v25, v25, v{9+2*i}, v{17+2*i}")
            a(f"v_cvt_pk_bf16_f32 v{d+i}, v24, v25")
        a(f"ds_write_b128 v{48+j}, v[{d}:{d+3}] offset:{Z_GN}")
        a.label(L)
        a("s_mov_b64 exec, s[54:55]")
    a("s_waitcnt lgkmcnt(0)")
    a("s_barrier")
    vT, vB, vG = 8, 9, 10
    conv_T_addr(a, vT, 12, v_lane, Z_WP)
    a(f"""
    s_mul_i32 s{s_t0}, s{s_wave}, {4*160}
    v_add_u32 v{vT}, s{s_t0}, v{vT}
    v_and_b32 v12, 15, v{v_lane}
    v_lshlrev_b32 v12, 5, v12                      ; 16*b*2
    v_lshrrev_b32 v13, 4, v{v_lane}                ; g
    v_lshl_add_u32 v{vB}, v13, 4, v12               ; + 8g*2
    s_mul_i32 s{s_t0}, s{s_wave}, {4*Z_PG}
    s_add_u32 s{s_t0}, s{s_t0}, {Z_GN}
    v_add_u32 v{vB}, s{s_t0}, v{vB}
    v_lshl_add_u32 v{vG}, v13, 3, v12               ; (16b + 4g)*2 bytes
    v_lshrrev_b32 v14, 1, v{vG}                     ; 16b+4g
    v_add_u32 v14, s{s_t0g}, v14                    ; t
    v_cmp_gt_u32 vcc, 1000, v14
    v_cndmask_b32 v11, -1, v{vG}, vcc
    s_lshl_b32 s{s_t0}, s{s_wave}, 2
    s_add_u32 s{s_t0}, s{s_t0}, s{s_c0}
    s_lshl_b32 s{s_t0}, s{s_t0}, 12
    s_lshl_b32 s{s_t1}, s{s_flat}, 1
    s_add_u32 s{s_t0}, s{s_t0}, s{s_t1}
    """)
    for c in range(4):
        a(f"s_add_u32 s{s_t1}, s{s_t0}, {c*4096}")
        a(f"buffer_load_dwordx2 v[{16+2*c}:{16+2*c+1}], v{vG}, s[{sU}:{sU+3}], s{s_t1} offen")
    for c in range(4):
        base = 24 + 16*c
        for s in range(2):
            a(f"ds_read_b128 v[{base+8*s}:{base+8*s+3}], v{vT} offset:{c*160 + 64*s}")
            a(f"ds_read_b128 v[{base+8*s+4}:{base+8*s+7}], v{vB} offset:{c*Z_PG + 64*s}")
    a("s_waitcnt lgkmcnt(0)")
    D = 88
    for c in range(4):
        base = 24 + 16*c
        a(f"v_mfma_f32_16x16x32_bf16 v[{D+4*c}:{D+4*c+3}], v[{base}:{base+3}], v[{base+4}:{base+7}], 0")
    for c in range(4):
        base = 24 + 16*c
        a(f"v_mfma_f32_16x16x32_bf16 v[{D+4*c}:{D+4*c+3}], v[{base+8}:{base+11}], v[{base+12}:{base+15}], v[{D+4*c}:{D+4*c+3}]")
    a("s_waitcnt vmcnt(0)")
    for c in range(4):
        u = 16 + 2*c; d = D + 4*c
        a(f"""
        v_lshlrev_b32 v104, 16, v{u}
        v_and_b32 v105, 0xffff0000, v{u}
        v_lshlrev_b32 v106, 16, v{u+1}
        v_and_b32 v107, 0xffff0000, v{u+1}
        v_mul_f32 v104, v104, v{d}
        v_mul_f32 v105, v105, v{d+1}
        v_mul_f32 v106, v106, v{d+2}
        v_mul_f32 v107, v107, v{d+3}
        v_cvt_pk_bf16_f32 v{u}, v104, v105
        v_cvt_pk_bf16_f32 v{u+1}, v106, v107
        s_add_u32 s{s_t1}, s{s_t0}, {c*4096}
        buffer_store_dwordx2 v[{u}:{u+1}], v11, s[{sO2}:{sO2+3}], s{s_t1} offen
        """)
    a.label("P2_FIN")
    if STAMPS_ON():
        a("s_waitcnt vmcnt(0)")
    stamp(a, 6)
    stamp_flush(a, 58)
    a.label(END)
    a("s_endpgm")
    return a.text(), dict(name=name, vgpr=max(V.hi, V2.hi, 112), sgpr=100, lds=LDS2, grid=256, block=512)
```

```python
from common import *
import common, struct
from p2 import conv_T_addr, build_filter_table
def STAMPS_ON(): return common.STAMPS
def f2u(x): return struct.unpack("<I", struct.pack("<f", x))[0]

LDS3 = 4096 + 4 * 24576

def prologue(a, END, ptrs, s_wave, s_xcd, s_idx, phase):
    a(f"s_cmp_ge_u32 s2, 256")
    a(f"s_cbranch_scc1 {END}")
    for reg, nm in ptrs:
        a(f"s_load_dwordx2 s[{reg}:{reg+1}], s[0:1], {KA[nm]}")
    stamp_zero(a)
    if STAMPS_ON():
        a("s_memrealtime s[64:65]")
        a("s_memtime s[66:67]")
    a(f"""
    v_lshrrev_b32 v1, 6, v0
    v_and_b32 v2, 63, v0
    v_readfirstlane_b32 s{s_wave}, v1
    s_and_b32 s{s_xcd}, s2, 7
    s_lshr_b32 s{s_idx}, s2, 3
    s_mov_b32 s58, s{s_wave}
    s_waitcnt lgkmcnt(0)
    """)

def store_T_tile(a, sO, s_rowbase, s_tbase_bytes, s_valid_gran, stg_pitch=272):
    for i in range(2):
        a(f"""
        v_add_u32 v3, {512*i}, v0
        v_lshrrev_b32 v4, 4, v3
        v_and_b32 v5, 15, v3
        v_cmp_gt_u32 vcc, s{s_valid_gran}, v5
        v_lshlrev_b32 v5, 4, v5
        v_mul_u32_u24 v6, {stg_pitch}, v4
        v_add_u32 v6, v6, v5
        ds_read_b128 v[{8+4*i}:{8+4*i+3}], v6
        v_lshl_add_u32 v{40+i}, v4, 12, v5
        v_cndmask_b32 v{40+i}, -1, v{40+i}, vcc
        """)
    a("s_waitcnt lgkmcnt(0)")
    for i in range(2):
        a(f"buffer_store_dwordx4 v[{8+4*i}:{8+4*i+3}], v{40+i}, s[{sO}:{sO+3}], s{s_rowbase} offen")

def gen_p3(name="p3_kernel"):
    a = Asm('p3_')
    END = "P3_END"
    sA, sB, sO, sS = 8, 12, 16, 20
    s_wave, s_i0, s_i1, s_kc, s_slot, s_cnt, s_t0, s_t1, s_t2 = 36, 37, 38, 39, 40, 41, 42, 43, 44
    s_b0, s_b1, s_l0, s_l1 = 45, 46, 48, 49
    s_b, s_delta, s_neg, s_pos, s_rs = 51, 52, 56, 57, 53
    s_xcd, s_idx = 47, 50
    s_kt, s_ob, s_vg = 24, 25, 26
    v_lane = 2
    RING = 4096
    prologue(a, END, [(4, 'ws'), (6, 'w_mlp_out')], s_wave, s_xcd, s_idx, 2)
    stamp_init(a, 4, 5, 2)
    srd(a, sO, 4, 5, 1024 * 4096, WS_MT)
    a(f"s_cmp_ge_u32 s{s_idx}, 16")
    a("s_cbranch_scc1 P3_LOC")
    A_OFF, B_OFF, STAGE, S, NC = 0, 16384, 24576, 4, 16
    a(f"""
    s_lshr_b32 s{s_b}, s{s_xcd}, 2
    s_and_b32 s{s_i0}, s{s_xcd}, 3
    s_lshl_b32 s{s_i0}, s{s_i0}, 1
    s_lshr_b32 s{s_t0}, s{s_idx}, 3
    s_add_u32 s{s_i0}, s{s_i0}, s{s_t0}            ; tt
    s_and_b32 s{s_i1}, s{s_idx}, 7                 ; ct
    s_lshl_b32 s{s_t0}, s{s_t0}, 2
    s_add_u32 s{s_kt}, s{s_i1}, s{s_t0}
    s_and_b32 s{s_kt}, s{s_kt}, 7
    s_lshl_b32 s{s_kc}, s{s_kt}, 1
    s_lshl_b32 s{s_t0}, s{s_b}, 21
    s_add_u32 s{s_t0}, s{s_t0}, {WS_PT}
    s_add_u32 s{sA}, s4, s{s_t0}
    s_addc_u32 s{sA+1}, s5, 0
    s_mov_b32 s{sA+2}, {1000*2048}
    s_mov_b32 s{sA+3}, 0x20000
    s_mul_i32 s{s_t0}, s{s_b}, {1000*1024}
    s_add_u32 s{s_t0}, s{s_t0}, {WS_VP}
    s_add_u32 s{sB}, s4, s{s_t0}
    s_addc_u32 s{sB+1}, s5, 0
    s_mov_b32 s{sB+2}, {1000*1024}
    s_mov_b32 s{sB+3}, 0x20000
    s_lshl_b32 s{s_ob}, s{s_i1}, 18
    s_mul_i32 s{s_t0}, s{s_b}, 1000
    s_lshl_b32 s{s_t1}, s{s_i0}, 7
    s_add_u32 s{s_t0}, s{s_t0}, s{s_t1}
    s_lshl_b32 s{s_t0}, s{s_t0}, 1
    s_add_u32 s{s_ob}, s{s_ob}, s{s_t0}
    s_sub_u32 s{s_vg}, 1000, s{s_t1}
    s_lshr_b32 s{s_vg}, s{s_vg}, 3
    s_min_u32 s{s_vg}, s{s_vg}, 16
    """)
    srd(a, sS, 4, 5, 2*8*2*1024*4, WS_SST)
    a(f"s_cmp_ge_u32 s{s_wave}, 4")
    a("s_cbranch_scc1 P3_PV_LOADER")
    V = Alloc(3, 256)
    va = V(4); vb = V(2); vt = V(8, 2)
    fa = [V(4, 4), V(4, 4)]
    fb = [[V(4, 4) for _ in range(2)] for _ in range(2)]
    tmp = [[V(16, 4) for _ in range(2)] for _ in range(2)]
    acc = [V(16, 4) for _ in range(2)]
    sc = V(16, 4)
    vsc = V(1); tp = V(4, 4); vst = V(1)
    a(f"s_cmp_ge_u32 s{s_wave}, 2")
    a("s_cbranch_scc1 P3_noscale")
    M = tmp[0][0]; Ls = tmp[0][1]
    a(f"""
    s_lshl_b32 s{s_t0}, s{s_i0}, 7
    v_add_u32 v{vt}, s{s_t0}, v0
    v_lshlrev_b32 v{vt}, 2, v{vt}
    s_lshl_b32 s{s_t1}, s{s_b}, 16                 ; b*8*2*1024*4
    """)
    for k in range(8):
        a(f"s_add_u32 s{s_t2}, s{s_t1}, {k*8192}")
        a(f"buffer_load_dword v{M+k}, v{vt}, s[{sS}:{sS+3}], s{s_t2} offen")
        a(f"s_add_u32 s{s_t2}, s{s_t1}, {k*8192 + 4096}")
        a(f"buffer_load_dword v{Ls+k}, v{vt}, s[{sS}:{sS+3}], s{s_t2} offen")
    a("s_waitcnt vmcnt(0)")
    a(f"v_max3_f32 v{vt+1}, v{M}, v{M+1}, v{M+2}")
    a(f"v_max3_f32 v{vt+1}, v{M+3}, v{M+4}, v{vt+1}")
    a(f"v_max3_f32 v{vt+1}, v{M+5}, v{M+6}, v{vt+1}")
    a(f"v_max_f32 v{vt+1}, v{M+7}, v{vt+1}")
    for k in range(8): a(f"v_sub_f32 v{M+k}, v{M+k}, v{vt+1}")
    for k in range(8): a(f"v_exp_f32 v{M+k}, v{M+k}")
    a(f"v_mul_f32 v{vt+2}, v{M}, v{Ls}")
    for k in range(1, 8): a(f"v_fma_f32 v{vt+2}, v{M+k}, v{Ls+k}, v{vt+2}")
    a(f"v_rcp_f32 v{vt+2}, v{vt+2}")
    a(f"v_lshlrev_b32 v{vt+3}, 2, v0")
    for k in range(8):
        a(f"v_mul_f32 v{M+k}, v{M+k}, v{vt+2}")
        a(f"ds_write_b32 v{vt+3}, v{M+k} offset:{k*512}")
    a("s_waitcnt lgkmcnt(0)")
    a.label("P3_noscale")
    r_frag_addrs(a, va, vt, v_lane, s_wave, s_t0, RING + A_OFF)
    t64_frag_addrs(a, vb, vt, v_lane, RING + B_OFF)
    ring = Ring(a, S, STAGE, s_rs, s_delta, s_neg, s_pos); ring.init()
    for b in range(2):
        for i in range(16): a(f"v_mov_b32 v{acc[b]+i}, 0")
    a(f"""
    v_lshrrev_b32 v{vsc}, 5, v{v_lane}
    v_lshlrev_b32 v{vsc}, 4, v{vsc}
    s_lshl_b32 s{s_t0}, s{s_wave}, 7
    v_add_u32 v{vsc}, s{s_t0}, v{vsc}
    """)
    def reads(step, st):
        r = [f"ds_read_b128 v[{fa[st]}:{fa[st]+3}], v{va+step}"]
        for b in range(2): r += tr2(fb[st][b], vb + b, 16*step*128, 128)
        return r
    state = {"first": True}
    def mk_mfmas(par, first_chunk):
        def mfmas(st, s, _):
            out = []
            for b in range(2):
                c = "0" if (first_chunk and s == 0) else f"v[{tmp[par][b]}:{tmp[par][b]+15}]"
                out.append(f"v_mfma_f32_32x32x16_bf16 v[{tmp[par][b]}:{tmp[par][b]+15}], v[{fa[st]}:{fa[st]+3}], v[{fb[st][b]}:{fb[st][b]+3}], {c}")
            return out
        return mfmas
    nr = 5
    regs = [va+i for i in range(4)] + [vb, vb+1]
    def chunk(last, par, first_chunk, fold):
        mf = mk_mfmas(par, first_chunk)
        fl = list(fold)
        for s in range(4):
            st = s & 1
            if s == 3 and not last:
                a("s_waitcnt lgkmcnt(0)")
                a("s_barrier")
                ring.bump(regs)
            nxt = [] if (s == 3 and last) else reads((s + 1) & 3, st ^ 1)
            n = (len(fl) + (3 - s)) // (4 - s) if fl else 0
            cur, fl = fl[:n], fl[n:]
            ex = {0: cur[:len(cur)//2], 1: cur[len(cur)//2:]} if cur else None
            counted_step(a, mf(st, s, 0), [3, 5], nxt, nr, per=5, extra=ex)
    def sc_reads():
        a(f"s_lshl_b32 s{s_t0}, s{s_kt}, 9")
        a(f"v_add_u32 v{vt}, s{s_t0}, v{vsc}")
        for r in range(4):
            a(f"ds_read_b128 v[{sc+4*r}:{sc+4*r+3}], v{vt} offset:{32*r}")
        a(f"s_add_u32 s{s_kt}, s{s_kt}, 1")
        a(f"s_and_b32 s{s_kt}, s{s_kt}, 7")
    def fold(par):
        return [f"v_fma_f32 v{acc[b]+i}, v{tmp[par][b]+i}, v{sc+i}, v{acc[b]+i}" for b in range(2) for i in range(16)]
    a("s_barrier")
    stamp(a, 2)
    for x in reads(0, 0): a(x)
    chunk(False, 0, True, [])
    chunk(False, 0, False, [])
    def tile(par, last):
        sc_reads()
        a("s_waitcnt lgkmcnt(0)")
        chunk(False, par, True, fold(par ^ 1))
        chunk(last, par, False, [])
    a(f"s_mov_b32 s{s_cnt}, 3")
    a.label("P3_PV_loop")
    tile(1, False)
    tile(0, False)
    a(f"s_sub_u32 s{s_cnt}, s{s_cnt}, 1")
    a(f"s_cmp_lg_u32 s{s_cnt}, 0")
    a("s_cbranch_scc1 P3_PV_loop")
    tile(1, True)
    sc_reads()
    a("s_waitcnt lgkmcnt(0)")
    for x in fold(1): a(x)
    stamp(a, 3)
    def t_epilogue(acc):
        a(f"""
        v_and_b32 v{vt}, 31, v{v_lane}
        v_mul_u32_u24 v{vst}, 272, v{vt}
        s_lshl_b32 s{s_t0}, s{s_wave}, 6
        v_add_u32 v{vst}, s{s_t0}, v{vst}
        v_lshrrev_b32 v{vt+1}, 5, v{v_lane}
        v_lshl_add_u32 v{vst}, v{vt+1}, 3, v{vst}
        s_barrier
        """)
        for b in range(2):
            for r in range(4):
                x = acc[b] + 4*r
                a(f"v_cvt_pk_bf16_f32 v{tp+2*(r&1)}, v{x}, v{x+1}")
                a(f"v_cvt_pk_bf16_f32 v{tp+2*(r&1)+1}, v{x+2}, v{x+3}")
                a(f"ds_write_b64 v{vst}, v[{tp+2*(r&1)}:{tp+2*(r&1)+1}] offset:{32*b*272 + 8*r*2}")
        a("s_waitcnt lgkmcnt(0)")
        a("s_barrier")
    t_epilogue(acc)
    a("s_branch P3_STORE")
    a.label("P3_PV_LOADER")
    vo, vo2, vt_l = 3, 4, 8
    a(f"s_sub_u32 s{s_wave}, s{s_wave}, 4")
    r_loader_voff(a, vo, vt_l, v_lane, s_wave, s_t0, 2048)
    t64_loader_voff(a, vo2, vt_l, v_lane, 1024)
    a(f"""
    s_lshl_b32 s{s_b0}, s{s_i0}, 7
    s_lshl_b32 s{s_t0}, s{s_wave}, 3
    s_add_u32 s{s_b0}, s{s_b0}, s{s_t0}
    s_lshl_b32 s{s_b0}, s{s_b0}, 11                ; P rows * 2048
    s_lshl_b32 s{s_b1}, s{s_wave}, 14
    s_lshl_b32 s{s_t0}, s{s_i1}, 7
    s_add_u32 s{s_b1}, s{s_b1}, s{s_t0}
    s_lshl_b32 s{s_l0}, s{s_wave}, 10
    s_lshl_b32 s{s_l1}, s{s_wave}, 11
    s_add_u32 s{s_l1}, s{s_l1}, {B_OFF}
    """)
    streams = [
        Stream(sA, [vo]*4, [i*32*2048 for i in range(4)], [A_OFF + i*4096 for i in range(4)], s_b0, 128, s_l0),
        Stream(sB, [vo2]*2, [0, 8*1024], [0, 1024], s_b1, 64*1024, s_l1),
    ]
    stamp(a, 2)
    loader_loop(a, streams, NC, S, STAGE, s_kc, s_slot, s_cnt, s_t0, s_t1, s_t2, lds_base=RING)
    stamp(a, 3)
    a("s_barrier")
    a("s_barrier")
    a("s_branch P3_STORE")

    a.label("P3_LOC")
    A_OFF, B_OFF, STAGE, S, NC = 0, 16384, 24576, 4, 8
    a(f"""
    s_sub_u32 s{s_idx}, s{s_idx}, 16
    s_lshr_b32 s{s_t0}, s{s_idx}, 3
    s_lshl_b32 s{s_i0}, s{s_xcd}, 1
    s_add_u32 s{s_i0}, s{s_i0}, s{s_t0}
    s_and_b32 s{s_i1}, s{s_idx}, 7                 ; ct
    s_lshl_b32 s{s_t0}, s{s_t0}, 2
    s_add_u32 s{s_kc}, s{s_i1}, s{s_t0}
    s_and_b32 s{s_kc}, s{s_kc}, 7
    s_add_u32 s{s_ob}, s{s_i1}, 8
    s_lshl_b32 s{s_ob}, s{s_ob}, 18
    s_lshl_b32 s{s_t1}, s{s_i0}, 7
    s_lshl_b32 s{s_t0}, s{s_t1}, 1
    s_add_u32 s{s_ob}, s{s_ob}, s{s_t0}
    s_sub_u32 s{s_vg}, 2000, s{s_t1}
    s_lshr_b32 s{s_vg}, s{s_vg}, 3
    s_min_u32 s{s_vg}, s{s_vg}, 16
    """)
    srd(a, sA, 4, 5, 512 * 4096, WS_ZT)
    srd(a, sB, 6, 7, 512 * 1024)
    a(f"s_cmp_ge_u32 s{s_wave}, 4")
    a("s_cbranch_scc1 P3_LOC_LOADER")
    V2 = Alloc(3, 256)
    va = V2(1); vb = V2(2); vt = V2(8, 2)
    fa = [V2(4, 4), V2(4, 4)]
    fb = [[V2(4, 4) for _ in range(2)] for _ in range(2)]
    acc2 = [V2(16, 4) for _ in range(2)]
    tp = V2(4, 4); vst = V2(1)
    t128_frag_addr_blk(a, va, vt, v_lane, RING + A_OFF, s_wave)
    t64_frag_addrs(a, vb, vt, v_lane, RING + B_OFF)
    ring = Ring(a, S, STAGE, s_rs, s_delta, s_neg, s_pos); ring.init()
    for b in range(2):
        for i in range(16): a(f"v_mov_b32 v{acc2[b]+i}, 0")
    def reads2(step, st):
        r = tr2(fa[st], va, 16*step*256, 256)
        for b in range(2): r += tr2(fb[st][b], vb + b, 16*step*128, 128)
        return r
    def mfmas2(st, s, par):
        return [f"v_mfma_f32_32x32x16_bf16 v[{acc2[b]}:{acc2[b]+15}], v[{fa[st]}:{fa[st]+3}], v[{fb[st][b]}:{fb[st][b]+3}], v[{acc2[b]}:{acc2[b]+15}]" for b in range(2)]
    chunk2 = gemm_mainloop(a, NC, ring, [va, vb, vb+1], reads2, mfmas2, [4, 6], s_cnt, "L", per=6,
                           first_hook=lambda: stamp(a, 2))
    a(f"s_mov_b32 s{s_cnt}, {NC-1}")
    a.label("P3_LOC_loop")
    chunk2(False, 0)
    a(f"s_sub_u32 s{s_cnt}, s{s_cnt}, 1")
    a(f"s_cmp_lg_u32 s{s_cnt}, 0")
    a("s_cbranch_scc1 P3_LOC_loop")
    chunk2(True, 0)
    stamp(a, 3)
    t_epilogue(acc2)
    a("s_branch P3_STORE")
    a.label("P3_LOC_LOADER")
    a(f"s_sub_u32 s{s_wave}, s{s_wave}, 4")
    t128_loader_voff(a, vo, vt_l, v_lane, 4096)
    t64_loader_voff(a, vo2, vt_l, v_lane, 1024)
    a(f"""
    s_lshl_b32 s{s_b0}, s{s_wave}, 16              ; 16 rows * 4096
    s_lshl_b32 s{s_t0}, s{s_i0}, 8                 ; 128 tokens * 2 B
    s_add_u32 s{s_b0}, s{s_b0}, s{s_t0}
    s_lshl_b32 s{s_b1}, s{s_wave}, 14
    s_lshl_b32 s{s_t0}, s{s_i1}, 7
    s_add_u32 s{s_b1}, s{s_b1}, s{s_t0}
    s_lshl_b32 s{s_l0}, s{s_wave}, 12              ; 16 rows * 256 B
    s_lshl_b32 s{s_l1}, s{s_wave}, 11
    s_add_u32 s{s_l1}, s{s_l1}, {B_OFF}
    """)
    streams = [
        Stream(sA, [vo]*4, [i*4*4096 for i in range(4)], [A_OFF + i*1024 for i in range(4)], s_b0, 64*4096, s_l0),
        Stream(sB, [vo2]*2, [0, 8*1024], [0, 1024], s_b1, 64*1024, s_l1),
    ]
    stamp(a, 2)
    loader_loop(a, streams, NC, S, STAGE, s_kc, s_slot, s_cnt, s_t0, s_t1, s_t2, lds_base=RING)
    stamp(a, 3)
    a("s_barrier")
    a("s_barrier")
    a.label("P3_STORE")
    store_T_tile(a, sO, s_ob, None, s_vg)
    if STAMPS_ON():
        a("s_waitcnt vmcnt(0)")
    stamp(a, 6)
    stamp_flush(a, 58)
    a.label(END)
    a("s_endpgm")
    return a.text(), dict(name=name, vgpr=max(V.hi, V2.hi, 64), sgpr=100, lds=LDS3, grid=256, block=512)


def gen_p3b(name="p3b_kernel"):
    a = Asm('p3b_')
    END = "P3B_END"
    sM, sO, sD = 8, 12, 16
    s_wave, s_xcd, s_idx, s_t0, s_t1, s_t2, s_c, s_b = 36, 37, 38, 42, 43, 44, 45, 46
    v_lane = 2
    prologue(a, END, [(4, 'ws'), (6, 'dw_merge')], s_wave, s_xcd, s_idx, 3)
    stamp_init(a, 4, 5, 3)
    srd(a, sM, 4, 5, 1024 * 4096, WS_MT)
    srd(a, sO, 4, 5, 1024 * 4096, WS_MPT)
    srd(a, sD, 6, 7, 31 * 2048)
    WP = 0
    a(f"""
    s_lshl_b32 s{s_c}, s2, 2                        ; c0 = 4*wg
    s_lshr_b32 s{s_b}, s{s_wave}, 2
    s_and_b32 s{s_t0}, s{s_wave}, 3
    s_add_u32 s{s_t1}, s{s_c}, s{s_t0}              ; channel
    s_lshl_b32 s{s_t1}, s{s_t1}, 12
    s_mul_i32 s{s_t2}, s{s_b}, 2000
    s_add_u32 s47, s{s_t1}, s{s_t2}
    """)
    vB, vG = 3, 4
    a(f"""
    v_and_b32 v5, 15, v{v_lane}
    v_lshrrev_b32 v6, 4, v{v_lane}                  ; g
    v_lshlrev_b32 v7, 4, v5                         ; 16 b
    v_lshl_add_u32 v{vB}, v6, 3, v7
    v_lshl_add_u32 v{vG}, v6, 2, v7                  ; 16b + 4g
    """)
    F = 24
    R = 56
    O = 64
    for grp in range(4):
        for s in range(2):
            a(f"""
            v_add_u32 v8, {256*grp - 16 + 32*s + 4096}, v{vB}
            v_subrev_u32 v8, 4096, v8
            v_cmp_gt_u32 vcc, 1000, v8
            v_lshlrev_b32 v8, 1, v8
            v_cndmask_b32 v8, -1, v8, vcc
            buffer_load_dwordx4 v[{F+8*grp+4*s}:{F+8*grp+4*s+3}], v8, s[{sM}:{sM+3}], s47 offen
            """)
        a(f"""
        v_add_u32 v8, {256*grp}, v{vG}
        v_cmp_gt_u32 vcc, 1000, v8
        v_lshlrev_b32 v8, 1, v8
        v_cndmask_b32 v{O+grp}, -1, v8, vcc
        buffer_load_dwordx2 v[{R+2*grp}:{R+2*grp+1}], v{O+grp}, s[{sM}:{sM+3}], s47 offen
        """)
    a(f"s_lshl_b32 s{s_t2}, s{s_c}, 1")
    build_filter_table(a, sD, s_t2, 4, 2048, WP, 72, s_t0)
    a("s_waitcnt lgkmcnt(0)")
    a("s_barrier")
    vT = 9
    conv_T_addr(a, vT, 10, v_lane, WP)
    a(f"""
    s_and_b32 s{s_t0}, s{s_wave}, 3
    s_mul_i32 s{s_t0}, s{s_t0}, 160
    v_add_u32 v{vT}, s{s_t0}, v{vT}
    ds_read_b128 v[12:15], v{vT}
    ds_read_b128 v[16:19], v{vT} offset:64
    """)
    D = 88
    for grp in range(4):
        r = R + 2*grp; d = D + 4*grp
        a(f"""
        v_lshlrev_b32 v{d}, 16, v{r}
        v_and_b32 v{d+1}, 0xffff0000, v{r}
        v_lshlrev_b32 v{d+2}, 16, v{r+1}
        v_and_b32 v{d+3}, 0xffff0000, v{r+1}
        """)
    a("s_waitcnt lgkmcnt(0)")
    for s in range(2):
        for grp in range(4):
            d = D + 4*grp
            a(f"v_mfma_f32_16x16x32_bf16 v[{d}:{d+3}], v[{12+4*s}:{12+4*s+3}], v[{F+8*grp+4*s}:{F+8*grp+4*s+3}], v[{d}:{d+3}]")
    for grp in range(4):
        d = D + 4*grp; r = R + 2*grp
        a(f"v_cvt_pk_bf16_f32 v{r}, v{d}, v{d+1}")
        a(f"v_cvt_pk_bf16_f32 v{r+1}, v{d+2}, v{d+3}")
        a(f"buffer_store_dwordx2 v[{r}:{r+1}], v{O+grp}, s[{sO}:{sO+3}], s47 offen")
    if STAMPS_ON():
        a("s_waitcnt vmcnt(0)")
    stamp(a, 6)
    stamp_flush(a, 58)
    a.label(END)
    a("s_endpgm")
    return a.text(), dict(name=name, vgpr=108, sgpr=100, lds=1024, grid=256, block=512)


def gen_p4(name="p4_kernel"):
    a = Asm('p4_')
    END = "P4_END"
    sA, sB, sO, sX = 8, 12, 16, 20
    s_wave, s_i0, s_i1, s_kc, s_slot, s_cnt, s_t0, s_t1, s_t2 = 36, 37, 38, 39, 40, 41, 42, 43, 44
    s_b0, s_b1, s_l0, s_l1 = 45, 46, 48, 49
    s_delta, s_neg, s_pos, s_rs = 52, 56, 57, 53
    s_xcd, s_idx, s_wn, s_wt = 47, 50, 24, 25
    v_lane = 2
    A_OFF, B_OFF, STAGE, S, NC = 0, 8192, 16384, 6, 16
    prologue(a, END, [(4, 'ws'), (6, 'w_merge'), (32, 'x'), (34, 'out')], s_wave, s_xcd, s_idx, 4)
    stamp_init(a, 4, 5, 4)
    a(f"""
    s_lshr_b32 s{s_t0}, s{s_idx}, 3
    s_lshl_b32 s{s_i0}, s{s_xcd}, 2
    s_add_u32 s{s_i0}, s{s_i0}, s{s_t0}
    s_and_b32 s{s_i1}, s{s_idx}, 7                 ; nt
    s_lshl_b32 s{s_t0}, s{s_t0}, 2
    s_lshl_b32 s{s_kc}, s{s_i1}, 1
    s_add_u32 s{s_kc}, s{s_kc}, s{s_t0}
    s_and_b32 s{s_kc}, s{s_kc}, 15
    """)
    srd(a, sA, 6, 7, 1024 * 1024)
    srd(a, sB, 4, 5, 1024 * 4096, WS_MPT)
    srd(a, sO, 34, 35, 2000 * 1024)
    srd(a, sX, 32, 33, 2000 * 1024)
    a(f"""
    v_lshrrev_b32 v4, 3, v0
    v_and_b32 v5, 7, v0
    v_lshlrev_b32 v5, 4, v5
    v_lshl_add_u32 v60, v4, 10, v5
    s_lshl_b32 s{s_t1}, s{s_i0}, 16              ; tt*64*1024
    s_lshl_b32 s{s_t2}, s{s_i1}, 7
    s_add_u32 s26, s{s_t1}, s{s_t2}
    """)
    a(f"s_cmp_ge_u32 s{s_wave}, 4")
    a("s_cbranch_scc1 P4_LOADER")
    V = Alloc(3, 56)
    va = V(1); vb = V(1); vt = V(8, 2)
    fa = [V(4, 4), V(4, 4)]
    fb = [V(4, 4), V(4, 4)]
    acc = V(16, 4)
    vst = V(1)
    a(f"s_and_b32 s{s_wn}, s{s_wave}, 1")
    a(f"s_lshr_b32 s{s_wt}, s{s_wave}, 1")
    t64_frag_addr_blk(a, va, vt, v_lane, A_OFF, s_wn, s_t0)
    t64_frag_addr_blk(a, vb, vt, v_lane, B_OFF, s_wt, s_t0)
    ring = Ring(a, S, STAGE, s_rs, s_delta, s_neg, s_pos); ring.init()
    for i in range(16): a(f"v_mov_b32 v{acc+i}, 0")
    def reads(step, st):
        return tr2(fa[st], va, 16*step*128, 128) + tr2(fb[st], vb, 16*step*128, 128)
    def mfmas(st, s, par):
        return [f"v_mfma_f32_32x32x16_bf16 v[{acc}:{acc+15}], v[{fa[st]}:{fa[st]+3}], v[{fb[st]}:{fb[st]+3}], v[{acc}:{acc+15}]"]
    chunk = gemm_mainloop(a, NC, ring, [va, vb], reads, mfmas, [4], s_cnt, "M", per=4,
                          first_hook=lambda: stamp(a, 2))
    a(f"s_mov_b32 s{s_cnt}, {NC-1}")
    a.label("P4_loop")
    chunk(False, 0)
    a(f"s_sub_u32 s{s_cnt}, s{s_cnt}, 1")
    a(f"s_cmp_lg_u32 s{s_cnt}, 0")
    a("s_cbranch_scc1 P4_loop")
    chunk(True, 0)
    stamp(a, 3)
    a(f"""
    v_and_b32 v{vt}, 31, v{v_lane}
    s_lshl_b32 s{s_t0}, s{s_wt}, 5
    v_add_u32 v{vt}, s{s_t0}, v{vt}
    v_mul_u32_u24 v{vst}, 272, v{vt}
    s_lshl_b32 s{s_t0}, s{s_wn}, 7
    v_add_u32 v{vst}, s{s_t0}, v{vst}
    v_lshrrev_b32 v{vt+1}, 5, v{v_lane}
    v_lshl_add_u32 v{vst}, v{vt+1}, 4, v{vst}
    s_barrier
    """)
    for r in range(4):
        a(f"ds_write_b128 v{vst}, v[{acc+4*r}:{acc+4*r+3}] offset:{32*r}")
    a("s_waitcnt lgkmcnt(0)")
    a("s_barrier")
    a("s_branch P4_STORE")
    a.label("P4_LOADER")
    vo, vo2, vt_l = 3, 4, 8
    a(f"s_sub_u32 s{s_wave}, s{s_wave}, 4")
    t64_loader_voff(a, vo, vt_l, v_lane, 1024)
    t64_loader_voff(a, vo2, vt_l, v_lane, 4096)
    a(f"""
    s_lshl_b32 s{s_b0}, s{s_wave}, 14              ; 16 rows * 1024
    s_lshl_b32 s{s_t0}, s{s_i1}, 7
    s_add_u32 s{s_b0}, s{s_b0}, s{s_t0}
    s_lshl_b32 s{s_b1}, s{s_wave}, 16              ; 16 rows * 4096
    s_lshl_b32 s{s_t0}, s{s_i0}, 7                 ; 64 tokens * 2 B
    s_add_u32 s{s_b1}, s{s_b1}, s{s_t0}
    s_lshl_b32 s{s_l0}, s{s_wave}, 11
    s_add_u32 s{s_l1}, s{s_l0}, {B_OFF}
    """)
    streams = [
        Stream(sB, [vo2]*2, [0, 8*4096], [0, 1024], s_b1, 64*4096, s_l1),
        Stream(sA, [vo]*2, [0, 8*1024], [0, 1024], s_b0, 64*1024, s_l0),
    ]
    stamp(a, 2)
    loader_loop(a, streams, NC, S, STAGE, s_kc, s_slot, s_cnt, s_t0, s_t1, s_t2, ahead=4)
    stamp(a, 3)
    a("s_barrier")
    a("s_barrier")
    a.label("P4_STORE")
    a(f"""
    buffer_load_dwordx4 v[20:23], v60, s[{sX}:{sX+3}], s26 offen
    v_lshrrev_b32 v4, 3, v0
    v_and_b32 v5, 7, v0
    v_mul_u32_u24 v6, 272, v4
    v_lshl_add_u32 v6, v5, 5, v6
    ds_read_b128 v[8:11], v6
    ds_read_b128 v[12:15], v6 offset:16
    s_waitcnt vmcnt(0) lgkmcnt(0)
    """)
    for i in range(4):
        a(f"""
        v_lshlrev_b32 v24, 16, v{20+i}
        v_and_b32 v25, 0xffff0000, v{20+i}
        v_add_f32 v24, v24, v{8+2*i}
        v_add_f32 v25, v25, v{9+2*i}
        v_cvt_pk_bf16_f32 v{20+i}, v24, v25
        """)
    a(f"buffer_store_dwordx4 v[20:23], v60, s[{sO}:{sO+3}], s26 offen")
    if STAMPS_ON():
        a("s_waitcnt vmcnt(0)")
    stamp(a, 6)
    stamp_flush(a, 58)
    a.label(END)
    a("s_endpgm")
    return a.text(), dict(name=name, vgpr=64, sgpr=100, lds=S*STAGE, grid=256, block=512)
```

```python
import sys
sys.path.insert(0, "gen")
from common import *
import p1, p2, p3

HEADER = open("standalone__conformer_family_e_branchformer__speech.s.ref").read().split("; Override launch")[0]

def assemble(kernels):
    s = HEADER
    for txt, k in kernels:
        s += f"; @launch kernel={k['name']} grid=({k['grid']},1,1) block=({k['block']},1,1) lds={k['lds']}\n"
    s += '.amdgcn_target "amdgcn-amd-amdhsa--gfx950"\n.text\n'
    for txt, k in kernels:
        s += f".globl {k['name']}\n.p2align 8\n.type {k['name']},@function\n{k['name']}:\n{txt}"
    s += '.section .rodata,"a"\n'
    for txt, k in kernels:
        v = (k['vgpr'] + 3) // 4 * 4
        s += ".p2align 6\n" + KD.format(name=k['name'], vgpr=v, sgpr=k['sgpr'], acc=v)
    return s

if __name__ == "__main__":
    import common
    if "--stamps" in sys.argv:
        common.STAMPS = True
        sys.argv.remove("--stamps")
    if "--cyc" in sys.argv:
        common.CYC = True
    abl = tuple(x[2:] for x in sys.argv if x.startswith('--'))
    sys.argv = [x for x in sys.argv if not x.startswith('--')]
    ks = [p1.gen_p1(abl=abl), p2.gen_p2(abl=abl), p3.gen_p3(abl=abl), p3.gen_p3b(), p3.gen_p4(abl=abl)]
    out = sys.argv[1] if len(sys.argv) > 1 else "cur.s"
    open(out, "w").write(assemble(ks))
    print("wrote", out, [ (k['name'], k['vgpr'], k['lds']) for _, k in ks])
```

```python
from asm import *

KA = dict(x=0, w_qkv=8, w_att_out=16, w_mlp_in=24, dw_csgu=32, w_mlp_out=40, dw_merge=48, w_merge=56, out=64, dbg=72, ws=80)

MB = 1 << 20
WS_QKV = 0
WS_UG  = 6 * MB
WS_GST = 10 * MB
WS_SST = 10 * MB + 256 * 1024
WS_RST = 10 * MB + 512 * 1024
WS_PT  = 11 * MB
WS_VP  = 15 * MB
WS_ZT  = 17 * MB
WS_MT  = 19 * MB
WS_MPT = 23 * MB
WS_END = 27 * MB

def srd(a, d, base_lo, base_hi, size, off=0):
    if off:
        a(f"s_add_u32 s{d}, s{base_lo}, {off}")
        a(f"s_addc_u32 s{d+1}, s{base_hi}, 0")
    else:
        a(f"s_mov_b32 s{d}, s{base_lo}")
        a(f"s_mov_b32 s{d+1}, s{base_hi}")
    a(f"s_mov_b32 s{d+2}, {size}")
    a(f"s_mov_b32 s{d+3}, 0x20000")

def interleave(a, mfmas, fillers, lead=0):
    f = list(fillers)
    for x in f[:lead]: a(x)
    f = f[lead:]
    n = len(mfmas)
    per = [len(f) // n + (1 if i < len(f) % n else 0) for i in range(n)]
    k = 0
    for i, m in enumerate(mfmas):
        a(m)
        for x in f[k:k + per[i]]: a(x)
        k += per[i]

KD = """.amdhsa_kernel {name}
  .amdhsa_next_free_vgpr {vgpr}
  .amdhsa_next_free_sgpr {sgpr}
  .amdhsa_accum_offset {acc}
  .amdhsa_group_segment_fixed_size 0
  .amdhsa_kernarg_size 88
  .amdhsa_user_sgpr_count 2
  .amdhsa_user_sgpr_kernarg_segment_ptr 1
  .amdhsa_system_sgpr_workgroup_id_x 1
.end_amdhsa_kernel
"""

class Stream:
    def __init__(self, srd, voffs, soff_imm, lds_imm, s_base, inc, s_lds):
        self.srd = srd; self.voffs = voffs; self.soff_imm = soff_imm; self.lds_imm = lds_imm
        self.s_base = s_base; self.inc = inc; self.s_lds = s_lds
    @property
    def n(self): return len(self.voffs)

def issue_chunk(a, streams, s_kc, s_slot, s_t0, s_t1, s_t2, flags=""):
    for st in streams:
        a(f"s_mul_i32 s{s_t0}, s{s_kc}, {st.inc}")
        a(f"s_add_u32 s{s_t0}, s{s_t0}, s{st.s_base}")
        a(f"s_add_u32 s{s_t1}, s{s_slot}, s{st.s_lds}")
        for v, so, lo in zip(st.voffs, st.soff_imm, st.lds_imm):
            if lo: a(f"s_add_u32 m0, s{s_t1}, {lo}")
            else:  a(f"s_mov_b32 m0, s{s_t1}")
            if so:
                a(f"s_add_u32 s{s_t2}, s{s_t0}, {so}")
                a(f"buffer_load_dwordx4 v{v}, s[{st.srd}:{st.srd+3}], s{s_t2} offen lds {flags}".rstrip())
            else:
                a(f"buffer_load_dwordx4 v{v}, s[{st.srd}:{st.srd+3}], s{s_t0} offen lds {flags}".rstrip())

def dma_list(streams, s_kc, s_slot, s_t0, s_t1, s_t2, flags=""):
    groups = []
    for st in streams:
        pre = [f"s_mul_i32 s{s_t0}, s{s_kc}, {st.inc}",
               f"s_add_u32 s{s_t0}, s{s_t0}, s{st.s_base}",
               f"s_add_u32 s{s_t1}, s{s_slot}, s{st.s_lds}"]
        for v, so, lo in zip(st.voffs, st.soff_imm, st.lds_imm):
            g = pre; pre = []
            g.append(f"s_add_u32 m0, s{s_t1}, {lo}" if lo else f"s_mov_b32 m0, s{s_t1}")
            if so:
                g.append(f"s_add_u32 s{s_t2}, s{s_t0}, {so}")
                g.append(f"buffer_load_dwordx4 v{v}, s[{st.srd}:{st.srd+3}], s{s_t2} offen lds {flags}".rstrip())
            else:
                g.append(f"buffer_load_dwordx4 v{v}, s[{st.srd}:{st.srd+3}], s{s_t0} offen lds {flags}".rstrip())
            groups.append(g)
    return groups

def loader_loop(a, streams, NC, S, stage_bytes, s_kc, s_slot, s_cnt, s_t0, s_t1, s_t2, lds_base=0,
                work=None, work_pre=None, work_post=None, ahead=2, hook=None):
    n = sum(st.n for st in streams)
    assert S >= ahead + 1 and n * ahead <= 63
    def adv():
        a(f"s_add_u32 s{s_kc}, s{s_kc}, 1")
        a(f"s_and_b32 s{s_kc}, s{s_kc}, {NC-1}")
        a(f"s_add_u32 s{s_slot}, s{s_slot}, {stage_bytes}")
        a(f"s_cmp_eq_u32 s{s_slot}, {lds_base + S*stage_bytes}")
        a(f"s_cselect_b32 s{s_slot}, {lds_base}, s{s_slot}")
    def issue(fill):
        gs = dma_list(streams, s_kc, s_slot, s_t0, s_t1, s_t2)
        per = [len(fill) // len(gs) + (1 if i < len(fill) % len(gs) else 0) for i in range(len(gs))]
        k = 0
        for g, p in zip(gs, per):
            for x in g: a(x)
            for x in fill[k:k+p]: a(x)
            k += p
        adv()
    a(f"s_mov_b32 s{s_slot}, {lds_base}")
    for i in range(ahead): issue([])
    if hook: hook()
    a(f"s_waitcnt vmcnt({n*(ahead-1)})")
    a("s_barrier")
    nst = NC - ahead
    L = a.newlabel("LD_st")
    a(f"s_mov_b32 s{s_cnt}, {nst}")
    a.label(L)
    if work_pre: work_pre()
    issue(work() if work else [])
    if work_post: work_post()
    a(f"s_waitcnt vmcnt({n*(ahead-1)})")
    a("s_barrier")
    a(f"s_sub_u32 s{s_cnt}, s{s_cnt}, 1")
    a(f"s_cmp_lg_u32 s{s_cnt}, 0")
    a(f"s_cbranch_scc1 {L}")
    for c_ in range(nst, NC):
        if work_pre: work_pre()
        if work:
            for x in work(): a(x)
        if work_post: work_post()
        if c_ < NC - 1:
            a(f"s_waitcnt vmcnt({n*(NC-2-c_)})")
            a("s_barrier")

STAMPS = False
CYC = False
ST_BASE = 64
def stamp(a, idx, s_wave=None, sD=60):
    if not STAMPS: return
    b = ST_BASE + 4 * idx
    a(f"s_memrealtime s[{b}:{b+1}]")
    a(f"s_memtime s[{b+2}:{b+3}]")
    a("s_waitcnt lgkmcnt(0)")
def stamp_flush(a, s_wave, n=8, sD=60):
    if not STAMPS: return
    L = a.newlabel("ST")
    a(f"s_and_b32 s{sD-1}, s{s_wave}, 3")
    a(f"s_cmp_lg_u32 s{sD-1}, 0")
    a(f"s_cbranch_scc1 {L}")
    a(f"s_cmp_ge_u32 s{s_wave}, 8")
    a(f"s_cbranch_scc1 {L}")
    a(f"s_lshr_b32 s{sD-1}, s{s_wave}, 2")
    a(f"s_lshl_b32 s{sD-1}, s{sD-1}, 6")
    a(f"s_lshl_b32 s{sD-2}, s2, 7")
    a(f"s_add_u32 s{sD-1}, s{sD-1}, s{sD-2}")
    a("s_mov_b64 exec, 1")
    a(f"v_mov_b32 v2, s{sD-1}")
    for i in range(n):
        b = ST_BASE + 4 * i
        a(f"v_mov_b32 v{4+2*i}, s{b}")
        a(f"v_mov_b32 v{5+2*i}, s{b+2}")
    for i in range(n):
        a(f"buffer_store_dwordx2 v[{4+2*i}:{5+2*i}], v2, s[{sD}:{sD+3}], 0 offen offset:{i*8}")
    a.label(L)
def stamp_zero(a, n=8):
    if not STAMPS: return
    for i in range(n):
        a(f"s_mov_b32 s{ST_BASE+4*i}, 0")
        a(f"s_mov_b32 s{ST_BASE+4*i+2}, 0")
def stamp_init(a, ws_lo, ws_hi, phase, sD=60):
    if not STAMPS: return
    srd(a, sD, ws_lo, ws_hi, 256*128, WS_STAMP + phase * 32768)
WS_STAMP = 32 * MB

def r_loader_voff(a, vd, vt, v_lane, s_w, s_t, pitch):
    a(f"""
    v_lshrrev_b32 v{vt}, 3, v{v_lane}
    v_lshrrev_b32 v{vt+1}, 4, v{v_lane}
    s_and_b32 s{s_t}, s{s_w}, 1
    s_lshl_b32 s{s_t}, s{s_t}, 2
    v_add_u32 v{vt+1}, s{s_t}, v{vt+1}
    v_and_b32 v{vt+2}, 7, v{v_lane}
    v_xor_b32 v{vt+2}, v{vt+2}, v{vt+1}
    v_lshlrev_b32 v{vt+2}, 4, v{vt+2}
    v_mul_u32_u24 v{vt}, {pitch}, v{vt}
    v_add_u32 v{vd}, v{vt}, v{vt+2}
    """)
def t64_loader_voff(a, vd, vt, v_lane, pitch):
    a(f"""
    v_lshrrev_b32 v{vt}, 3, v{v_lane}
    v_bfe_u32 v{vt+1}, v{v_lane}, 4, 1
    v_lshlrev_b32 v{vt+1}, 2, v{vt+1}
    v_and_b32 v{vt+2}, 7, v{v_lane}
    v_xor_b32 v{vt+2}, v{vt+2}, v{vt+1}
    v_lshlrev_b32 v{vt+2}, 4, v{vt+2}
    v_mul_u32_u24 v{vt}, {pitch}, v{vt}
    v_add_u32 v{vd}, v{vt}, v{vt+2}
    """)
def t128_loader_voff(a, vd, vt, v_lane, pitch):
    a(f"""
    v_lshrrev_b32 v{vt}, 4, v{v_lane}
    v_lshlrev_b32 v{vt+1}, 2, v{vt}
    v_and_b32 v{vt+2}, 15, v{v_lane}
    v_xor_b32 v{vt+2}, v{vt+2}, v{vt+1}
    v_lshlrev_b32 v{vt+2}, 4, v{vt+2}
    v_mul_u32_u24 v{vt}, {pitch}, v{vt}
    v_add_u32 v{vd}, v{vt}, v{vt+2}
    """)
def r_frag_addrs(a, vd, vt, v_lane, s_rowblk, s_t, base):
    a(f"""
    v_and_b32 v{vt}, 31, v{v_lane}
    v_lshrrev_b32 v{vt+1}, 5, v{v_lane}
    v_lshrrev_b32 v{vt+2}, 1, v{vt}
    v_and_b32 v{vt+2}, 7, v{vt+2}
    v_lshlrev_b32 v{vt+3}, 7, v{vt}
    """)
    if s_rowblk is not None:
        a(f"s_lshl_b32 s{s_t}, s{s_rowblk}, 12")
        a(f"v_add_u32 v{vt+3}, s{s_t}, v{vt+3}")
    if base: a(f"v_add_u32 v{vt+3}, {base}, v{vt+3}")
    for s in range(4):
        a(f"""
        v_add_u32 v{vt+4}, {2*s}, v{vt+1}
        v_xor_b32 v{vt+4}, v{vt+4}, v{vt+2}
        v_lshl_add_u32 v{vd+s}, v{vt+4}, 4, v{vt+3}
        """)
def t_frag_common(a, vt, v_lane):
    a(f"""
    v_lshrrev_b32 v{vt}, 5, v{v_lane}
    v_lshlrev_b32 v{vt}, 3, v{vt}
    v_bfe_u32 v{vt+1}, v{v_lane}, 2, 2
    v_add_u32 v{vt}, v{vt}, v{vt+1}
    v_bfe_u32 v{vt+2}, v{v_lane}, 4, 1
    v_lshlrev_b32 v{vt+2}, 5, v{vt+2}
    v_and_b32 v{vt+3}, 3, v{v_lane}
    v_lshl_add_u32 v{vt+2}, v{vt+3}, 3, v{vt+2}
    """)
def t64_frag_addrs(a, vd, vt, v_lane, base):
    t_frag_common(a, vt, v_lane)
    a(f"""
    v_lshlrev_b32 v{vt+3}, 7, v{vt}
    v_add_u32 v{vt+3}, v{vt+3}, v{vt+2}
    v_add_u32 v{vt+3}, {base}, v{vt+3}
    v_bfe_u32 v{vt+4}, v{v_lane}, 3, 1
    v_lshlrev_b32 v{vt+4}, 6, v{vt+4}
    v_add_u32 v{vd}, v{vt+3}, v{vt+4}
    v_xor_b32 v{vt+4}, 64, v{vt+4}
    v_add_u32 v{vd+1}, v{vt+3}, v{vt+4}
    """)
def t64_frag_addr_blk(a, vd, vt, v_lane, base, s_blk, s_t):
    t_frag_common(a, vt, v_lane)
    a(f"""
    v_lshlrev_b32 v{vt+3}, 7, v{vt}
    v_add_u32 v{vt+3}, v{vt+3}, v{vt+2}
    v_add_u32 v{vt+3}, {base}, v{vt+3}
    v_bfe_u32 v{vt+4}, v{v_lane}, 3, 1
    v_xor_b32 v{vt+4}, s{s_blk}, v{vt+4}
    v_lshlrev_b32 v{vt+4}, 6, v{vt+4}
    v_add_u32 v{vd}, v{vt+3}, v{vt+4}
    """)
def t128_frag_addr_blk(a, vd, vt, v_lane, base, s_blk):
    t_frag_common(a, vt, v_lane)
    a(f"""
    v_lshlrev_b32 v{vt+3}, 8, v{vt}
    v_add_u32 v{vt+3}, v{vt+3}, v{vt+2}
    v_add_u32 v{vt+3}, {base}, v{vt+3}
    v_bfe_u32 v{vt+4}, v{v_lane}, 2, 2
    v_xor_b32 v{vt+4}, s{s_blk}, v{vt+4}
    v_lshlrev_b32 v{vt+4}, 6, v{vt+4}
    v_add_u32 v{vd}, v{vt+3}, v{vt+4}
    """)
def tr2(dst, vaddr, off, pitch):
    return [f"ds_read_b64_tr_b16 v[{dst}:{dst+1}], v{vaddr} offset:{off}",
            f"ds_read_b64_tr_b16 v[{dst+2}:{dst+3}], v{vaddr} offset:{off + 4*pitch}"]

def counted_step(a, mf, need, nxt, prev_n, per=4, extra=None):
    n = len(mf)
    k = 0; issued = 0
    for i in range(n):
        cnt = (prev_n - need[i]) + issued
        a(f"s_waitcnt lgkmcnt({min(cnt, 15)})")
        a(mf[i])
        g = nxt[k:k+per] if i < n - 1 else nxt[k:]
        for x in g: a(x); issued += 1
        k += per
        if extra and i in extra:
            for x in extra[i]: a(x)

class Ring:
    def __init__(self, a, S, stage, s_rs, s_delta, s_neg, s_pos):
        self.a, self.S, self.stage = a, S, stage
        self.s_rs, self.s_delta, self.s_neg, self.s_pos = s_rs, s_delta, s_neg, s_pos
    def init(self):
        a = self.a
        a(f"s_mov_b32 s{self.s_rs}, 0")
        a(f"s_mov_b32 s{self.s_neg}, {(-(self.S-1)*self.stage) & 0xffffffff}")
        a(f"s_mov_b32 s{self.s_pos}, {self.stage}")
    def bump(self, regs):
        a = self.a
        a(f"s_add_u32 s{self.s_rs}, s{self.s_rs}, {self.stage}")
        a(f"s_cmp_eq_u32 s{self.s_rs}, {self.S*self.stage}")
        a(f"s_cselect_b32 s{self.s_delta}, s{self.s_neg}, s{self.s_pos}")
        a(f"s_cselect_b32 s{self.s_rs}, 0, s{self.s_rs}")
        for r in regs: a(f"v_add_u32 v{r}, s{self.s_delta}, v{r}")

def gemm_mainloop(a, NC, ring, addr_regs, reads, mfmas, need, s_cnt, tag, per=4, chunk_hook=None, first_hook=None):
    nr = len(reads(0, 0))
    def chunk(last, par):
        for s in range(4):
            st = s & 1
            if s == 3 and not last:
                a("s_waitcnt lgkmcnt(0)")
                a("s_barrier")
                ring.bump(addr_regs)
            nxt = [] if (s == 3 and last) else reads((s + 1) & 3, st ^ 1)
            ex = chunk_hook(s, last, par) if chunk_hook else None
            counted_step(a, mfmas(st, s, par), need, nxt, nr, per=per, extra=ex)
    a("s_barrier")
    if first_hook: first_hook()
    for x in reads(0, 0): a(x)
    return chunk

def gemm_loop2(a, NC, ring, addr_regs, reads, mfmas, need, s_cnt, tag, D=2, per=4, hook=None, first_hook=None, unroll=1, pre_loop=None):
    nsets = 2 if D == 1 else 4
    nr = len(reads(0, 0))
    def chunk(ci, last):
        for s in range(4):
            st = s % nsets
            if s == (4 - D) % 4 and not last and (D < 4 or True):
                a("s_barrier")
                ring.bump(addr_regs)
            tgt = s + D
            if last and tgt >= 4: nxt = []
            else: nxt = reads(tgt % 4, tgt % nsets)
            ex = hook(ci, s, last) if hook else None
            mf = mfmas(st, s, ci)
            n = len(mf); k = 0; issued = 0
            for i in range(n):
                later = 0
                for j in range(1, D):
                    if not (last and s + j >= 4): later += nr
                cnt = (nr - need[i]) + later + issued
                a(f"s_waitcnt lgkmcnt({min(cnt, 15)})")
                a(mf[i])
                g = nxt[k:k+per] if i < n - 1 else nxt[k:]
                for x in g: a(x); issued += 1
                k += per
                if ex and i in ex:
                    for x in ex[i]: a(x)
    a("s_barrier")
    if first_hook: first_hook()
    for s in range(D):
        for x in reads(s, s % nsets): a(x)
    if pre_loop: pre_loop()
    nloop = (NC - 1) // unroll
    rem = (NC - 1) - nloop * unroll
    if nloop > 0:
        L = a.newlabel(f"{tag}_loop")
        a(f"s_mov_b32 s{s_cnt}, {nloop}")
        a.label(L)
        for u in range(unroll): chunk(u, False)
        a(f"s_sub_u32 s{s_cnt}, s{s_cnt}, 1")
        a(f"s_cmp_lg_u32 s{s_cnt}, 0")
        a(f"s_cbranch_scc1 {L}")
    for u in range(rem): chunk(u, False)
    chunk(rem % unroll, True)
```

```python
from common import *
import common, struct
def STAMPS_ON(): return common.STAMPS
def f2u(x): return struct.unpack("<I", struct.pack("<f", x))[0]

X_OFF, WQ_OFF, WM_OFF, STAGE = 0, 16384, 16384 + 12288, 36864
S1, NC1 = 4, 8
T_RSTD, T_NMR, T_CS, T_CS4 = 0, 512, 1024, 1536
RING = 2048
LDS1 = RING + S1 * STAGE
STG_Q, PQ = RING, 208
STG_M, PM = RING + 128 * 208, 272
STG_P = STG_M + 64 * 272

LOG2E = 1.4426950408889634
kA = -2.0 * 0.7978845608028654 * LOG2E
kB = kA * 0.044715

def gen_p1(name="p1_kernel", abl=()):
    a = Asm('p1_')
    END = "P1_END"
    sX, sWQ, sWM, sQKV, sUG, sGS = 8, 12, 16, 20, 24, 28
    s_wave, s_rt, s_ct, s_kc, s_slot, s_cnt, s_t0, s_t1, s_t2 = 36, 37, 38, 39, 40, 41, 42, 43, 44
    s_bx, s_bq, s_bm, s_lx, s_lq, s_lm = 45, 46, 47, 48, 49, 50
    s_ones, s_delta, s_neg, s_pos, s_rs = 51, 52, 56, 57, 53
    v_lane = 2
    a(f"""
    s_cmp_ge_u32 s2, 256
    s_cbranch_scc1 {END}
    s_load_dwordx2 s[4:5], s[0:1], {KA['x']}
    s_load_dwordx2 s[6:7], s[0:1], {KA['w_qkv']}
    s_load_dwordx2 s[32:33], s[0:1], {KA['w_mlp_in']}
    s_load_dwordx2 s[34:35], s[0:1], {KA['ws']}
    """)
    stamp_zero(a)
    if STAMPS_ON():
        a("s_memrealtime s[64:65]")
        a("s_memtime s[66:67]")
    a(f"""
    v_lshrrev_b32 v1, 6, v0
    v_and_b32 v2, 63, v0
    v_readfirstlane_b32 s{s_wave}, v1
    s_and_b32 s{s_t0}, s2, 7
    s_lshr_b32 s{s_t1}, s2, 3
    s_lshr_b32 s{s_rt}, s{s_t0}, 1
    s_lshl_b32 s{s_rt}, s{s_rt}, 2
    s_and_b32 s{s_t2}, s{s_t1}, 3
    s_add_u32 s{s_rt}, s{s_rt}, s{s_t2}
    s_and_b32 s{s_ct}, s{s_t0}, 1
    s_lshl_b32 s{s_ct}, s{s_ct}, 3
    s_lshr_b32 s{s_kc}, s{s_t1}, 2
    s_add_u32 s{s_ct}, s{s_ct}, s{s_kc}
    s_lshl_b32 s{s_t2}, s{s_t2}, 1
    s_add_u32 s{s_kc}, s{s_kc}, s{s_t2}
    s_and_b32 s{s_kc}, s{s_kc}, 7
    s_mov_b32 s58, s{s_wave}
    s_cmp_ge_u32 s{s_wave}, 8
    s_cbranch_scc1 P1_STATS
    s_cmp_ge_u32 s{s_wave}, 4
    s_cbranch_scc1 P1_LOADER
    """)
    def out_srds():
        srd(a, sQKV, 34, 35, 2000 * 3072, WS_QKV)
        srd(a, sUG, 34, 35, 1024 * 4096, WS_UG)
        srd(a, sGS, 34, 35, 8 * 2 * 2048 * 4, WS_GST)
        stamp_init(a, 34, 35, 0)
    ring = Ring(a, S1, STAGE, s_rs, s_delta, s_neg, s_pos)

    V = Alloc(3, 168)
    vxa = V(4); vwq = V(1); vwm = V(2)
    vt = V(8, 2)
    fbase = V(48, 4)
    fx = [fbase, fbase + 4]
    fw = [[fbase + 8 + 20*st + 4*b for b in range(5)] for st in range(2)]
    acc = [V(16, 4) for _ in range(5)]
    csa = V(16, 4); vones = V(2, 2)
    r_frag_addrs(a, vxa, vt, v_lane, s_wave, s_t0, RING + X_OFF)
    t_frag_common(a, vt, v_lane)
    a(f"""
    v_mul_u32_u24 v{vwq}, 192, v{vt}
    v_add_u32 v{vwq}, v{vwq}, v{vt+2}
    v_add_u32 v{vwq}, {RING}, v{vwq}
    """)
    t64_frag_addrs(a, vwm, vt, v_lane, RING)
    ring.init()
    for b in range(5):
        for i in range(16): a(f"v_mov_b32 v{acc[b]+i}, 0")
    for i in range(16): a(f"v_mov_b32 v{csa+i}, 0")
    a(f"v_mov_b32 v{vones}, 0x3f803f80")
    a(f"v_mov_b32 v{vones+1}, 0x3f803f80")
    a("s_waitcnt lgkmcnt(0)")
    out_srds()
    def mk_cs_hook(w):
        def cs_hook(ci, s, last):
            if "nocs" in abl: return None
            st = s & 1
            T = "v_mfma_f32_4x4x4_16b_bf16"
            def colsum(dst, f): return f"{T} v[{dst}:{dst+3}], v[{vones}:{vones+1}], v[{f}:{f+1}], v[{dst}:{dst+3}]"
            def gram(dst, f): return f"{T} v[{dst}:{dst+3}], v[{f}:{f+1}], v[{f}:{f+1}], v[{dst}:{dst+3}]"
            x = fx[st]; fo = fw[st][w]; f4 = fw[st][4]
            ex = {0: [colsum(csa + 8, x), gram(csa + 12, x)],
                  1: [colsum(csa + 8, x + 2), gram(csa + 12, x + 2)],
                  3: [colsum(csa, fo)],
                  4: [colsum(csa, fo + 2)]}
            if s == w:
                ex[4] = [colsum(csa + 4, f4), colsum(csa, fo + 2), "s_nop 0", colsum(csa + 4, f4 + 2)]
            return ex
        return cs_hook
    def reads(step, st):
        r = [f"ds_read_b128 v[{fx[st]}:{fx[st]+3}], v{vxa+step}"]
        for b in range(3): r += tr2(fw[st][b], vwq, WQ_OFF + 16*step*192 + 64*b, 192)
        for b in range(2): r += tr2(fw[st][3+b], vwm + b, WM_OFF + 16*step*128, 128)
        return r
    def mfmas(st, s, ci):
        m = []
        if "nomfma" in abl: return ["s_nop 0"] * 5
        for b in range(3):
            m.append(f"v_mfma_f32_32x32x16_bf16 v[{acc[b]}:{acc[b]+15}], v[{fw[st][b]}:{fw[st][b]+3}], v[{fx[st]}:{fx[st]+3}], v[{acc[b]}:{acc[b]+15}]")
        for b in range(3, 5):
            m.append(f"v_mfma_f32_32x32x16_bf16 v[{acc[b]}:{acc[b]+15}], v[{fx[st]}:{fx[st]+3}], v[{fw[st][b]}:{fw[st][b]+3}], v[{acc[b]}:{acc[b]+15}]")
        return m
    nvar = 1 if "nocs" in abl else 4
    for w in range(nvar):
        if w < nvar - 1:
            a(f"s_cmp_lg_u32 s{s_wave}, {w}")
            a(f"s_cbranch_scc1 P1_var{w+1}")
        gemm_loop2(a, NC1, ring, [vxa, vxa+1, vxa+2, vxa+3, vwq, vwm, vwm+1], reads, mfmas, [3, 5, 7, 9, 11], s_cnt, f"P1w{w}",
                   D=1, per=4, hook=mk_cs_hook(w), first_hook=lambda: stamp(a, 2))
        if w < nvar - 1:
            a("s_branch P1_mdone")
            a.label(f"P1_var{w+1}")
    a.label("P1_mdone")
    stamp(a, 3)
    a(f"""
    v_and_b32 v{vt+1}, 3, v{v_lane}
    v_cmp_eq_u32 vcc, 1, v{vt+1}
    v_cndmask_b32 v{csa+12}, v{csa+12}, v{csa+13}, vcc
    v_cmp_eq_u32 vcc, 2, v{vt+1}
    v_cndmask_b32 v{csa+12}, v{csa+12}, v{csa+14}, vcc
    v_cmp_eq_u32 vcc, 3, v{vt+1}
    v_cndmask_b32 v{csa+12}, v{csa+12}, v{csa+15}, vcc
    v_mov_b32 v{csa+1}, v{csa}
    v_mov_b32 v{csa+5}, v{csa+4}
    v_mov_b32 v{csa+9}, v{csa+8}
    v_mov_b32 v{csa+13}, v{csa+12}
    s_nop 1
    v_permlane32_swap_b32 v{csa}, v{csa+1}
    v_permlane32_swap_b32 v{csa+4}, v{csa+5}
    v_permlane32_swap_b32 v{csa+8}, v{csa+9}
    v_permlane32_swap_b32 v{csa+12}, v{csa+13}
    v_add_f32 v{csa}, v{csa}, v{csa+1}
    v_add_f32 v{csa+4}, v{csa+4}, v{csa+5}
    v_add_f32 v{csa+8}, v{csa+8}, v{csa+9}
    v_add_f32 v{csa+12}, v{csa+12}, v{csa+13}
    v_mul_f32 v{csa+8}, 0x3b000000, v{csa+8}               ; mean
    v_mul_f32 v{csa+12}, 0x3b000000, v{csa+12}             ; E[x^2]
    v_fma_f32 v{csa+12}, -v{csa+8}, v{csa+8}, v{csa+12}
    v_max_f32 v{csa+12}, 0, v{csa+12}
    v_add_f32 v{csa+12}, 0x3727c5ac, v{csa+12}
    v_rsq_f32 v{csa+10}, v{csa+12}                          ; rstd
    v_mul_f32 v{csa+11}, -1.0, v{csa+8}
    v_and_b32 v{vt}, 31, v{v_lane}
    v_mul_f32 v{csa+11}, v{csa+11}, v{csa+10}               ; -mean*rstd
    s_lshl_b32 s{s_t0}, s{s_wave}, 5
    v_add_u32 v{vt}, s{s_t0}, v{vt}
    v_lshlrev_b32 v{vt}, 2, v{vt}
    ds_write_b32 v{vt}, v{csa} offset:{T_CS}
    ds_write_b32 v{vt}, v{csa+4} offset:{T_CS4}
    ds_write_b32 v{vt}, v{csa+10} offset:{T_RSTD}
    ds_write_b32 v{vt}, v{csa+11} offset:{T_NMR}
    s_waitcnt lgkmcnt(0)
    """)
    a("s_barrier")
    stamp(a, 4)
    e = Alloc(fbase, fbase + 48)
    rs = e(16, 4); nm = e(16, 4); tp = e(4, 4); vcsl = e(2, 2); g2 = e(4, 4)
    t0 = vt; vh16 = vt + 2; vstq = vt + 3; vtk = vt + 4; v_rstd = vxa; v_nmr = vxa + 2
    a(f"""
    v_lshrrev_b32 v{vh16}, 5, v{v_lane}
    v_lshlrev_b32 v{vh16}, 4, v{vh16}            ; h*16
    s_lshl_b32 s{s_t0}, s{s_wave}, 7             ; 32w tokens * 4 B
    v_add_u32 v{vtk}, s{s_t0}, v{vh16}
    v_and_b32 v{t0}, 31, v{v_lane}
    v_lshlrev_b32 v{t0+1}, 2, v{t0}
    ds_read_b32 v{vcsl}, v{t0+1} offset:{T_CS + 96*4}
    ds_read_b32 v{vcsl+1}, v{t0+1} offset:{T_CS4}
    ds_read_b32 v{g2}, v{t0+1} offset:{T_CS4 + 128}
    ds_read_b32 v{g2+1}, v{t0+1} offset:{T_CS4 + 256}
    ds_read_b32 v{g2+2}, v{t0+1} offset:{T_CS4 + 384}
    """)
    for r in range(4):
        a(f"ds_read_b128 v[{rs+4*r}:{rs+4*r+3}], v{vtk} offset:{T_RSTD + 8*r*4}")
        a(f"ds_read_b128 v[{nm+4*r}:{nm+4*r+3}], v{vtk} offset:{T_NMR + 8*r*4}")
    a(f"""
    v_mul_u32_u24 v{vstq}, {PM}, v{t0}
    s_lshl_b32 s{s_t0}, s{s_wave}, 6             ; 32w tokens * 2 B
    v_add_u32 v{vstq}, s{s_t0}, v{vstq}
    v_lshrrev_b32 v{t0+1}, 1, v{vh16}
    v_add_u32 v{vstq}, v{vstq}, v{t0+1}
    s_waitcnt lgkmcnt(0)
    v_add_f32 v{vcsl+1}, v{vcsl+1}, v{g2}
    v_add_f32 v{g2+1}, v{g2+1}, v{g2+2}
    v_add_f32 v{vcsl+1}, v{vcsl+1}, v{g2+1}
    """)
    for b in range(2):
        for r in range(4):
            for p in range(2):
                x = acc[3+b] + 4*r + 2*p; g = g2 + 2*p
                a(f"v_pk_mul_f32 v[{g}:{g+1}], v[{nm+4*r+2*p}:{nm+4*r+2*p+1}], v[{vcsl}:{vcsl+1}] op_sel:[0,{b}] op_sel_hi:[1,{b}]")
                a(f"v_pk_fma_f32 v[{x}:{x+1}], v[{x}:{x+1}], v[{rs+4*r+2*p}:{rs+4*r+2*p+1}], v[{g}:{g+1}]")
            x = acc[3+b] + 4*r
            a(f"v_cvt_pk_bf16_f32 v{tp+2*(r&1)}, v{x}, v{x+1}")
            a(f"v_cvt_pk_bf16_f32 v{tp+2*(r&1)+1}, v{x+2}, v{x+3}")
            a(f"ds_write_b64 v{vstq}, v[{tp+2*(r&1)}:{tp+2*(r&1)+1}] offset:{STG_M + 32*b*PM + 8*r*2}")
    a("s_waitcnt lgkmcnt(0)")
    a("s_barrier")
    csr = rs
    v_rn = csa + 10
    a(f"""
    v_and_b32 v{t0}, 31, v{v_lane}
    s_lshl_b32 s{s_t0}, s{s_wave}, 5
    v_add_u32 v{vstq}, s{s_t0}, v{t0}
    v_mul_u32_u24 v{vstq}, {PQ}, v{vstq}
    v_lshrrev_b32 v{t0}, 1, v{vh16}
    v_add_u32 v{vstq}, v{vstq}, v{t0}
    """)
    bufs = [rs, nm]
    for r in range(4):
        a(f"ds_read_b128 v[{bufs[0]+4*r}:{bufs[0]+4*r+3}], v{vh16} offset:{T_CS + 8*r*4}")
    for b in range(3):
        cur = bufs[b & 1]
        if b < 2:
            for r in range(4):
                a(f"ds_read_b128 v[{bufs[(b+1)&1]+4*r}:{bufs[(b+1)&1]+4*r+3}], v{vh16} offset:{T_CS + (32*(b+1) + 8*r)*4}")
            a("s_waitcnt lgkmcnt(4)")
        else:
            a("s_waitcnt lgkmcnt(0)")
        for r in range(4):
            for p in range(2):
                c = cur + 4*r + 2*p; x = acc[b] + 4*r + 2*p
                a(f"v_pk_mul_f32 v[{c}:{c+1}], v[{c}:{c+1}], v[{v_rn}:{v_rn+1}] op_sel:[0,1] op_sel_hi:[1,1]")
                a(f"v_pk_fma_f32 v[{x}:{x+1}], v[{x}:{x+1}], v[{v_rn}:{v_rn+1}], v[{c}:{c+1}] op_sel_hi:[1,0,1]")
            x = acc[b] + 4*r
            a(f"v_cvt_pk_bf16_f32 v{tp+2*(r&1)}, v{x}, v{x+1}")
            a(f"v_cvt_pk_bf16_f32 v{tp+2*(r&1)+1}, v{x+2}, v{x+3}")
            a(f"ds_write_b64 v{vstq}, v[{tp+2*(r&1)}:{tp+2*(r&1)+1}] offset:{STG_Q + (32*b + 8*r)*2}")
    a("s_waitcnt lgkmcnt(0)")
    stamp(a, 5)
    a("s_barrier")
    a("s_branch P1_STORE")

    def cs_final(l_cs, ng, lt, col_sgpr_list):
        for g in range(ng):
            a(f"""
            v_mov_b32 v{lt+4}, v{l_cs+g}
            s_nop 1
            v_permlane16_swap_b32 v{l_cs+g}, v{lt+4}
            v_add_f32 v{l_cs+g}, v{l_cs+g}, v{lt+4}
            v_mov_b32 v{lt+4}, v{l_cs+g}
            s_nop 1
            v_permlane32_swap_b32 v{l_cs+g}, v{lt+4}
            v_add_f32 v{l_cs+g}, v{l_cs+g}, v{lt+4}
            """)
    def grp_lane(lt):
        a(f"""
        v_lshrrev_b32 v{lt}, 4, v{v_lane}
        v_lshlrev_b32 v{lt}, 2, v{lt}
        v_bfe_u32 v{lt+1}, v{v_lane}, 2, 2
        v_add_u32 v{lt}, v{lt}, v{lt+1}
        v_and_b32 v{lt+1}, 3, v{v_lane}
        v_lshlrev_b32 v{lt+1}, 3, v{lt+1}
        """)

    a.label("P1_LOADER")
    vx, vq, vm = 3, 4, 7
    vt = 8
    a(f"s_sub_u32 s{s_wave}, s{s_wave}, 4")
    r_loader_voff(a, vx, vt, v_lane, s_wave, s_t0, 1024)
    a(f"""
    s_lshl_b32 s{s_bx}, s{s_rt}, 17              ; rt*128*1024
    s_lshl_b32 s{s_t0}, s{s_wave}, 13            ; 8 rows * 1024 * w
    s_add_u32 s{s_bx}, s{s_bx}, s{s_t0}
    s_lshl_b32 s{s_lx}, s{s_wave}, 10
    """)
    t64_loader_voff(a, vm, vt, v_lane, 2048)
    for jj in range(3):
        a(f"""
        v_add_u32 v{vt}, {64*jj}, v{v_lane}
        v_mul_u32_u24 v{vt+1}, 43691, v{vt}
        v_lshrrev_b32 v{vt+1}, 19, v{vt+1}          ; row = f/12
        v_mul_u32_u24 v{vt+2}, 12, v{vt+1}
        v_sub_u32 v{vt+2}, v{vt}, v{vt+2}           ; slot
        v_lshlrev_b32 v{vt+2}, 4, v{vt+2}
        v_mul_u32_u24 v{vt+1}, 3072, v{vt+1}
        v_add_u32 v{vq+jj}, v{vt+1}, v{vt+2}
        """)
    a(f"""
    s_mul_i32 s{s_bq}, s{s_wave}, {16*3072}
    s_mul_i32 s{s_t0}, s{s_ct}, 192
    s_add_u32 s{s_bq}, s{s_bq}, s{s_t0}
    s_mul_i32 s{s_bm}, s{s_wave}, {16*2048}
    s_lshl_b32 s{s_t0}, s{s_ct}, 7
    s_add_u32 s{s_bm}, s{s_bm}, s{s_t0}
    s_mul_i32 s{s_lq}, s{s_wave}, 3072
    s_add_u32 s{s_lq}, s{s_lq}, {WQ_OFF}
    s_lshl_b32 s{s_lm}, s{s_wave}, 11
    s_add_u32 s{s_lm}, s{s_lm}, {WM_OFF}
    s_waitcnt lgkmcnt(0)
    """)
    srd(a, sX, 4, 5, 2000 * 1024)
    srd(a, sWQ, 6, 7, 512 * 3072)
    srd(a, sWM, 32, 33, 512 * 2048)
    streams = [
        Stream(sX, [vx]*4, [i*32*1024 for i in range(4)], [X_OFF + i*4096 for i in range(4)], s_bx, 128, s_lx),
        Stream(sWQ, [vq, vq+1, vq+2], [0, 0, 0], [0, 1024, 2048], s_bq, 64*3072, s_lq),
        Stream(sWM, [vm, vm], [0, 8*2048], [0, 1024], s_bm, 64*2048, s_lm),
    ]
    def hook():
        out_srds()
    stamp(a, 2)
    loader_loop(a, streams, NC1, S1, STAGE, s_kc, s_slot, s_cnt, s_t0, s_t1, s_t2, lds_base=RING, hook=hook,
                ahead=(3 if 'ah3' in abl else 2))
    stamp(a, 3)
    a("s_branch P1_HELP_EPI")

    a.label("P1_STATS")
    a("s_waitcnt lgkmcnt(0)")
    out_srds()
    stamp(a, 2)
    for i in range(NC1): a("s_barrier")
    stamp(a, 3)

    a.label("P1_HELP_EPI")
    a("s_barrier")
    a("s_barrier")
    H = 8
    a(f"""
    v_subrev_u32 v3, 256, v0
    v_lshrrev_b32 v4, 4, v3                       ; row 0..31
    v_and_b32 v5, 15, v3                          ; slot
    v_lshlrev_b32 v5, 4, v5
    v_mul_u32_u24 v6, {PM}, v4
    v_add_u32 v6, v6, v5
    ds_read_b128 v[{H}:{H+3}], v6 offset:{STG_M}
    ds_read_b128 v[{H+4}:{H+7}], v6 offset:{STG_M + 32*PM}
    v_lshl_add_u32 v7, v4, 12, v5
    s_lshl_b32 s{s_t2}, s{s_ct}, 18               ; 64 rows * 4096
    s_lshl_b32 s{s_t0}, s{s_rt}, 8                ; 128 tokens * 2 B
    s_add_u32 s{s_t2}, s{s_t2}, s{s_t0}
    """)
    X = 16
    G = 32
    cA, cB, cOne = 48, 50, 52
    a(f"""
    v_mov_b32 v{cA}, {hex(f2u(kA))}
    v_mov_b32 v{cA+1}, {hex(f2u(kA))}
    v_mov_b32 v{cB}, {hex(f2u(kB))}
    v_mov_b32 v{cB+1}, {hex(f2u(kB))}
    v_mov_b32 v{cOne}, 1.0
    v_mov_b32 v{cOne+1}, 1.0
    s_waitcnt lgkmcnt(0)
    """)
    for i in range(8):
        a(f"v_lshlrev_b32 v{X+2*i}, 16, v{H+i}")
        a(f"v_and_b32 v{X+2*i+1}, 0xffff0000, v{H+i}")
    for i in range(8):
        a(f"v_mul_f32 v{G+2*i}, v{X+2*i}, v{X+2*i}")
        a(f"v_mul_f32 v{G+2*i+1}, v{X+2*i+1}, v{X+2*i+1}")
    for i in range(16): a(f"v_fma_f32 v{G+i}, v{G+i}, v{cB}, v{cA}")
    for i in range(16): a(f"v_mul_f32 v{G+i}, v{G+i}, v{X+i}")
    for i in range(16): a(f"v_exp_f32 v{G+i}, v{G+i}")
    for i in range(16): a(f"v_add_f32 v{G+i}, 1.0, v{G+i}")
    for i in range(16): a(f"v_rcp_f32 v{G+i}, v{G+i}")
    for i in range(16): a(f"v_mul_f32 v{X+i}, v{X+i}, v{G+i}")
    for i in range(8): a(f"v_cvt_pk_bf16_f32 v{H+i}, v{X+2*i}, v{X+2*i+1}")
    a(f"buffer_store_dwordx4 v[{H}:{H+3}], v7, s[{sUG}:{sUG+3}], s{s_t2} offen")
    a(f"s_add_u32 s{s_t1}, s{s_t2}, {32*4096}")
    a(f"buffer_store_dwordx4 v[{H+4}:{H+7}], v7, s[{sUG}:{sUG+3}], s{s_t1} offen")
    a(f"s_cmp_lt_u32 s{s_ct}, 8")
    a("s_cbranch_scc1 P1_nostat")
    for i in range(8):
        a(f"v_mul_f32 v{G+i}, v{X+i}, v{X+i}")
        a(f"v_fma_f32 v{G+i}, v{X+8+i}, v{X+8+i}, v{G+i}")
        a(f"v_add_f32 v{X+i}, v{X+i}, v{X+8+i}")
    for i in range(8): a(f"v_permlane16_swap_b32 v{X+i}, v{G+i}")
    for i in range(8): a(f"v_add_f32 v{X+i}, v{X+i}, v{G+i}")
    for i in range(4): a(f"v_permlane32_swap_b32 v{X+i}, v{X+4+i}")
    for i in range(4): a(f"v_add_f32 v{X+i}, v{X+i}, v{X+4+i}")
    a(f"""
    v_lshlrev_b32 v4, 4, v3                       ; htid*16
    ds_write_b128 v4, v[{X}:{X+3}] offset:{STG_P}
    """)
    a.label("P1_nostat")
    a("s_waitcnt lgkmcnt(0)")
    stamp(a, 5)
    a("s_barrier")

    a.label("P1_STORE")
    d = 8
    a(f"s_mul_i32 s{s_t1}, s{s_rt}, {128*3072}")
    a(f"s_mul_i32 s{s_t2}, s{s_ct}, 192")
    a(f"s_add_u32 s{s_t1}, s{s_t1}, s{s_t2}")
    for i in range(2):
        a(f"""
        v_add_u32 v3, {768*i}, v0
        v_mul_u32_u24 v4, 43691, v3
        v_lshrrev_b32 v4, 19, v4              ; row
        v_mul_u32_u24 v5, 12, v4
        v_sub_u32 v5, v3, v5                  ; slot
        v_lshlrev_b32 v5, 4, v5
        v_mul_u32_u24 v6, {PQ}, v4
        v_add_u32 v6, v6, v5
        ds_read_b128 v[{d+4*i}:{d+4*i+3}], v6 offset:{STG_Q}
        v_mul_u32_u24 v4, 3072, v4
        v_add_u32 v{40+i}, v4, v5
        """)
    a(f"s_cmp_lg_u32 s58, 11")
    a("s_cbranch_scc1 P1_nofin")
    a(f"s_cmp_lt_u32 s{s_ct}, 8")
    a("s_cbranch_scc1 P1_nofin")
    a(f"v_lshlrev_b32 v4, 4, v{v_lane}")
    for w in range(8):
        a(f"ds_read_b128 v[{48+4*w}:{48+4*w+3}], v4 offset:{STG_P + w*1024}")
    a(f"""
    v_and_b32 v5, 15, v{v_lane}
    v_lshlrev_b32 v5, 3, v5                      ; 8*slot
    v_lshrrev_b32 v6, 5, v{v_lane}
    v_lshl_add_u32 v5, v6, 2, v5                  ; + 4*half
    s_lshl_b32 s{s_t0}, s{s_rt}, 7
    v_add_u32 v5, s{s_t0}, v5
    v_lshlrev_b32 v5, 2, v5
    v_bfe_u32 v6, v{v_lane}, 4, 1
    v_lshl_add_u32 v5, v6, 13, v5                 ; stat * 2048*4
    s_sub_u32 s{s_t0}, s{s_ct}, 8
    s_lshl_b32 s{s_t0}, s{s_t0}, 14
    s_waitcnt lgkmcnt(0)
    """)
    for w in range(1, 8):
        for i in range(4): a(f"v_add_f32 v{48+i}, v{48+i}, v{48+4*w+i}")
    a(f"buffer_store_dwordx4 v[48:51], v5, s[{sGS}:{sGS+3}], s{s_t0} offen")
    a.label("P1_nofin")
    a("s_waitcnt lgkmcnt(0)")
    for i in range(2):
        a(f"buffer_store_dwordx4 v[{d+4*i}:{d+4*i+3}], v{40+i}, s[{sQKV}:{sQKV+3}], s{s_t1} offen")
    if STAMPS_ON():
        a("s_waitcnt vmcnt(0)")
    stamp(a, 6)
    stamp_flush(a, 58)
    a.label(END)
    a("s_endpgm")
    return a.text(), dict(name=name, vgpr=max(V.hi, 96), sgpr=100, lds=LDS1, grid=256, block=768)
```

```python
from common import *
import common, struct
def STAMPS_ON(): return common.STAMPS
def f2u(x): return struct.unpack("<I", struct.pack("<f", x))[0]

NC = 8
LDS2 = 163840
Z_RS, Z_NM, Z_WP, Z_GN, Z_PG = 0, 1152, 2304, 27136, 608

WP_CH = 388

def conv_T_addr(a, vd, vt, v_lane, base):
    a(f"""
    v_lshrrev_b32 v{vt}, 4, v{v_lane}
    v_lshlrev_b32 v{vt}, 3, v{vt}
    v_and_b32 v{vt+1}, 15, v{v_lane}
    v_sub_u32 v{vt}, v{vt}, v{vt+1}
    v_add_u32 v{vt}, 15, v{vt}
    v_lshlrev_b32 v{vt}, 1, v{vt}
    v_and_b32 v{vt+1}, 1, v{vt+1}
    v_xor_b32 v{vt+1}, 1, v{vt+1}
    v_mul_u32_u24 v{vt+1}, 190, v{vt+1}
    v_add_u32 v{vt}, v{vt}, v{vt+1}
    v_add_u32 v{vd}, {base}, v{vt}
    """)

def conv_T_reads(dst, vaddr, s, ch3=0):
    o = ch3 * (WP_CH // 4) + 16 * s
    return [f"ds_read2_b32 v[{dst}:{dst+1}], v{vaddr} offset0:{o} offset1:{o+1}",
            f"ds_read2_b32 v[{dst+2}:{dst+3}], v{vaddr} offset0:{o+2} offset1:{o+3}"]

def filter_table_loads(a, s_dw_srd, s_c0bytes, nch, pitch_bytes, vt, nthreads=512):
    sh = nch.bit_length() - 1
    per = nthreads // nch
    rounds = (31 + per - 1) // per
    assert rounds <= 4
    for j in range(rounds):
        a(f"""
        v_lshrrev_b32 v{vt+5}, {sh}, v0
        v_add_u32 v{vt+5}, {per*j}, v{vt+5}          ; tap i
        v_and_b32 v{vt+6}, {nch-1}, v0                ; channel
        v_mul_u32_u24 v{vt+7}, {pitch_bytes}, v{vt+5}
        v_lshl_add_u32 v{vt+7}, v{vt+6}, 1, v{vt+7}
        v_cmp_gt_u32 vcc, 31, v{vt+5}
        v_cndmask_b32 v{vt+7}, -1, v{vt+7}, vcc
        buffer_load_ushort v{vt+8+j}, v{vt+7}, s[{s_dw_srd}:{s_dw_srd+3}], s{s_c0bytes} offen
        v_mul_u32_u24 v{vt+6}, {WP_CH}, v{vt+6}
        v_lshl_add_u32 v{vt+12+j}, v{vt+5}, 1, v{vt+6}
        """)
    return rounds

def filter_table_zero(a, nch, wp_base, vt, nthreads=512):
    ngran = (nch * WP_CH + 15) // 16
    a(f"""
    v_mov_b32 v{vt}, 0
    v_mov_b32 v{vt+1}, 0
    v_mov_b32 v{vt+2}, 0
    v_mov_b32 v{vt+3}, 0
    """)
    for j in range((ngran + nthreads - 1) // nthreads):
        a(f"""
        v_add_u32 v{vt+5}, {nthreads*j}, v0
        v_lshlrev_b32 v{vt+4}, 4, v{vt+5}
        v_cmp_gt_u32 vcc, {ngran}, v{vt+5}
        s_and_saveexec_b64 s[54:55], vcc
        ds_write_b128 v{vt+4}, v[{vt}:{vt+3}] offset:{wp_base}
        s_mov_b64 exec, s[54:55]
        """)

def filter_table_write(a, nch, wp_base, vt, rounds, nthreads=512):
    sh = nch.bit_length() - 1
    per = nthreads // nch
    for j in range(rounds):
        a(f"""
        v_lshrrev_b32 v{vt+5}, {sh}, v0
        v_add_u32 v{vt+5}, {per*j}, v{vt+5}
        v_cmp_gt_u32 vcc, 31, v{vt+5}
        s_and_saveexec_b64 s[54:55], vcc
        ds_write_b16 v{vt+12+j}, v{vt+8+j} offset:{wp_base + 32}
        ds_write_b16 v{vt+12+j}, v{vt+8+j} offset:{wp_base + 192 + 30}
        s_mov_b64 exec, s[54:55]
        """)

def build_filter_table(a, s_dw_srd, s_c0bytes, nch, pitch_bytes, wp_base, vt, s_t, nthreads=512):
    filter_table_zero(a, nch, wp_base, vt, nthreads)
    rounds = filter_table_loads(a, s_dw_srd, s_c0bytes, nch, pitch_bytes, vt, nthreads)
    a("s_waitcnt lgkmcnt(0)")
    a("s_barrier")
    a("s_waitcnt vmcnt(0)")
    filter_table_write(a, nch, wp_base, vt, rounds, nthreads)

def gen_p2(name="p2_kernel", abl=()):
    a = Asm('p2_')
    END = "P2_END"
    sA, sB, sO1, sO2, sU, sG = 8, 12, 16, 20, 24, 28
    s_wave, s_i0, s_i1, s_kc, s_slot, s_cnt, s_t0, s_t1, s_t2 = 36, 37, 38, 39, 40, 41, 42, 43, 44
    s_b0, s_b1, s_l0, s_l1 = 45, 46, 48, 49
    s_b, s_delta, s_neg, s_pos, s_rs = 51, 52, 56, 57, 53
    s_xcd, s_idx = 47, 50
    v_lane = 2
    a(f"""
    s_cmp_ge_u32 s2, 256
    s_cbranch_scc1 {END}
    s_load_dwordx2 s[4:5], s[0:1], {KA['ws']}
    s_load_dwordx2 s[6:7], s[0:1], {KA['w_att_out']}
    s_load_dwordx2 s[32:33], s[0:1], {KA['dw_csgu']}
    """)
    stamp_zero(a)
    if STAMPS_ON():
        a("s_memrealtime s[64:65]")
        a("s_memtime s[66:67]")
    a(f"""
    v_lshrrev_b32 v1, 6, v0
    v_and_b32 v2, 63, v0
    v_readfirstlane_b32 s{s_wave}, v1
    s_and_b32 s{s_xcd}, s2, 7
    s_lshr_b32 s{s_idx}, s2, 3
    s_mov_b32 s58, s{s_wave}
    s_waitcnt lgkmcnt(0)
    """)
    stamp_init(a, 4, 5, 1)
    a(f"s_cmp_ge_u32 s{s_idx}, 16")
    a("s_cbranch_scc1 P2_VROLE")

    K_OFF, Q_OFF, STAGE, S = 0, 16384, 32768, 5
    a(f"""
    s_lshr_b32 s{s_b}, s{s_xcd}, 2                 ; batch
    s_and_b32 s{s_t0}, s{s_xcd}, 3                 ; quadrant
    s_lshr_b32 s{s_i0}, s{s_t0}, 1
    s_lshl_b32 s{s_i0}, s{s_i0}, 2
    s_and_b32 s{s_t1}, s{s_idx}, 3
    s_add_u32 s{s_i0}, s{s_i0}, s{s_t1}            ; qt
    s_and_b32 s{s_i1}, s{s_t0}, 1
    s_lshl_b32 s{s_i1}, s{s_i1}, 2
    s_lshr_b32 s{s_t2}, s{s_idx}, 2
    s_add_u32 s{s_i1}, s{s_i1}, s{s_t2}            ; kt
    s_lshl_b32 s{s_t1}, s{s_t1}, 1
    s_add_u32 s{s_kc}, s{s_t1}, s{s_t2}
    s_and_b32 s{s_kc}, s{s_kc}, 7
    s_mul_i32 s{s_t0}, s{s_b}, {1000*3072}
    s_add_u32 s{sA}, s4, s{s_t0}
    s_addc_u32 s{sA+1}, s5, 0
    s_mov_b32 s{sA+2}, {1000*3072}
    s_mov_b32 s{sA+3}, 0x20000
    s_lshl_b32 s{s_t0}, s{s_b}, 21                 ; batch * 1024*2048
    s_add_u32 s{s_t0}, s{s_t0}, {WS_PT}
    s_add_u32 s{sO1}, s4, s{s_t0}
    s_addc_u32 s{sO1+1}, s5, 0
    s_mov_b32 s{sO1+2}, {1000*2048}
    s_mov_b32 s{sO1+3}, 0x20000
    """)
    if "norot" in abl: a(f"s_mov_b32 s{s_kc}, 0")
    srd(a, sO2, 4, 5, 2*8*2*1024*4, WS_SST)
    a(f"s_cmp_ge_u32 s{s_wave}, 4")
    a("s_cbranch_scc1 P2_S_LOADER")
    V = Alloc(3, 256)
    vq = V(4); vk = V(4); vt = V(8, 2)
    fq = [V(4, 4) for _ in range(4)]
    fk = [[V(4, 4) for _ in range(4)] for _ in range(4)]
    acc = [V(16, 4) for _ in range(4)]
    r_frag_addrs(a, vq, vt, v_lane, s_wave, s_t0, Q_OFF)
    r_frag_addrs(a, vk, vt, v_lane, None, s_t0, K_OFF)
    ring = Ring(a, S, STAGE, s_rs, s_delta, s_neg, s_pos); ring.init()
    for b in range(4):
        for i in range(16): a(f"v_mov_b32 v{acc[b]+i}, 0")
    def reads(step, st):
        r = [f"ds_read_b128 v[{fq[st]}:{fq[st]+3}], v{vq+step}"]
        for b in range(4): r.append(f"ds_read_b128 v[{fk[st][b]}:{fk[st][b]+3}], v{vk+step} offset:{b*4096}")
        return r
    def mfmas(st, s, par):
        return [f"v_mfma_f32_32x32x16_bf16 v[{acc[b]}:{acc[b]+15}], v[{fk[st][b]}:{fk[st][b]+3}], v[{fq[st]}:{fq[st]+3}], v[{acc[b]}:{acc[b]+15}]" for b in range(4)]
    gemm_loop2(a, NC, ring, [vq+i for i in range(4)] + [vk+i for i in range(4)], reads, mfmas, [2, 3, 4, 5], s_cnt, "S", D=2, per=2,
               first_hook=lambda: stamp(a, 2))
    stamp(a, 3)
    vm = V(2, 2); vl = V(4, 4); cS = V(2, 2); tp = V(4, 4); vst = V(1)
    CS = 1.4426950408889634 / (512 ** 0.5)
    a(f"s_cmp_lg_u32 s{s_i1}, 7")
    a("s_cbranch_scc1 P2_S_nomask")
    for i in range(4, 16): a(f"v_mov_b32 v{acc[3]+i}, 0xff800000")
    a.label("P2_S_nomask")
    allr = [acc[b] + i for b in range(4) for i in range(16)]
    a(f"v_max3_f32 v{vm}, v{allr[0]}, v{allr[1]}, v{allr[2]}")
    a(f"v_max3_f32 v{vm+1}, v{allr[3]}, v{allr[4]}, v{allr[5]}")
    k = 6; t = 0
    while k < 64:
        if k + 1 < 64:
            a(f"v_max3_f32 v{vm+t}, v{allr[k]}, v{allr[k+1]}, v{vm+t}"); k += 2
        else:
            a(f"v_max_f32 v{vm+t}, v{allr[k]}, v{vm+t}"); k += 1
        t ^= 1
    a(f"""
    v_max_f32 v{vm}, v{vm}, v{vm+1}
    v_mov_b32 v{vm+1}, v{vm}
    s_nop 1
    v_permlane32_swap_b32 v{vm}, v{vm+1}
    v_max_f32 v{vm}, v{vm}, v{vm+1}
    v_mul_f32 v{vm}, {hex(f2u(CS))}, v{vm}
    v_sub_f32 v{vm+1}, 0, v{vm}
    v_mov_b32 v{cS}, {hex(f2u(CS))}
    v_mov_b32 v{cS+1}, {hex(f2u(CS))}
    v_mov_b32 v{vl}, 0
    v_mov_b32 v{vl+1}, 0
    v_mov_b32 v{vl+2}, 0
    v_mov_b32 v{vl+3}, 0
    v_and_b32 v{vt}, 31, v{v_lane}
    s_lshl_b32 s{s_t0}, s{s_wave}, 5
    v_add_u32 v{vt}, s{s_t0}, v{vt}
    v_mul_u32_u24 v{vst}, 272, v{vt}
    v_lshrrev_b32 v{vt+1}, 5, v{v_lane}
    v_lshl_add_u32 v{vst}, v{vt+1}, 3, v{vst}        ; + h*8 bytes
    s_barrier
    """)
    for b in range(4):
        for r in range(4):
            x = acc[b] + 4*r
            for p in range(2):
                a(f"v_pk_fma_f32 v[{x+2*p}:{x+2*p+1}], v[{x+2*p}:{x+2*p+1}], v[{cS}:{cS+1}], v[{vm}:{vm+1}] op_sel:[0,0,1] op_sel_hi:[1,1,1]")
            for i in range(4): a(f"v_exp_f32 v{x+i}, v{x+i}")
            a(f"v_pk_add_f32 v[{vl}:{vl+1}], v[{vl}:{vl+1}], v[{x}:{x+1}]")
            a(f"v_pk_add_f32 v[{vl+2}:{vl+3}], v[{vl+2}:{vl+3}], v[{x+2}:{x+3}]")
            a(f"v_cvt_pk_bf16_f32 v{tp+2*(r&1)}, v{x}, v{x+1}")
            a(f"v_cvt_pk_bf16_f32 v{tp+2*(r&1)+1}, v{x+2}, v{x+3}")
            a(f"ds_write_b64 v{vst}, v[{tp+2*(r&1)}:{tp+2*(r&1)+1}] offset:{(32*b + 8*r)*2}")
    a(f"""
    v_add_f32 v{vl}, v{vl}, v{vl+1}
    v_add_f32 v{vl+2}, v{vl+2}, v{vl+3}
    v_add_f32 v{vl}, v{vl}, v{vl+2}
    v_mov_b32 v{vl+1}, v{vl}
    s_nop 1
    v_permlane32_swap_b32 v{vl}, v{vl+1}
    v_add_f32 v{vl}, v{vl}, v{vl+1}
    v_cmp_gt_u32 vcc, 32, v{v_lane}
    s_nop 1
    v_cndmask_b32 v{vl}, v{vl}, v{vm}, vcc
    s_lshl_b32 s{s_t0}, s{s_i0}, 7
    v_add_u32 v{vt}, s{s_t0}, v{vt}
    v_lshlrev_b32 v{vt}, 2, v{vt}
    v_lshrrev_b32 v{vt+1}, 5, v{v_lane}
    v_lshl_add_u32 v{vt}, v{vt+1}, 12, v{vt}         ; stat * 1024*4
    s_lshl_b32 s{s_t0}, s{s_b}, 3
    s_add_u32 s{s_t0}, s{s_t0}, s{s_i1}
    s_lshl_b32 s{s_t0}, s{s_t0}, 13                 ; (b*8+kt) * 2*1024*4
    buffer_store_dword v{vl}, v{vt}, s[{sO2}:{sO2+3}], s{s_t0} offen
    s_waitcnt lgkmcnt(0)
    """)
    stamp(a, 5)
    a("s_barrier")
    a("s_branch P2_S_STORE")
    a.label("P2_S_LOADER")
    vo, vt_l = 3, 8
    a(f"s_sub_u32 s{s_wave}, s{s_wave}, 4")
    r_loader_voff(a, vo, vt_l, v_lane, s_wave, s_t0, 3072)
    a(f"""
    s_lshl_b32 s{s_b0}, s{s_i1}, 7
    s_lshl_b32 s{s_t0}, s{s_wave}, 3
    s_add_u32 s{s_b0}, s{s_b0}, s{s_t0}
    s_mul_i32 s{s_b0}, s{s_b0}, 3072
    s_add_u32 s{s_b0}, s{s_b0}, 1024               ; k rows
    s_lshl_b32 s{s_b1}, s{s_i0}, 7
    s_add_u32 s{s_b1}, s{s_b1}, s{s_t0}
    s_mul_i32 s{s_b1}, s{s_b1}, 3072               ; q rows
    s_lshl_b32 s{s_l0}, s{s_wave}, 10
    """)
    streams = [
        Stream(sA, [vo]*4, [i*32*3072 for i in range(4)], [Q_OFF + i*4096 for i in range(4)], s_b1, 128, s_l0),
        Stream(sA, [vo]*4, [i*32*3072 for i in range(4)], [K_OFF + i*4096 for i in range(4)], s_b0, 128, s_l0),
    ]
    stamp(a, 2)
    loader_loop(a, streams, NC, S, STAGE, s_kc, s_slot, s_cnt, s_t0, s_t1, s_t2, ahead=3)
    stamp(a, 3)
    a("s_barrier")
    a("s_barrier")
    a.label("P2_S_STORE")
    a(f"""
    s_lshl_b32 s{s_t1}, s{s_i0}, 18              ; qt*128*2048
    s_lshl_b32 s{s_t2}, s{s_i1}, 8               ; kt*256
    s_add_u32 s{s_t1}, s{s_t1}, s{s_t2}
    """)
    for i in range(4):
        a(f"""
        v_add_u32 v3, {512*i}, v0
        v_lshrrev_b32 v4, 4, v3
        v_and_b32 v5, 15, v3
        v_lshlrev_b32 v5, 4, v5
        v_mul_u32_u24 v6, 272, v4
        v_add_u32 v6, v6, v5
        ds_read_b128 v[{8+4*i}:{8+4*i+3}], v6
        v_lshl_add_u32 v{40+i}, v4, 11, v5
        """)
    a("s_waitcnt lgkmcnt(0)")
    for i in range(4):
        a(f"buffer_store_dwordx4 v[{8+4*i}:{8+4*i+3}], v{40+i}, s[{sO1}:{sO1+3}], s{s_t1} offen")
    a("s_branch P2_FIN")

    a.label("P2_VROLE")
    a(f"s_cmp_ge_u32 s{s_idx}, 24")
    a("s_cbranch_scc1 P2_ZROLE")
    V_OFF, W_OFF, STAGE, S = 0, 16384, 32768, 5
    a(f"""
    s_sub_u32 s{s_idx}, s{s_idx}, 16
    s_lshr_b32 s{s_t0}, s{s_idx}, 2
    s_lshl_b32 s{s_i0}, s{s_xcd}, 1
    s_add_u32 s{s_i0}, s{s_i0}, s{s_t0}            ; rt
    s_and_b32 s{s_i1}, s{s_idx}, 3
    s_mov_b32 s{s_kc}, s{s_idx}
    """)
    if "norot" in abl: a(f"s_mov_b32 s{s_kc}, 0")
    srd(a, sA, 4, 5, 2000 * 3072, WS_QKV)
    srd(a, sB, 6, 7, 512 * 1024)
    srd(a, sO1, 4, 5, 2000 * 1024, WS_VP)
    a(f"s_cmp_ge_u32 s{s_wave}, 4")
    a("s_cbranch_scc1 P2_V_LOADER")
    V2 = Alloc(3, 256)
    vv = V2(4); vw = V2(2); vt = V2(8, 2)
    fv = [[V2(4, 4) for _ in range(2)] for _ in range(4)]
    fw = [[V2(4, 4) for _ in range(2)] for _ in range(4)]
    acc = [[V2(16, 4) for _ in range(2)] for _ in range(2)]
    tp = V2(4, 4); vst = V2(1)
    s_wc, s_wt = 24, 25
    a(f"s_and_b32 s{s_wc}, s{s_wave}, 1")
    a(f"s_lshl_b32 s{s_wc}, s{s_wc}, 1")
    a(f"s_lshr_b32 s{s_wt}, s{s_wave}, 1")
    a(f"s_lshl_b32 s{s_wt}, s{s_wt}, 1")
    r_frag_addrs(a, vv, vt, v_lane, s_wt, s_t0, V_OFF)
    t128_frag_addr_blk(a, vw, vt, v_lane, W_OFF, s_wc)
    a(f"s_add_u32 s{s_t1}, s{s_wc}, 1")
    t128_frag_addr_blk(a, vw + 1, vt, v_lane, W_OFF, s_t1)
    ring = Ring(a, S, STAGE, s_rs, s_delta, s_neg, s_pos); ring.init()
    for cb in range(2):
        for tb in range(2):
            for i in range(16): a(f"v_mov_b32 v{acc[cb][tb]+i}, 0")
    def reads(step, st):
        r = [f"ds_read_b128 v[{fv[st][0]}:{fv[st][0]+3}], v{vv+step}"]
        r += tr2(fw[st][0], vw, 16*step*256, 256)
        r += [f"ds_read_b128 v[{fv[st][1]}:{fv[st][1]+3}], v{vv+step} offset:4096"]
        r += tr2(fw[st][1], vw + 1, 16*step*256, 256)
        return r
    def mfmas(st, s, par):
        return [f"v_mfma_f32_32x32x16_bf16 v[{acc[cb][tb]}:{acc[cb][tb]+15}], v[{fw[st][cb]}:{fw[st][cb]+3}], v[{fv[st][tb]}:{fv[st][tb]+3}], v[{acc[cb][tb]}:{acc[cb][tb]+15}]"
                for cb, tb in ((0, 0), (0, 1), (1, 0), (1, 1))]
    gemm_loop2(a, NC, ring, [vv+i for i in range(4)] + [vw, vw+1], reads, mfmas, [3, 4, 6, 6], s_cnt, "V", D=2, per=2,
               first_hook=lambda: stamp(a, 2))
    stamp(a, 3)
    a(f"""
    v_and_b32 v{vt}, 31, v{v_lane}
    s_lshl_b32 s{s_t0}, s{s_wt}, 5
    v_add_u32 v{vt}, s{s_t0}, v{vt}
    v_mul_u32_u24 v{vst}, 272, v{vt}
    s_lshl_b32 s{s_t0}, s{s_wc}, 6
    v_add_u32 v{vst}, s{s_t0}, v{vst}
    v_lshrrev_b32 v{vt+1}, 5, v{v_lane}
    v_lshl_add_u32 v{vst}, v{vt+1}, 3, v{vst}
    s_barrier
    """)
    for cb in range(2):
        for tb in range(2):
            for r in range(4):
                x = acc[cb][tb] + 4*r
                a(f"v_cvt_pk_bf16_f32 v{tp+2*(r&1)}, v{x}, v{x+1}")
                a(f"v_cvt_pk_bf16_f32 v{tp+2*(r&1)+1}, v{x+2}, v{x+3}")
                a(f"ds_write_b64 v{vst}, v[{tp+2*(r&1)}:{tp+2*(r&1)+1}] offset:{tb*32*272 + (32*cb + 8*r)*2}")
    a("s_waitcnt lgkmcnt(0)")
    stamp(a, 5)
    a("s_barrier")
    a("s_branch P2_V_STORE")
    a.label("P2_V_LOADER")
    vo, vo2, vt_l = 3, 4, 8
    a(f"s_sub_u32 s{s_wave}, s{s_wave}, 4")
    r_loader_voff(a, vo, vt_l, v_lane, s_wave, s_t0, 3072)
    t128_loader_voff(a, vo2, vt_l, v_lane, 1024)
    a(f"""
    s_lshl_b32 s{s_b0}, s{s_i0}, 7
    s_lshl_b32 s{s_t0}, s{s_wave}, 3
    s_add_u32 s{s_b0}, s{s_b0}, s{s_t0}
    s_mul_i32 s{s_b0}, s{s_b0}, 3072
    s_add_u32 s{s_b0}, s{s_b0}, 2048               ; v columns
    s_lshl_b32 s{s_b1}, s{s_wave}, 14              ; 16 rows * 1024
    s_lshl_b32 s{s_t0}, s{s_i1}, 8
    s_add_u32 s{s_b1}, s{s_b1}, s{s_t0}
    s_lshl_b32 s{s_l0}, s{s_wave}, 10
    s_lshl_b32 s{s_l1}, s{s_wave}, 12
    s_add_u32 s{s_l1}, s{s_l1}, {W_OFF}
    """)
    streams = [
        Stream(sA, [vo]*4, [i*32*3072 for i in range(4)], [V_OFF + i*4096 for i in range(4)], s_b0, 128, s_l0),
        Stream(sB, [vo2]*4, [i*4*1024 for i in range(4)], [i*1024 for i in range(4)], s_b1, 64*1024, s_l1),
    ]
    stamp(a, 2)
    loader_loop(a, streams, NC, S, STAGE, s_kc, s_slot, s_cnt, s_t0, s_t1, s_t2, ahead=3)
    stamp(a, 3)
    a("s_barrier")
    a("s_barrier")
    a.label("P2_V_STORE")
    a(f"""
    s_lshl_b32 s{s_t1}, s{s_i0}, 17              ; rt*128*1024
    s_lshl_b32 s{s_t2}, s{s_i1}, 8               ; ct*256
    s_add_u32 s{s_t1}, s{s_t1}, s{s_t2}
    """)
    for i in range(4):
        a(f"""
        v_add_u32 v3, {512*i}, v0
        v_lshrrev_b32 v4, 4, v3
        v_and_b32 v5, 15, v3
        v_lshlrev_b32 v5, 4, v5
        v_mul_u32_u24 v6, 272, v4
        v_add_u32 v6, v6, v5
        ds_read_b128 v[{8+4*i}:{8+4*i+3}], v6
        v_lshl_add_u32 v{40+i}, v4, 10, v5
        """)
    a("s_waitcnt lgkmcnt(0)")
    for i in range(4):
        a(f"buffer_store_dwordx4 v[{8+4*i}:{8+4*i+3}], v{40+i}, s[{sO1}:{sO1+3}], s{s_t1} offen")
    a("s_branch P2_FIN")

    a.label("P2_ZROLE")
    NCH = 64
    s_c0, s_t0g, s_flat = s_i0, s_i1, s_b0
    a(f"""
    s_lshl_b32 s{s_c0}, s{s_xcd}, 6                ; c0
    s_sub_u32 s{s_t0}, s{s_idx}, 24                ; tg
    s_lshr_b32 s{s_b}, s{s_t0}, 2
    s_and_b32 s{s_t0g}, s{s_t0}, 3
    s_lshl_b32 s{s_t0g}, s{s_t0g}, 8               ; t0
    s_mul_i32 s{s_flat}, s{s_b}, 1000
    s_add_u32 s{s_flat}, s{s_flat}, s{s_t0g}
    """)
    srd(a, sG, 4, 5, 8*2*2048*4, WS_GST)
    srd(a, sU, 4, 5, 1024*4096, WS_UG)
    srd(a, sO2, 4, 5, 512*4096, WS_ZT)
    srd(a, sB, 32, 33, 31*1024)
    sM = 98
    a(f"""
    v_mul_u32_u24 v6, 58255, v0
    v_lshrrev_b32 v6, 21, v6                       ; r0
    v_mul_u32_u24 v7, 36, v6
    v_sub_u32 v7, v0, v7                           ; slot
    v_lshlrev_b32 v5, 4, v7
    v_lshlrev_b32 v49, 1, v5
    s_add_u32 s{s_t1}, s{s_c0}, 512
    s_lshl_b32 s{s_t1}, s{s_t1}, 12
    s_lshl_b32 s{s_t2}, s{s_flat}, 1
    s_add_u32 s{s_t1}, s{s_t1}, s{s_t2}
    s_sub_u32 s{s_t1}, s{s_t1}, 32                 ; origin t0-16
    """)
    for j in range(5):
        a(f"""
        v_add_u32 v3, {14*j}, v6                     ; row
        v_lshl_add_u32 v54, v3, 12, v5               ; global offset
        v_mul_u32_u24 v4, {Z_PG}, v3
        v_add_u32 v{44+j}, v4, v5                    ; LDS offset in GN
        v_cmp_gt_u32 vcc, {NCH}, v3
        v_cmp_gt_u32 s[54:55], 504, v0
        s_and_b64 vcc, vcc, s[54:55]
        v_cndmask_b32 v54, -1, v54, vcc
        v_cndmask_b32 v{44+j}, {Z_PG*NCH}, v{44+j}, vcc      ; invalid -> dummy row behind the tile
        buffer_load_dwordx4 v[{24+4*j}:{24+4*j+3}], v54, s[{sU}:{sU+3}], s{s_t1} offen
        """.replace(f"v_cmp_gt_u32 s[54:55], 504, v0", "v_mov_b32 v4, 504\n        v_cmp_gt_u32 s[54:55], v4, v0").replace(f"v_cndmask_b32 v{44+j}, {Z_PG*NCH}, v{44+j}, vcc", f"v_mov_b32 v4, {Z_PG*NCH}\n        v_cndmask_b32 v{44+j}, v4, v{44+j}, vcc"))
    a(f"""
    v_add_u32 v3, s{s_t0g}, v0
    v_subrev_u32 v3, 16, v3                        ; t = t0 - 16 + tid
    v_cmp_gt_u32 vcc, 1000, v3
    s_mov_b64 s[{sM}:{sM+1}], vcc
    v_add_u32 v4, s{s_flat}, v0
    v_subrev_u32 v4, 16, v4
    v_lshlrev_b32 v4, 2, v4
    v_cndmask_b32 v4, -1, v4, vcc
    """)
    for p_ in range(8):
        for st in range(2):
            a(f"s_mov_b32 s{s_t0}, {p_*16384 + st*8192}")
            a(f"buffer_load_dword v{8+2*p_+st}, v4, s[{sG}:{sG+3}], s{s_t0} offen")
    a(f"s_lshl_b32 s{s_t2}, s{s_c0}, 1")
    rounds = filter_table_loads(a, sB, s_t2, NCH, 1024, 60)
    vG, vMask = 92, 93
    a(f"""
    v_and_b32 v5, 15, v{v_lane}
    v_lshlrev_b32 v5, 5, v5                        ; 16*b*2
    v_lshrrev_b32 v6, 4, v{v_lane}                 ; g
    v_lshl_add_u32 v{vG}, v6, 3, v5                 ; (16b + 4g)*2 bytes
    v_lshrrev_b32 v7, 1, v{vG}
    v_add_u32 v7, s{s_t0g}, v7                      ; t
    v_cmp_gt_u32 vcc, 1000, v7
    v_cndmask_b32 v{vMask}, -1, v{vG}, vcc
    s_lshl_b32 s{s_t0}, s{s_wave}, 3
    s_add_u32 s{s_t0}, s{s_t0}, s{s_c0}
    s_lshl_b32 s{s_t0}, s{s_t0}, 12
    s_lshl_b32 s{s_t1}, s{s_flat}, 1
    s_add_u32 s{s_l0}, s{s_t0}, s{s_t1}
    """)
    U = 96
    for c in range(8):
        a(f"s_add_u32 s{s_t1}, s{s_l0}, {c*4096}")
        a(f"buffer_load_dwordx2 v[{U+2*c}:{U+2*c+1}], v{vG}, s[{sU}:{sU+3}], s{s_t1} offen")
    filter_table_zero(a, NCH, Z_WP, 60)
    a(f"""
    v_lshrrev_b32 v3, 1, v0
    v_mul_u32_u24 v3, {Z_PG}, v3
    v_and_b32 v4, 1, v0
    v_lshl_add_u32 v3, v4, 4, v3
    v_cmp_gt_u32 vcc, {2*NCH}, v0
    s_and_saveexec_b64 s[54:55], vcc
    ds_write_b128 v3, v[60:63] offset:{Z_GN + 576}
    s_mov_b64 exec, s[54:55]
    s_waitcnt lgkmcnt(0)
    s_barrier
    s_waitcnt vmcnt({8})
    """)
    stamp(a, 2)
    filter_table_write(a, NCH, Z_WP, 60, rounds)
    a(f"""
    v_add_f32 v8, v8, v10
    v_add_f32 v9, v9, v11
    v_add_f32 v12, v12, v14
    v_add_f32 v13, v13, v15
    v_add_f32 v16, v16, v18
    v_add_f32 v17, v17, v19
    v_add_f32 v20, v20, v22
    v_add_f32 v21, v21, v23
    v_add_f32 v8, v8, v12
    v_add_f32 v9, v9, v13
    v_add_f32 v16, v16, v20
    v_add_f32 v17, v17, v21
    v_add_f32 v8, v8, v16
    v_add_f32 v9, v9, v17
    v_mul_f32 v8, 0x3b000000, v8
    v_mul_f32 v9, 0x3b000000, v9
    v_fma_f32 v9, -v8, v8, v9
    v_max_f32 v9, 0, v9
    v_add_f32 v9, 0x3727c5ac, v9
    v_rsq_f32 v9, v9
    s_nop 0
    v_cndmask_b32 v9, 0, v9, s[{sM}:{sM+1}]
    v_mul_f32 v8, -1.0, v8
    v_mul_f32 v8, v8, v9
    v_lshlrev_b32 v10, 2, v0
    v_cmp_gt_u32 vcc, 288, v0
    s_and_saveexec_b64 s[54:55], vcc
    ds_write_b32 v10, v9 offset:{Z_RS}
    ds_write_b32 v10, v8 offset:{Z_NM}
    s_mov_b64 exec, s[54:55]
    s_waitcnt lgkmcnt(0)
    s_barrier
    ds_read_b128 v[8:11], v49 offset:{Z_RS}
    ds_read_b128 v[12:15], v49 offset:{Z_RS+16}
    ds_read_b128 v[16:19], v49 offset:{Z_NM}
    ds_read_b128 v[20:23], v49 offset:{Z_NM+16}
    s_waitcnt lgkmcnt(0)
    """)
    for j in range(5):
        d = 24 + 4*j
        for i in range(4):
            t = 56 + 2*(i & 1)
            a(f"v_lshlrev_b32 v{t}, 16, v{d+i}")
            a(f"v_and_b32 v{t+1}, 0xffff0000, v{d+i}")
            a(f"v_fma_f32 v{t}, v{t}, v{8+2*i}, v{16+2*i}")
            a(f"v_fma_f32 v{t+1}, v{t+1}, v{9+2*i}, v{17+2*i}")
            a(f"v_cvt_pk_bf16_f32 v{d+i}, v{t}, v{t+1}")
        a(f"ds_write_b128 v{44+j}, v[{d}:{d+3}] offset:{Z_GN}")
    a("s_waitcnt lgkmcnt(0)")
    a("s_barrier")
    stamp(a, 3)
    vT, vB = 8, 9
    conv_T_addr(a, vT, 12, v_lane, Z_WP)
    a(f"""
    s_mul_i32 s{s_t0}, s{s_wave}, {8*WP_CH}
    v_add_u32 v{vT}, s{s_t0}, v{vT}
    v_and_b32 v12, 15, v{v_lane}
    v_lshlrev_b32 v12, 5, v12                      ; 16*b*2
    v_lshrrev_b32 v13, 4, v{v_lane}                ; g
    v_lshl_add_u32 v{vB}, v13, 4, v12               ; + 8g*2
    s_mul_i32 s{s_t0}, s{s_wave}, {8*Z_PG}
    s_add_u32 s{s_t0}, s{s_t0}, {Z_GN}
    v_add_u32 v{vB}, s{s_t0}, v{vB}
    v_add_u32 v10, {3*WP_CH}, v{vT}
    v_add_u32 v11, {6*WP_CH}, v{vT}
    """)
    D = 112
    vTb = [vT, 10, 11]
    for half in range(2):
        FB = 16
        for c in range(4):
            ch = 4*half + c
            base = FB + 16*c
            for s in range(2):
                for x in conv_T_reads(base + 8*s, vTb[ch // 3], s, ch % 3): a(x)
                a(f"ds_read_b128 v[{base+8*s+4}:{base+8*s+7}], v{vB} offset:{ch*Z_PG + 64*s}")
            if c == 1: a("s_waitcnt lgkmcnt(6)")
            if c == 2: a("s_waitcnt lgkmcnt(9)")
        if half == 0: a("s_waitcnt vmcnt(0)")
        for c in range(4):
            base = FB + 16*c
            a(f"s_waitcnt lgkmcnt({min(15, 6*(3-c))})" if c < 3 else "s_waitcnt lgkmcnt(0)")
            a(f"v_mfma_f32_16x16x32_bf16 v[{D+4*c}:{D+4*c+3}], v[{base}:{base+3}], v[{base+4}:{base+7}], 0")
            a(f"v_mfma_f32_16x16x32_bf16 v[{D+4*c}:{D+4*c+3}], v[{base+8}:{base+11}], v[{base+12}:{base+15}], v[{D+4*c}:{D+4*c+3}]")
        for c in range(4):
            ch = 4*half + c
            u = U + 2*ch; d = D + 4*c
            a(f"""
            v_lshlrev_b32 v84, 16, v{u}
            v_and_b32 v85, 0xffff0000, v{u}
            v_lshlrev_b32 v86, 16, v{u+1}
            v_and_b32 v87, 0xffff0000, v{u+1}
            v_mul_f32 v84, v84, v{d}
            v_mul_f32 v85, v85, v{d+1}
            v_mul_f32 v86, v86, v{d+2}
            v_mul_f32 v87, v87, v{d+3}
            v_cvt_pk_bf16_f32 v{u}, v84, v85
            v_cvt_pk_bf16_f32 v{u+1}, v86, v87
            s_add_u32 s{s_t1}, s{s_l0}, {ch*4096}
            buffer_store_dwordx2 v[{u}:{u+1}], v{vMask}, s[{sO2}:{sO2+3}], s{s_t1} offen
            """)
    a.label("P2_FIN")
    if STAMPS_ON():
        a("s_waitcnt vmcnt(0)")
    stamp(a, 6)
    stamp_flush(a, 58)
    a.label(END)
    a("s_endpgm")
    return a.text(), dict(name=name, vgpr=max(V.hi, V2.hi, 128), sgpr=100, lds=LDS2, grid=256, block=512)
```

```python
from common import *
import common, struct
from p2 import conv_T_addr, build_filter_table, conv_T_reads, WP_CH
def STAMPS_ON(): return common.STAMPS
def f2u(x): return struct.unpack("<I", struct.pack("<f", x))[0]

LDS3 = 4096 + 5 * 24576

def prologue(a, END, ptrs, s_wave, s_xcd, s_idx, phase):
    a(f"s_cmp_ge_u32 s2, 256")
    a(f"s_cbranch_scc1 {END}")
    for reg, nm in ptrs:
        a(f"s_load_dwordx2 s[{reg}:{reg+1}], s[0:1], {KA[nm]}")
    stamp_zero(a)
    if STAMPS_ON():
        a("s_memrealtime s[64:65]")
        a("s_memtime s[66:67]")
    a(f"""
    v_lshrrev_b32 v1, 6, v0
    v_and_b32 v2, 63, v0
    v_readfirstlane_b32 s{s_wave}, v1
    s_and_b32 s{s_xcd}, s2, 7
    s_lshr_b32 s{s_idx}, s2, 3
    s_mov_b32 s58, s{s_wave}
    s_waitcnt lgkmcnt(0)
    """)

def store_T_tile(a, sO, s_rowbase, s_tbase_bytes, s_valid_gran, stg_pitch=272):
    for i in range(2):
        a(f"""
        v_add_u32 v3, {512*i}, v0
        v_lshrrev_b32 v4, 4, v3
        v_and_b32 v5, 15, v3
        v_cmp_gt_u32 vcc, s{s_valid_gran}, v5
        v_lshlrev_b32 v5, 4, v5
        v_mul_u32_u24 v6, {stg_pitch}, v4
        v_add_u32 v6, v6, v5
        ds_read_b128 v[{8+4*i}:{8+4*i+3}], v6
        v_lshl_add_u32 v{40+i}, v4, 12, v5
        v_cndmask_b32 v{40+i}, -1, v{40+i}, vcc
        """)
    a("s_waitcnt lgkmcnt(0)")
    for i in range(2):
        a(f"buffer_store_dwordx4 v[{8+4*i}:{8+4*i+3}], v{40+i}, s[{sO}:{sO+3}], s{s_rowbase} offen")

def gen_p3(name="p3_kernel", abl=()):
    a = Asm('p3_')
    END = "P3_END"
    sA, sB, sO, sS = 8, 12, 16, 20
    s_wave, s_i0, s_i1, s_kc, s_slot, s_cnt, s_t0, s_t1, s_t2 = 36, 37, 38, 39, 40, 41, 42, 43, 44
    s_b0, s_b1, s_l0, s_l1 = 45, 46, 48, 49
    s_b, s_delta, s_neg, s_pos, s_rs = 51, 52, 56, 57, 53
    s_xcd, s_idx = 47, 50
    s_kt, s_ob, s_vg = 24, 25, 26
    v_lane = 2
    RING = 4096
    prologue(a, END, [(4, 'ws'), (6, 'w_mlp_out')], s_wave, s_xcd, s_idx, 2)
    stamp_init(a, 4, 5, 2)
    srd(a, sO, 4, 5, 1024 * 4096, WS_MT)
    a(f"s_cmp_ge_u32 s{s_idx}, 16")
    a("s_cbranch_scc1 P3_LOC")
    A_OFF, B_OFF, STAGE, S, NC = 0, 16384, 24576, 5, 16
    a(f"""
    s_lshr_b32 s{s_b}, s{s_xcd}, 2
    s_and_b32 s{s_i0}, s{s_xcd}, 3
    s_lshl_b32 s{s_i0}, s{s_i0}, 1
    s_lshr_b32 s{s_t0}, s{s_idx}, 3
    s_add_u32 s{s_i0}, s{s_i0}, s{s_t0}            ; tt
    s_and_b32 s{s_i1}, s{s_idx}, 7                 ; ct
    s_lshl_b32 s{s_t0}, s{s_t0}, 2
    s_add_u32 s{s_kt}, s{s_i1}, s{s_t0}
    s_and_b32 s{s_kt}, s{s_kt}, 7
    s_lshl_b32 s{s_kc}, s{s_kt}, 1
    s_lshl_b32 s{s_t0}, s{s_b}, 21
    s_add_u32 s{s_t0}, s{s_t0}, {WS_PT}
    s_add_u32 s{sA}, s4, s{s_t0}
    s_addc_u32 s{sA+1}, s5, 0
    s_mov_b32 s{sA+2}, {1000*2048}
    s_mov_b32 s{sA+3}, 0x20000
    s_mul_i32 s{s_t0}, s{s_b}, {1000*1024}
    s_add_u32 s{s_t0}, s{s_t0}, {WS_VP}
    s_add_u32 s{sB}, s4, s{s_t0}
    s_addc_u32 s{sB+1}, s5, 0
    s_mov_b32 s{sB+2}, {1000*1024}
    s_mov_b32 s{sB+3}, 0x20000
    s_lshl_b32 s{s_ob}, s{s_i1}, 18
    s_mul_i32 s{s_t0}, s{s_b}, 1000
    s_lshl_b32 s{s_t1}, s{s_i0}, 7
    s_add_u32 s{s_t0}, s{s_t0}, s{s_t1}
    s_lshl_b32 s{s_t0}, s{s_t0}, 1
    s_add_u32 s{s_ob}, s{s_ob}, s{s_t0}
    s_sub_u32 s{s_vg}, 1000, s{s_t1}
    s_lshr_b32 s{s_vg}, s{s_vg}, 3
    s_min_u32 s{s_vg}, s{s_vg}, 16
    """)
    if "norot" in abl:
        a(f"s_mov_b32 s{s_kc}, 0")
        a(f"s_mov_b32 s{s_kt}, 0")
    srd(a, sS, 4, 5, 2*8*2*1024*4, WS_SST)
    a(f"s_cmp_ge_u32 s{s_wave}, 4")
    a("s_cbranch_scc1 P3_PV_LOADER")
    V = Alloc(3, 256)
    va = V(4); vb = V(2); vt = V(8, 2)
    fa = [V(4, 4) for _ in range(4)]
    fb = [[V(4, 4) for _ in range(2)] for _ in range(4)]
    tmp = [[V(16, 4) for _ in range(2)] for _ in range(2)]
    acc = [V(16, 4) for _ in range(2)]
    sc = V(16, 4)
    vsc = V(1); tp = V(4, 4); vst = V(1)
    a(f"s_cmp_ge_u32 s{s_wave}, 2")
    a("s_cbranch_scc1 P3_noscale")
    M = tmp[0][0]; Ls = tmp[0][1]
    a(f"""
    s_lshl_b32 s{s_t0}, s{s_i0}, 7
    v_add_u32 v{vt}, s{s_t0}, v0
    v_lshlrev_b32 v{vt}, 2, v{vt}
    s_lshl_b32 s{s_t1}, s{s_b}, 16                 ; b*8*2*1024*4
    """)
    for k in range(8):
        a(f"s_add_u32 s{s_t2}, s{s_t1}, {k*8192}")
        a(f"buffer_load_dword v{M+k}, v{vt}, s[{sS}:{sS+3}], s{s_t2} offen")
        a(f"s_add_u32 s{s_t2}, s{s_t1}, {k*8192 + 4096}")
        a(f"buffer_load_dword v{Ls+k}, v{vt}, s[{sS}:{sS+3}], s{s_t2} offen")
    a("s_waitcnt vmcnt(0)")
    a(f"v_max3_f32 v{vt+1}, v{M}, v{M+1}, v{M+2}")
    a(f"v_max3_f32 v{vt+1}, v{M+3}, v{M+4}, v{vt+1}")
    a(f"v_max3_f32 v{vt+1}, v{M+5}, v{M+6}, v{vt+1}")
    a(f"v_max_f32 v{vt+1}, v{M+7}, v{vt+1}")
    for k in range(8): a(f"v_sub_f32 v{M+k}, v{M+k}, v{vt+1}")
    for k in range(8): a(f"v_exp_f32 v{M+k}, v{M+k}")
    a(f"v_mul_f32 v{vt+2}, v{M}, v{Ls}")
    for k in range(1, 8): a(f"v_fma_f32 v{vt+2}, v{M+k}, v{Ls+k}, v{vt+2}")
    a(f"v_rcp_f32 v{vt+2}, v{vt+2}")
    a(f"v_lshlrev_b32 v{vt+3}, 2, v0")
    for k in range(8):
        a(f"v_mul_f32 v{M+k}, v{M+k}, v{vt+2}")
        a(f"ds_write_b32 v{vt+3}, v{M+k} offset:{k*512}")
    a("s_waitcnt lgkmcnt(0)")
    a.label("P3_noscale")
    r_frag_addrs(a, va, vt, v_lane, s_wave, s_t0, RING + A_OFF)
    t64_frag_addrs(a, vb, vt, v_lane, RING + B_OFF)
    ring = Ring(a, S, STAGE, s_rs, s_delta, s_neg, s_pos); ring.init()
    for b in range(2):
        for i in range(16): a(f"v_mov_b32 v{acc[b]+i}, 0")
    a(f"""
    v_lshrrev_b32 v{vsc}, 5, v{v_lane}
    v_lshlrev_b32 v{vsc}, 4, v{vsc}
    s_lshl_b32 s{s_t0}, s{s_wave}, 7
    v_add_u32 v{vsc}, s{s_t0}, v{vsc}
    """)
    def reads(step, st):
        r = [f"ds_read_b128 v[{fa[st]}:{fa[st]+3}], v{va+step}"]
        for b in range(2): r += tr2(fb[st][b], vb + b, 16*step*128, 128)
        return r
    regs = [va+i for i in range(4)] + [vb, vb+1]
    def mfmas(st, s, ci):
        par = (ci >> 1) & 1
        out = []
        for b in range(2):
            c = "0" if ((ci & 1) == 0 and s == 0) else f"v[{tmp[par][b]}:{tmp[par][b]+15}]"
            out.append(f"v_mfma_f32_32x32x16_bf16 v[{tmp[par][b]}:{tmp[par][b]+15}], v[{fa[st]}:{fa[st]+3}], v[{fb[st][b]}:{fb[st][b]+3}], {c}")
        return out
    def fold(par):
        return [f"v_fma_f32 v{acc[b]+i}, v{tmp[par][b]+i}, v{sc+i}, v{acc[b]+i}" for b in range(2) for i in range(16)]
    def hook(ci, s, last):
        par = (ci >> 1) & 1
        ex = {}
        if (ci & 1) == 0:
            lo, hi = {0: (0, 0), 1: (0, 11), 2: (11, 22), 3: (22, 32)}[s]
            f = fold(par ^ 1)[lo:hi]
            ex = {0: f[:len(f)//2], 1: f[len(f)//2:]}
        else:
            if s == 0:
                ex = {1: [f"s_lshl_b32 s{s_t0}, s{s_kt}, 9", f"v_add_u32 v{vt}, s{s_t0}, v{vsc}"] +
                         [f"ds_read_b128 v[{sc+4*r}:{sc+4*r+3}], v{vt} offset:{32*r}" for r in range(4)] +
                         [f"s_add_u32 s{s_kt}, s{s_kt}, 1", f"s_and_b32 s{s_kt}, s{s_kt}, 7"]}
        return ex
    def pre():
        pass
    for b in range(2):
        for i in range(16): a(f"v_mov_b32 v{tmp[1][b]+i}, 0")
    for i in range(16): a(f"v_mov_b32 v{sc+i}, 0")
    gemm_loop2(a, NC, ring, regs, reads, mfmas, [3, 5], s_cnt, "PV", D=2, per=3, hook=hook, unroll=4,
               first_hook=lambda: stamp(a, 2))
    a("s_waitcnt lgkmcnt(0)")
    for x in fold(1): a(x)
    stamp(a, 3)
    def t_epilogue(acc):
        a(f"""
        v_and_b32 v{vt}, 31, v{v_lane}
        v_mul_u32_u24 v{vst}, 272, v{vt}
        s_lshl_b32 s{s_t0}, s{s_wave}, 6
        v_add_u32 v{vst}, s{s_t0}, v{vst}
        v_lshrrev_b32 v{vt+1}, 5, v{v_lane}
        v_lshl_add_u32 v{vst}, v{vt+1}, 3, v{vst}
        s_barrier
        """)
        for b in range(2):
            for r in range(4):
                x = acc[b] + 4*r
                a(f"v_cvt_pk_bf16_f32 v{tp+2*(r&1)}, v{x}, v{x+1}")
                a(f"v_cvt_pk_bf16_f32 v{tp+2*(r&1)+1}, v{x+2}, v{x+3}")
                a(f"ds_write_b64 v{vst}, v[{tp+2*(r&1)}:{tp+2*(r&1)+1}] offset:{32*b*272 + 8*r*2}")
        a("s_waitcnt lgkmcnt(0)")
        a("s_barrier")
    t_epilogue(acc)
    a("s_branch P3_STORE")
    a.label("P3_PV_LOADER")
    vo, vo2, vt_l = 3, 4, 8
    a(f"s_sub_u32 s{s_wave}, s{s_wave}, 4")
    r_loader_voff(a, vo, vt_l, v_lane, s_wave, s_t0, 2048)
    t64_loader_voff(a, vo2, vt_l, v_lane, 1024)
    a(f"""
    s_lshl_b32 s{s_b0}, s{s_i0}, 7
    s_lshl_b32 s{s_t0}, s{s_wave}, 3
    s_add_u32 s{s_b0}, s{s_b0}, s{s_t0}
    s_lshl_b32 s{s_b0}, s{s_b0}, 11                ; P rows * 2048
    s_lshl_b32 s{s_b1}, s{s_wave}, 14
    s_lshl_b32 s{s_t0}, s{s_i1}, 7
    s_add_u32 s{s_b1}, s{s_b1}, s{s_t0}
    s_lshl_b32 s{s_l0}, s{s_wave}, 10
    s_lshl_b32 s{s_l1}, s{s_wave}, 11
    s_add_u32 s{s_l1}, s{s_l1}, {B_OFF}
    """)
    streams = [
        Stream(sA, [vo]*4, [i*32*2048 for i in range(4)], [A_OFF + i*4096 for i in range(4)], s_b0, 128, s_l0),
        Stream(sB, [vo2]*2, [0, 8*1024], [0, 1024], s_b1, 64*1024, s_l1),
    ]
    stamp(a, 2)
    loader_loop(a, streams, NC, S, STAGE, s_kc, s_slot, s_cnt, s_t0, s_t1, s_t2, lds_base=RING, ahead=3)
    stamp(a, 3)
    a("s_barrier")
    a("s_barrier")
    a("s_branch P3_STORE")

    a.label("P3_LOC")
    A_OFF, B_OFF, STAGE, S, NC = 0, 16384, 24576, 5, 8
    a(f"""
    s_sub_u32 s{s_idx}, s{s_idx}, 16
    s_lshr_b32 s{s_t0}, s{s_idx}, 3
    s_lshl_b32 s{s_i0}, s{s_xcd}, 1
    s_add_u32 s{s_i0}, s{s_i0}, s{s_t0}
    s_and_b32 s{s_i1}, s{s_idx}, 7                 ; ct
    s_lshl_b32 s{s_t0}, s{s_t0}, 2
    s_add_u32 s{s_kc}, s{s_i1}, s{s_t0}
    s_and_b32 s{s_kc}, s{s_kc}, 7
    s_add_u32 s{s_ob}, s{s_i1}, 8
    s_lshl_b32 s{s_ob}, s{s_ob}, 18
    s_lshl_b32 s{s_t1}, s{s_i0}, 7
    s_lshl_b32 s{s_t0}, s{s_t1}, 1
    s_add_u32 s{s_ob}, s{s_ob}, s{s_t0}
    s_sub_u32 s{s_vg}, 2000, s{s_t1}
    s_lshr_b32 s{s_vg}, s{s_vg}, 3
    s_min_u32 s{s_vg}, s{s_vg}, 16
    """)
    if "norot" in abl: a(f"s_mov_b32 s{s_kc}, 0")
    srd(a, sA, 4, 5, 512 * 4096, WS_ZT)
    srd(a, sB, 6, 7, 512 * 1024)
    a(f"s_cmp_ge_u32 s{s_wave}, 4")
    a("s_cbranch_scc1 P3_LOC_LOADER")
    V2 = Alloc(3, 256)
    va = V2(1); vb = V2(2); vt = V2(8, 2)
    fa = [V2(4, 4) for _ in range(4)]
    fb = [[V2(4, 4) for _ in range(2)] for _ in range(4)]
    acc2 = [V2(16, 4) for _ in range(2)]
    tp = V2(4, 4); vst = V2(1)
    t128_frag_addr_blk(a, va, vt, v_lane, RING + A_OFF, s_wave)
    t64_frag_addrs(a, vb, vt, v_lane, RING + B_OFF)
    ring = Ring(a, S, STAGE, s_rs, s_delta, s_neg, s_pos); ring.init()
    for b in range(2):
        for i in range(16): a(f"v_mov_b32 v{acc2[b]+i}, 0")
    def reads2(step, st):
        r = tr2(fa[st], va, 16*step*256, 256)
        for b in range(2): r += tr2(fb[st][b], vb + b, 16*step*128, 128)
        return r
    def mfmas2(st, s, par):
        return [f"v_mfma_f32_32x32x16_bf16 v[{acc2[b]}:{acc2[b]+15}], v[{fa[st]}:{fa[st]+3}], v[{fb[st][b]}:{fb[st][b]+3}], v[{acc2[b]}:{acc2[b]+15}]" for b in range(2)]
    gemm_loop2(a, NC, ring, [va, vb, vb+1], reads2, mfmas2, [4, 6], s_cnt, "L", D=2, per=3, first_hook=lambda: stamp(a, 2))
    stamp(a, 3)
    t_epilogue(acc2)
    a("s_branch P3_STORE")
    a.label("P3_LOC_LOADER")
    a(f"s_sub_u32 s{s_wave}, s{s_wave}, 4")
    t128_loader_voff(a, vo, vt_l, v_lane, 4096)
    t64_loader_voff(a, vo2, vt_l, v_lane, 1024)
    a(f"""
    s_lshl_b32 s{s_b0}, s{s_wave}, 16              ; 16 rows * 4096
    s_lshl_b32 s{s_t0}, s{s_i0}, 8                 ; 128 tokens * 2 B
    s_add_u32 s{s_b0}, s{s_b0}, s{s_t0}
    s_lshl_b32 s{s_b1}, s{s_wave}, 14
    s_lshl_b32 s{s_t0}, s{s_i1}, 7
    s_add_u32 s{s_b1}, s{s_b1}, s{s_t0}
    s_lshl_b32 s{s_l0}, s{s_wave}, 12              ; 16 rows * 256 B
    s_lshl_b32 s{s_l1}, s{s_wave}, 11
    s_add_u32 s{s_l1}, s{s_l1}, {B_OFF}
    """)
    streams = [
        Stream(sA, [vo]*4, [i*4*4096 for i in range(4)], [A_OFF + i*1024 for i in range(4)], s_b0, 64*4096, s_l0),
        Stream(sB, [vo2]*2, [0, 8*1024], [0, 1024], s_b1, 64*1024, s_l1),
    ]
    stamp(a, 2)
    loader_loop(a, streams, NC, S, STAGE, s_kc, s_slot, s_cnt, s_t0, s_t1, s_t2, lds_base=RING, ahead=3)
    stamp(a, 3)
    a("s_barrier")
    a("s_barrier")
    a.label("P3_STORE")
    store_T_tile(a, sO, s_ob, None, s_vg)
    if STAMPS_ON():
        a("s_waitcnt vmcnt(0)")
    stamp(a, 6)
    stamp_flush(a, 58)
    a.label(END)
    a("s_endpgm")
    return a.text(), dict(name=name, vgpr=max(V.hi, V2.hi, 64), sgpr=100, lds=LDS3, grid=256, block=512)


def gen_p3b(name="p3b_kernel"):
    a = Asm('p3b_')
    END = "P3B_END"
    sM, sO, sD = 8, 12, 16
    s_wave, s_xcd, s_idx, s_t0, s_t1, s_t2, s_c, s_b = 36, 37, 38, 42, 43, 44, 45, 46
    v_lane = 2
    prologue(a, END, [(4, 'ws'), (6, 'dw_merge')], s_wave, s_xcd, s_idx, 3)
    stamp_init(a, 4, 5, 3)
    srd(a, sM, 4, 5, 1024 * 4096, WS_MT)
    srd(a, sO, 4, 5, 1024 * 4096, WS_MPT)
    srd(a, sD, 6, 7, 31 * 2048)
    WP = 0
    a(f"""
    s_lshl_b32 s{s_c}, s2, 2                        ; c0 = 4*wg
    s_lshr_b32 s{s_b}, s{s_wave}, 2
    s_and_b32 s{s_t0}, s{s_wave}, 3
    s_add_u32 s{s_t1}, s{s_c}, s{s_t0}              ; channel
    s_lshl_b32 s{s_t1}, s{s_t1}, 12
    s_mul_i32 s{s_t2}, s{s_b}, 2000
    s_add_u32 s47, s{s_t1}, s{s_t2}
    """)
    vB, vG = 3, 4
    a(f"""
    v_and_b32 v5, 15, v{v_lane}
    v_lshrrev_b32 v6, 4, v{v_lane}                  ; g
    v_lshlrev_b32 v7, 4, v5                         ; 16 b
    v_lshl_add_u32 v{vB}, v6, 3, v7
    v_lshl_add_u32 v{vG}, v6, 2, v7                  ; 16b + 4g
    """)
    F = 24
    R = 56
    O = 64
    for grp in range(4):
        for s in range(2):
            a(f"""
            v_add_u32 v8, {256*grp - 16 + 32*s + 4096}, v{vB}
            v_subrev_u32 v8, 4096, v8
            v_cmp_gt_u32 vcc, 1000, v8
            v_lshlrev_b32 v8, 1, v8
            v_cndmask_b32 v8, -1, v8, vcc
            buffer_load_dwordx4 v[{F+8*grp+4*s}:{F+8*grp+4*s+3}], v8, s[{sM}:{sM+3}], s47 offen
            """)
        a(f"""
        v_add_u32 v8, {256*grp}, v{vG}
        v_cmp_gt_u32 vcc, 1000, v8
        v_lshlrev_b32 v8, 1, v8
        v_cndmask_b32 v{O+grp}, -1, v8, vcc
        buffer_load_dwordx2 v[{R+2*grp}:{R+2*grp+1}], v{O+grp}, s[{sM}:{sM+3}], s47 offen
        """)
    a(f"s_lshl_b32 s{s_t2}, s{s_c}, 1")
    build_filter_table(a, sD, s_t2, 4, 2048, WP, 72, s_t0)
    a("s_waitcnt lgkmcnt(0)")
    a("s_barrier")
    vT = 9
    conv_T_addr(a, vT, 10, v_lane, WP)
    a(f"""
    s_and_b32 s{s_t0}, s{s_wave}, 3
    s_mul_i32 s{s_t0}, s{s_t0}, {WP_CH}
    v_add_u32 v{vT}, s{s_t0}, v{vT}
    """)
    for x in conv_T_reads(12, vT, 0) + conv_T_reads(16, vT, 1): a(x)
    D = 88
    for grp in range(4):
        r = R + 2*grp; d = D + 4*grp
        a(f"""
        v_lshlrev_b32 v{d}, 16, v{r}
        v_and_b32 v{d+1}, 0xffff0000, v{r}
        v_lshlrev_b32 v{d+2}, 16, v{r+1}
        v_and_b32 v{d+3}, 0xffff0000, v{r+1}
        """)
    a("s_waitcnt lgkmcnt(0)")
    for s in range(2):
        for grp in range(4):
            d = D + 4*grp
            a(f"v_mfma_f32_16x16x32_bf16 v[{d}:{d+3}], v[{12+4*s}:{12+4*s+3}], v[{F+8*grp+4*s}:{F+8*grp+4*s+3}], v[{d}:{d+3}]")
    for grp in range(4):
        d = D + 4*grp; r = R + 2*grp
        a(f"v_cvt_pk_bf16_f32 v{r}, v{d}, v{d+1}")
        a(f"v_cvt_pk_bf16_f32 v{r+1}, v{d+2}, v{d+3}")
        a(f"buffer_store_dwordx2 v[{r}:{r+1}], v{O+grp}, s[{sO}:{sO+3}], s47 offen")
    if STAMPS_ON():
        a("s_waitcnt vmcnt(0)")
    stamp(a, 6)
    stamp_flush(a, 58)
    a.label(END)
    a("s_endpgm")
    return a.text(), dict(name=name, vgpr=108, sgpr=100, lds=2048, grid=256, block=512)


def gen_p4(name="p4_kernel", abl=()):
    a = Asm('p4_')
    END = "P4_END"
    sA, sB, sO, sX = 8, 12, 16, 20
    s_wave, s_i0, s_i1, s_kc, s_slot, s_cnt, s_t0, s_t1, s_t2 = 36, 37, 38, 39, 40, 41, 42, 43, 44
    s_b0, s_b1, s_l0, s_l1 = 45, 46, 48, 49
    s_delta, s_neg, s_pos, s_rs = 52, 56, 57, 53
    s_xcd, s_idx, s_wn, s_wt = 47, 50, 24, 25
    v_lane = 2
    A_OFF, B_OFF, STAGE, S, NC = 0, 8192, 16384, 6, 16
    prologue(a, END, [(4, 'ws'), (6, 'w_merge'), (32, 'x'), (34, 'out')], s_wave, s_xcd, s_idx, 4)
    stamp_init(a, 4, 5, 4)
    a(f"""
    s_lshr_b32 s{s_t0}, s{s_idx}, 3
    s_lshl_b32 s{s_i0}, s{s_xcd}, 2
    s_add_u32 s{s_i0}, s{s_i0}, s{s_t0}
    s_and_b32 s{s_i1}, s{s_idx}, 7                 ; nt
    s_lshl_b32 s{s_t0}, s{s_t0}, 2
    s_lshl_b32 s{s_kc}, s{s_i1}, 1
    s_add_u32 s{s_kc}, s{s_kc}, s{s_t0}
    s_and_b32 s{s_kc}, s{s_kc}, 15
    """)
    if "norot" in abl: a(f"s_mov_b32 s{s_kc}, 0")
    srd(a, sA, 6, 7, 1024 * 1024)
    srd(a, sB, 4, 5, 1024 * 4096, WS_MPT)
    srd(a, sO, 34, 35, 2000 * 1024)
    srd(a, sX, 32, 33, 2000 * 1024)
    a(f"""
    v_lshrrev_b32 v4, 3, v0
    v_and_b32 v5, 7, v0
    v_lshlrev_b32 v5, 4, v5
    v_lshl_add_u32 v70, v4, 10, v5
    s_lshl_b32 s{s_t1}, s{s_i0}, 16              ; tt*64*1024
    s_lshl_b32 s{s_t2}, s{s_i1}, 7
    s_add_u32 s26, s{s_t1}, s{s_t2}
    """)
    a(f"s_cmp_ge_u32 s{s_wave}, 4")
    a("s_cbranch_scc1 P4_LOADER")
    V = Alloc(3, 68)
    va = V(1); vb = V(1); vt = V(8, 2)
    fa = [V(4, 4) for _ in range(4)]
    fb = [V(4, 4) for _ in range(4)]
    acc = V(16, 4)
    vst = V(1)
    a(f"s_and_b32 s{s_wn}, s{s_wave}, 1")
    a(f"s_lshr_b32 s{s_wt}, s{s_wave}, 1")
    t64_frag_addr_blk(a, va, vt, v_lane, A_OFF, s_wn, s_t0)
    t64_frag_addr_blk(a, vb, vt, v_lane, B_OFF, s_wt, s_t0)
    ring = Ring(a, S, STAGE, s_rs, s_delta, s_neg, s_pos); ring.init()
    for i in range(16): a(f"v_mov_b32 v{acc+i}, 0")
    def reads(step, st):
        return tr2(fa[st], va, 16*step*128, 128) + tr2(fb[st], vb, 16*step*128, 128)
    def mfmas(st, s, par):
        return [f"v_mfma_f32_32x32x16_bf16 v[{acc}:{acc+15}], v[{fa[st]}:{fa[st]+3}], v[{fb[st]}:{fb[st]+3}], v[{acc}:{acc+15}]"]
    gemm_loop2(a, NC, ring, [va, vb], reads, mfmas, [4], s_cnt, "M", D=4, per=4, first_hook=lambda: stamp(a, 2))
    stamp(a, 3)
    a(f"""
    v_and_b32 v{vt}, 31, v{v_lane}
    s_lshl_b32 s{s_t0}, s{s_wt}, 5
    v_add_u32 v{vt}, s{s_t0}, v{vt}
    v_mul_u32_u24 v{vst}, 272, v{vt}
    s_lshl_b32 s{s_t0}, s{s_wn}, 7
    v_add_u32 v{vst}, s{s_t0}, v{vst}
    v_lshrrev_b32 v{vt+1}, 5, v{v_lane}
    v_lshl_add_u32 v{vst}, v{vt+1}, 4, v{vst}
    s_barrier
    """)
    for r in range(4):
        a(f"ds_write_b128 v{vst}, v[{acc+4*r}:{acc+4*r+3}] offset:{32*r}")
    a("s_waitcnt lgkmcnt(0)")
    a("s_barrier")
    a("s_branch P4_STORE")
    a.label("P4_LOADER")
    vo, vo2, vt_l = 3, 4, 8
    a(f"s_sub_u32 s{s_wave}, s{s_wave}, 4")
    t64_loader_voff(a, vo, vt_l, v_lane, 1024)
    t64_loader_voff(a, vo2, vt_l, v_lane, 4096)
    a(f"""
    s_lshl_b32 s{s_b0}, s{s_wave}, 14              ; 16 rows * 1024
    s_lshl_b32 s{s_t0}, s{s_i1}, 7
    s_add_u32 s{s_b0}, s{s_b0}, s{s_t0}
    s_lshl_b32 s{s_b1}, s{s_wave}, 16              ; 16 rows * 4096
    s_lshl_b32 s{s_t0}, s{s_i0}, 7                 ; 64 tokens * 2 B
    s_add_u32 s{s_b1}, s{s_b1}, s{s_t0}
    s_lshl_b32 s{s_l0}, s{s_wave}, 11
    s_add_u32 s{s_l1}, s{s_l0}, {B_OFF}
    """)
    streams = [
        Stream(sB, [vo2]*2, [0, 8*4096], [0, 1024], s_b1, 64*4096, s_l1),
        Stream(sA, [vo]*2, [0, 8*1024], [0, 1024], s_b0, 64*1024, s_l0),
    ]
    stamp(a, 2)
    loader_loop(a, streams, NC, S, STAGE, s_kc, s_slot, s_cnt, s_t0, s_t1, s_t2, ahead=(2 if 'ah2' in abl else 4))
    stamp(a, 3)
    a("s_barrier")
    a("s_barrier")
    a.label("P4_STORE")
    a(f"""
    buffer_load_dwordx4 v[20:23], v70, s[{sX}:{sX+3}], s26 offen
    v_lshrrev_b32 v4, 3, v0
    v_and_b32 v5, 7, v0
    v_mul_u32_u24 v6, 272, v4
    v_lshl_add_u32 v6, v5, 5, v6
    ds_read_b128 v[8:11], v6
    ds_read_b128 v[12:15], v6 offset:16
    s_waitcnt vmcnt(0) lgkmcnt(0)
    """)
    for i in range(4):
        a(f"""
        v_lshlrev_b32 v24, 16, v{20+i}
        v_and_b32 v25, 0xffff0000, v{20+i}
        v_add_f32 v24, v24, v{8+2*i}
        v_add_f32 v25, v25, v{9+2*i}
        v_cvt_pk_bf16_f32 v{20+i}, v24, v25
        """)
    a(f"buffer_store_dwordx4 v[20:23], v70, s[{sO}:{sO+3}], s26 offen")
    if STAMPS_ON():
        a("s_waitcnt vmcnt(0)")
    stamp(a, 6)
    stamp_flush(a, 58)
    a.label(END)
    a("s_endpgm")
    return a.text(), dict(name=name, vgpr=72, sgpr=100, lds=S*STAGE, grid=256, block=512)
```

```python
from common import *
import common, struct
def STAMPS_ON(): return common.STAMPS
def f2u(x): return struct.unpack("<I", struct.pack("<f", x))[0]

X_OFF, WQ_OFF, WM_OFF, STAGE = 0, 16384, 16384 + 12288, 36864
S1, NC1 = 4, 8
T_RSTD, T_NMR, T_CS, T_CS4 = 0, 512, 1024, 1536
RING = 2048
LDS1 = RING + S1 * STAGE
STG_Q, PQ = RING, 208
STG_M, PM = RING + 128 * 208, 272
STG_P = STG_M + 64 * 272

LOG2E = 1.4426950408889634
kA = -2.0 * 0.7978845608028654 * LOG2E
kB = kA * 0.044715

def gen_p1(name="p1_kernel", abl=()):
    a = Asm('p1_')
    END = "P1_END"
    sX, sWQ, sWM, sQKV, sUG, sGS = 8, 12, 16, 20, 24, 28
    s_wave, s_rt, s_ct, s_kc, s_slot, s_cnt, s_t0, s_t1, s_t2 = 36, 37, 38, 39, 40, 41, 42, 43, 44
    s_bx, s_bq, s_bm, s_lx, s_lq, s_lm = 45, 46, 47, 48, 49, 50
    s_ones, s_delta, s_neg, s_pos, s_rs = 51, 52, 56, 57, 53
    v_lane = 2
    a(f"""
    s_cmp_ge_u32 s2, 256
    s_cbranch_scc1 {END}
    s_load_dwordx2 s[4:5], s[0:1], {KA['x']}
    s_load_dwordx2 s[6:7], s[0:1], {KA['w_qkv']}
    s_load_dwordx2 s[32:33], s[0:1], {KA['w_mlp_in']}
    s_load_dwordx2 s[34:35], s[0:1], {KA['ws']}
    """)
    stamp_zero(a)
    if STAMPS_ON():
        a("s_memrealtime s[64:65]")
        a("s_memtime s[66:67]")
    a(f"""
    v_lshrrev_b32 v1, 6, v0
    v_and_b32 v2, 63, v0
    v_readfirstlane_b32 s{s_wave}, v1
    s_and_b32 s{s_t0}, s2, 7
    s_lshr_b32 s{s_t1}, s2, 3
    s_lshr_b32 s{s_rt}, s{s_t0}, 1
    s_lshl_b32 s{s_rt}, s{s_rt}, 2
    s_and_b32 s{s_t2}, s{s_t1}, 3
    s_add_u32 s{s_rt}, s{s_rt}, s{s_t2}
    s_and_b32 s{s_ct}, s{s_t0}, 1
    s_lshl_b32 s{s_ct}, s{s_ct}, 3
    s_lshr_b32 s{s_kc}, s{s_t1}, 2
    s_add_u32 s{s_ct}, s{s_ct}, s{s_kc}
    s_lshl_b32 s{s_t2}, s{s_t2}, 1
    s_add_u32 s{s_kc}, s{s_kc}, s{s_t2}
    s_and_b32 s{s_kc}, s{s_kc}, 7
    s_mov_b32 s58, s{s_wave}
    s_cmp_ge_u32 s{s_wave}, 8
    s_cbranch_scc1 P1_STATS
    s_cmp_ge_u32 s{s_wave}, 4
    s_cbranch_scc1 P1_LOADER
    """)
    def out_srds():
        srd(a, sQKV, 34, 35, 2000 * 3072, WS_QKV)
        srd(a, sUG, 34, 35, 1024 * 4096, WS_UG)
        srd(a, sGS, 34, 35, 8 * 2 * 2048 * 4, WS_GST)
        stamp_init(a, 34, 35, 0)
    ring = Ring(a, S1, STAGE, s_rs, s_delta, s_neg, s_pos)

    V = Alloc(3, 168)
    vxa = V(4); vwq = V(1); vwm = V(2)
    vt = V(8, 2)
    fbase = V(48, 4)
    fx = [fbase, fbase + 4]
    fw = [[fbase + 8 + 20*st + 4*b for b in range(5)] for st in range(2)]
    acc = [V(16, 4) for _ in range(5)]
    csa = V(16, 4); vones = V(2, 2)
    r_frag_addrs(a, vxa, vt, v_lane, s_wave, s_t0, RING + X_OFF)
    t_frag_common(a, vt, v_lane)
    a(f"""
    v_mul_u32_u24 v{vwq}, 192, v{vt}
    v_add_u32 v{vwq}, v{vwq}, v{vt+2}
    v_add_u32 v{vwq}, {RING}, v{vwq}
    """)
    t64_frag_addrs(a, vwm, vt, v_lane, RING)
    ring.init()
    for b in range(5):
        for i in range(16): a(f"v_mov_b32 v{acc[b]+i}, 0")
    for i in range(16): a(f"v_mov_b32 v{csa+i}, 0")
    a(f"v_mov_b32 v{vones}, 0x3f803f80")
    a(f"v_mov_b32 v{vones+1}, 0x3f803f80")
    a("s_waitcnt lgkmcnt(0)")
    out_srds()
    def mk_cs_hook(w):
        def cs_hook(ci, s, last):
            if "nocs" in abl: return None
            st = s & 1
            T = "v_mfma_f32_4x4x4_16b_bf16"
            def colsum(dst, f): return f"{T} v[{dst}:{dst+3}], v[{vones}:{vones+1}], v[{f}:{f+1}], v[{dst}:{dst+3}]"
            def gram(dst, f): return f"{T} v[{dst}:{dst+3}], v[{f}:{f+1}], v[{f}:{f+1}], v[{dst}:{dst+3}]"
            x = fx[st]; fo = fw[st][w]; f4 = fw[st][4]
            ex = {0: [colsum(csa + 8, x), gram(csa + 12, x)],
                  1: [colsum(csa + 8, x + 2), gram(csa + 12, x + 2)],
                  3: [colsum(csa, fo)],
                  4: [colsum(csa, fo + 2)]}
            if s == w:
                ex[4] = [colsum(csa + 4, f4), colsum(csa, fo + 2), "s_nop 0", colsum(csa + 4, f4 + 2)]
            return ex
        return cs_hook
    def reads(step, st):
        r = [f"ds_read_b128 v[{fx[st]}:{fx[st]+3}], v{vxa+step}"]
        for b in range(3): r += tr2(fw[st][b], vwq, WQ_OFF + 16*step*192 + 64*b, 192)
        for b in range(2): r += tr2(fw[st][3+b], vwm + b, WM_OFF + 16*step*128, 128)
        return r
    def mfmas(st, s, ci):
        m = []
        if "nomfma" in abl: return ["s_nop 0"] * 5
        for b in range(3):
            m.append(f"v_mfma_f32_32x32x16_bf16 v[{acc[b]}:{acc[b]+15}], v[{fw[st][b]}:{fw[st][b]+3}], v[{fx[st]}:{fx[st]+3}], v[{acc[b]}:{acc[b]+15}]")
        for b in range(3, 5):
            m.append(f"v_mfma_f32_32x32x16_bf16 v[{acc[b]}:{acc[b]+15}], v[{fx[st]}:{fx[st]+3}], v[{fw[st][b]}:{fw[st][b]+3}], v[{acc[b]}:{acc[b]+15}]")
        return m
    nvar = 1 if "nocs" in abl else 4
    for w in range(nvar):
        if w < nvar - 1:
            a(f"s_cmp_lg_u32 s{s_wave}, {w}")
            a(f"s_cbranch_scc1 P1_var{w+1}")
        gemm_loop2(a, NC1, ring, [vxa, vxa+1, vxa+2, vxa+3, vwq, vwm, vwm+1], reads, mfmas, [3, 5, 7, 9, 11], s_cnt, f"P1w{w}",
                   D=1, per=4, hook=mk_cs_hook(w), first_hook=lambda: stamp(a, 2))
        if w < nvar - 1:
            a("s_branch P1_mdone")
            a.label(f"P1_var{w+1}")
    a.label("P1_mdone")
    stamp(a, 3)
    a(f"""
    v_and_b32 v{vt+1}, 3, v{v_lane}
    v_cmp_eq_u32 vcc, 1, v{vt+1}
    v_cndmask_b32 v{csa+12}, v{csa+12}, v{csa+13}, vcc
    v_cmp_eq_u32 vcc, 2, v{vt+1}
    v_cndmask_b32 v{csa+12}, v{csa+12}, v{csa+14}, vcc
    v_cmp_eq_u32 vcc, 3, v{vt+1}
    v_cndmask_b32 v{csa+12}, v{csa+12}, v{csa+15}, vcc
    v_mov_b32 v{csa+1}, v{csa}
    v_mov_b32 v{csa+5}, v{csa+4}
    v_mov_b32 v{csa+9}, v{csa+8}
    v_mov_b32 v{csa+13}, v{csa+12}
    s_nop 1
    v_permlane32_swap_b32 v{csa}, v{csa+1}
    v_permlane32_swap_b32 v{csa+4}, v{csa+5}
    v_permlane32_swap_b32 v{csa+8}, v{csa+9}
    v_permlane32_swap_b32 v{csa+12}, v{csa+13}
    v_add_f32 v{csa}, v{csa}, v{csa+1}
    v_add_f32 v{csa+4}, v{csa+4}, v{csa+5}
    v_add_f32 v{csa+8}, v{csa+8}, v{csa+9}
    v_add_f32 v{csa+12}, v{csa+12}, v{csa+13}
    v_mul_f32 v{csa+8}, 0x3b000000, v{csa+8}               ; mean
    v_mul_f32 v{csa+12}, 0x3b000000, v{csa+12}             ; E[x^2]
    v_fma_f32 v{csa+12}, -v{csa+8}, v{csa+8}, v{csa+12}
    v_max_f32 v{csa+12}, 0, v{csa+12}
    v_add_f32 v{csa+12}, 0x3727c5ac, v{csa+12}
    v_rsq_f32 v{csa+10}, v{csa+12}                          ; rstd
    v_mul_f32 v{csa+11}, -1.0, v{csa+8}
    v_and_b32 v{vt}, 31, v{v_lane}
    v_mul_f32 v{csa+11}, v{csa+11}, v{csa+10}               ; -mean*rstd
    s_lshl_b32 s{s_t0}, s{s_wave}, 5
    v_add_u32 v{vt}, s{s_t0}, v{vt}
    v_lshlrev_b32 v{vt}, 2, v{vt}
    ds_write_b32 v{vt}, v{csa} offset:{T_CS}
    ds_write_b32 v{vt}, v{csa+4} offset:{T_CS4}
    ds_write_b32 v{vt}, v{csa+10} offset:{T_RSTD}
    ds_write_b32 v{vt}, v{csa+11} offset:{T_NMR}
    s_waitcnt lgkmcnt(0)
    """)
    a("s_barrier")
    stamp(a, 4)
    e = Alloc(fbase, fbase + 48)
    rs = e(16, 4); nm = e(16, 4); tp = e(4, 4); vcsl = e(2, 2); g2 = e(4, 4)
    t0 = vt; vh16 = vt + 2; vstq = vt + 3; vtk = vt + 4; v_rstd = vxa; v_nmr = vxa + 2
    a(f"""
    v_lshrrev_b32 v{vh16}, 5, v{v_lane}
    v_lshlrev_b32 v{vh16}, 4, v{vh16}            ; h*16
    s_lshl_b32 s{s_t0}, s{s_wave}, 7             ; 32w tokens * 4 B
    v_add_u32 v{vtk}, s{s_t0}, v{vh16}
    v_and_b32 v{t0}, 31, v{v_lane}
    v_lshlrev_b32 v{t0+1}, 2, v{t0}
    ds_read_b32 v{vcsl}, v{t0+1} offset:{T_CS + 96*4}
    ds_read_b32 v{vcsl+1}, v{t0+1} offset:{T_CS4}
    ds_read_b32 v{g2}, v{t0+1} offset:{T_CS4 + 128}
    ds_read_b32 v{g2+1}, v{t0+1} offset:{T_CS4 + 256}
    ds_read_b32 v{g2+2}, v{t0+1} offset:{T_CS4 + 384}
    """)
    for r in range(4):
        a(f"ds_read_b128 v[{rs+4*r}:{rs+4*r+3}], v{vtk} offset:{T_RSTD + 8*r*4}")
        a(f"ds_read_b128 v[{nm+4*r}:{nm+4*r+3}], v{vtk} offset:{T_NMR + 8*r*4}")
    a(f"""
    v_mul_u32_u24 v{vstq}, {PM}, v{t0}
    s_lshl_b32 s{s_t0}, s{s_wave}, 6             ; 32w tokens * 2 B
    v_add_u32 v{vstq}, s{s_t0}, v{vstq}
    v_lshrrev_b32 v{t0+1}, 1, v{vh16}
    v_add_u32 v{vstq}, v{vstq}, v{t0+1}
    s_waitcnt lgkmcnt(0)
    v_add_f32 v{vcsl+1}, v{vcsl+1}, v{g2}
    v_add_f32 v{g2+1}, v{g2+1}, v{g2+2}
    v_add_f32 v{vcsl+1}, v{vcsl+1}, v{g2+1}
    """)
    for b in range(2):
        for r in range(4):
            for p in range(2):
                x = acc[3+b] + 4*r + 2*p; g = g2 + 2*p
                a(f"v_pk_mul_f32 v[{g}:{g+1}], v[{nm+4*r+2*p}:{nm+4*r+2*p+1}], v[{vcsl}:{vcsl+1}] op_sel:[0,{b}] op_sel_hi:[1,{b}]")
                a(f"v_pk_fma_f32 v[{x}:{x+1}], v[{x}:{x+1}], v[{rs+4*r+2*p}:{rs+4*r+2*p+1}], v[{g}:{g+1}]")
            x = acc[3+b] + 4*r
            a(f"v_cvt_pk_bf16_f32 v{tp+2*(r&1)}, v{x}, v{x+1}")
            a(f"v_cvt_pk_bf16_f32 v{tp+2*(r&1)+1}, v{x+2}, v{x+3}")
            a(f"ds_write_b64 v{vstq}, v[{tp+2*(r&1)}:{tp+2*(r&1)+1}] offset:{STG_M + 32*b*PM + 8*r*2}")
    a("s_waitcnt lgkmcnt(0)")
    a("s_barrier")
    csr = rs
    v_rn = csa + 10
    a(f"""
    v_and_b32 v{t0}, 31, v{v_lane}
    s_lshl_b32 s{s_t0}, s{s_wave}, 5
    v_add_u32 v{vstq}, s{s_t0}, v{t0}
    v_mul_u32_u24 v{vstq}, {PQ}, v{vstq}
    v_lshrrev_b32 v{t0}, 1, v{vh16}
    v_add_u32 v{vstq}, v{vstq}, v{t0}
    """)
    bufs = [rs, nm]
    for r in range(4):
        a(f"ds_read_b128 v[{bufs[0]+4*r}:{bufs[0]+4*r+3}], v{vh16} offset:{T_CS + 8*r*4}")
    for b in range(3):
        cur = bufs[b & 1]
        if b < 2:
            for r in range(4):
                a(f"ds_read_b128 v[{bufs[(b+1)&1]+4*r}:{bufs[(b+1)&1]+4*r+3}], v{vh16} offset:{T_CS + (32*(b+1) + 8*r)*4}")
            a("s_waitcnt lgkmcnt(4)")
        else:
            a("s_waitcnt lgkmcnt(0)")
        for r in range(4):
            for p in range(2):
                c = cur + 4*r + 2*p; x = acc[b] + 4*r + 2*p
                a(f"v_pk_mul_f32 v[{c}:{c+1}], v[{c}:{c+1}], v[{v_rn}:{v_rn+1}] op_sel:[0,1] op_sel_hi:[1,1]")
                a(f"v_pk_fma_f32 v[{x}:{x+1}], v[{x}:{x+1}], v[{v_rn}:{v_rn+1}], v[{c}:{c+1}] op_sel_hi:[1,0,1]")
            x = acc[b] + 4*r
            a(f"v_cvt_pk_bf16_f32 v{tp+2*(r&1)}, v{x}, v{x+1}")
            a(f"v_cvt_pk_bf16_f32 v{tp+2*(r&1)+1}, v{x+2}, v{x+3}")
            a(f"ds_write_b64 v{vstq}, v[{tp+2*(r&1)}:{tp+2*(r&1)+1}] offset:{STG_Q + (32*b + 8*r)*2}")
    a("s_waitcnt lgkmcnt(0)")
    stamp(a, 5)
    a("s_barrier")
    a("s_branch P1_STORE")

    def cs_final(l_cs, ng, lt, col_sgpr_list):
        for g in range(ng):
            a(f"""
            v_mov_b32 v{lt+4}, v{l_cs+g}
            s_nop 1
            v_permlane16_swap_b32 v{l_cs+g}, v{lt+4}
            v_add_f32 v{l_cs+g}, v{l_cs+g}, v{lt+4}
            v_mov_b32 v{lt+4}, v{l_cs+g}
            s_nop 1
            v_permlane32_swap_b32 v{l_cs+g}, v{lt+4}
            v_add_f32 v{l_cs+g}, v{l_cs+g}, v{lt+4}
            """)
    def grp_lane(lt):
        a(f"""
        v_lshrrev_b32 v{lt}, 4, v{v_lane}
        v_lshlrev_b32 v{lt}, 2, v{lt}
        v_bfe_u32 v{lt+1}, v{v_lane}, 2, 2
        v_add_u32 v{lt}, v{lt}, v{lt+1}
        v_and_b32 v{lt+1}, 3, v{v_lane}
        v_lshlrev_b32 v{lt+1}, 3, v{lt+1}
        """)

    a.label("P1_LOADER")
    vx, vq, vm = 3, 4, 7
    vt = 8
    a(f"s_sub_u32 s{s_wave}, s{s_wave}, 4")
    r_loader_voff(a, vx, vt, v_lane, s_wave, s_t0, 1024)
    a(f"""
    s_lshl_b32 s{s_bx}, s{s_rt}, 17              ; rt*128*1024
    s_lshl_b32 s{s_t0}, s{s_wave}, 13            ; 8 rows * 1024 * w
    s_add_u32 s{s_bx}, s{s_bx}, s{s_t0}
    s_lshl_b32 s{s_lx}, s{s_wave}, 10
    """)
    t64_loader_voff(a, vm, vt, v_lane, 2048)
    for jj in range(3):
        a(f"""
        v_add_u32 v{vt}, {64*jj}, v{v_lane}
        v_mul_u32_u24 v{vt+1}, 43691, v{vt}
        v_lshrrev_b32 v{vt+1}, 19, v{vt+1}          ; row = f/12
        v_mul_u32_u24 v{vt+2}, 12, v{vt+1}
        v_sub_u32 v{vt+2}, v{vt}, v{vt+2}           ; slot
        v_lshlrev_b32 v{vt+2}, 4, v{vt+2}
        v_mul_u32_u24 v{vt+1}, 3072, v{vt+1}
        v_add_u32 v{vq+jj}, v{vt+1}, v{vt+2}
        """)
    a(f"""
    s_mul_i32 s{s_bq}, s{s_wave}, {16*3072}
    s_mul_i32 s{s_t0}, s{s_ct}, 192
    s_add_u32 s{s_bq}, s{s_bq}, s{s_t0}
    s_mul_i32 s{s_bm}, s{s_wave}, {16*2048}
    s_lshl_b32 s{s_t0}, s{s_ct}, 7
    s_add_u32 s{s_bm}, s{s_bm}, s{s_t0}
    s_mul_i32 s{s_lq}, s{s_wave}, 3072
    s_add_u32 s{s_lq}, s{s_lq}, {WQ_OFF}
    s_lshl_b32 s{s_lm}, s{s_wave}, 11
    s_add_u32 s{s_lm}, s{s_lm}, {WM_OFF}
    s_waitcnt lgkmcnt(0)
    """)
    srd(a, sX, 4, 5, 2000 * 1024)
    srd(a, sWQ, 6, 7, 512 * 3072)
    srd(a, sWM, 32, 33, 512 * 2048)
    streams = [
        Stream(sX, [vx]*4, [i*32*1024 for i in range(4)], [X_OFF + i*4096 for i in range(4)], s_bx, 128, s_lx),
        Stream(sWQ, [vq, vq+1, vq+2], [0, 0, 0], [0, 1024, 2048], s_bq, 64*3072, s_lq),
        Stream(sWM, [vm, vm], [0, 8*2048], [0, 1024], s_bm, 64*2048, s_lm),
    ]
    def hook():
        out_srds()
    stamp(a, 2)
    loader_loop(a, streams, NC1, S1, STAGE, s_kc, s_slot, s_cnt, s_t0, s_t1, s_t2, lds_base=RING, hook=hook,
                ahead=(3 if 'ah3' in abl else 2))
    stamp(a, 3)
    a("s_branch P1_HELP_EPI")

    a.label("P1_STATS")
    if "nopf" not in abl:
        a(f"""
        s_load_dwordx2 s[8:9], s[0:1], {KA['w_att_out']}
        s_load_dwordx2 s[12:13], s[0:1], {KA['w_mlp_out']}
        s_load_dwordx2 s[16:17], s[0:1], {KA['w_merge']}
        """)
    a("s_waitcnt lgkmcnt(0)")
    out_srds()
    stamp(a, 2)
    a("s_barrier")
    a("s_barrier")
    a("s_barrier")
    if "nopf" not in abl:
        a(f"""
        s_mov_b32 s10, {512*1024}
        s_mov_b32 s11, 0x20000
        s_mov_b32 s14, {512*1024}
        s_mov_b32 s15, 0x20000
        s_mov_b32 s18, {1024*1024}
        s_mov_b32 s19, 0x20000
        v_and_b32 v3, 15, v{v_lane}
        s_lshl_b32 s{s_t0}, s2, 4
        v_add_u32 v3, s{s_t0}, v3
        v_lshlrev_b32 v3, 7, v3                      ; line*128
        v_cmp_gt_u32 vcc, 16, v{v_lane}
        s_and_saveexec_b64 s[54:55], vcc
        s_cmp_eq_u32 s58, 8
        s_cbranch_scc0 P1_pf9
        buffer_load_dword v4, v3, s[8:11], 0 offen
        s_branch P1_pfd
        P1_pf9:
        s_cmp_eq_u32 s58, 9
        s_cbranch_scc0 P1_pf10
        buffer_load_dword v4, v3, s[12:15], 0 offen
        s_branch P1_pfd
        P1_pf10:
        s_sub_u32 s{s_t1}, s58, 10
        s_lshl_b32 s{s_t1}, s{s_t1}, 19
        buffer_load_dword v4, v3, s[16:19], s{s_t1} offen
        P1_pfd:
        s_mov_b64 exec, s[54:55]
        """)
    for i in range(NC1 - 3): a("s_barrier")
    stamp(a, 3)

    a.label("P1_HELP_EPI")
    a("s_barrier")
    a("s_barrier")
    H = 8
    a(f"""
    v_subrev_u32 v3, 256, v0
    v_lshrrev_b32 v4, 4, v3                       ; row 0..31
    v_and_b32 v5, 15, v3                          ; slot
    v_lshlrev_b32 v5, 4, v5
    v_mul_u32_u24 v6, {PM}, v4
    v_add_u32 v6, v6, v5
    ds_read_b128 v[{H}:{H+3}], v6 offset:{STG_M}
    ds_read_b128 v[{H+4}:{H+7}], v6 offset:{STG_M + 32*PM}
    v_lshl_add_u32 v7, v4, 12, v5
    s_lshl_b32 s{s_t2}, s{s_ct}, 18               ; 64 rows * 4096
    s_lshl_b32 s{s_t0}, s{s_rt}, 8                ; 128 tokens * 2 B
    s_add_u32 s{s_t2}, s{s_t2}, s{s_t0}
    """)
    X = 16
    G = 32
    cA, cB, cOne = 48, 50, 52
    a(f"""
    v_mov_b32 v{cA}, {hex(f2u(kA))}
    v_mov_b32 v{cA+1}, {hex(f2u(kA))}
    v_mov_b32 v{cB}, {hex(f2u(kB))}
    v_mov_b32 v{cB+1}, {hex(f2u(kB))}
    v_mov_b32 v{cOne}, 1.0
    v_mov_b32 v{cOne+1}, 1.0
    s_waitcnt lgkmcnt(0)
    """)
    for i in range(8):
        a(f"v_lshlrev_b32 v{X+2*i}, 16, v{H+i}")
        a(f"v_and_b32 v{X+2*i+1}, 0xffff0000, v{H+i}")
    for i in range(8):
        a(f"v_mul_f32 v{G+2*i}, v{X+2*i}, v{X+2*i}")
        a(f"v_mul_f32 v{G+2*i+1}, v{X+2*i+1}, v{X+2*i+1}")
    for i in range(16): a(f"v_fma_f32 v{G+i}, v{G+i}, v{cB}, v{cA}")
    for i in range(16): a(f"v_mul_f32 v{G+i}, v{G+i}, v{X+i}")
    for i in range(16): a(f"v_exp_f32 v{G+i}, v{G+i}")
    for i in range(16): a(f"v_add_f32 v{G+i}, 1.0, v{G+i}")
    for i in range(16): a(f"v_rcp_f32 v{G+i}, v{G+i}")
    for i in range(16): a(f"v_mul_f32 v{X+i}, v{X+i}, v{G+i}")
    for i in range(8): a(f"v_cvt_pk_bf16_f32 v{H+i}, v{X+2*i}, v{X+2*i+1}")
    a(f"buffer_store_dwordx4 v[{H}:{H+3}], v7, s[{sUG}:{sUG+3}], s{s_t2} offen")
    a(f"s_add_u32 s{s_t1}, s{s_t2}, {32*4096}")
    a(f"buffer_store_dwordx4 v[{H+4}:{H+7}], v7, s[{sUG}:{sUG+3}], s{s_t1} offen")
    a(f"s_cmp_lt_u32 s{s_ct}, 8")
    a("s_cbranch_scc1 P1_nostat")
    for i in range(8):
        a(f"v_mul_f32 v{G+i}, v{X+i}, v{X+i}")
        a(f"v_fma_f32 v{G+i}, v{X+8+i}, v{X+8+i}, v{G+i}")
        a(f"v_add_f32 v{X+i}, v{X+i}, v{X+8+i}")
    for i in range(8): a(f"v_permlane16_swap_b32 v{X+i}, v{G+i}")
    for i in range(8): a(f"v_add_f32 v{X+i}, v{X+i}, v{G+i}")
    for i in range(4): a(f"v_permlane32_swap_b32 v{X+i}, v{X+4+i}")
    for i in range(4): a(f"v_add_f32 v{X+i}, v{X+i}, v{X+4+i}")
    a(f"""
    v_lshlrev_b32 v4, 4, v3                       ; htid*16
    ds_write_b128 v4, v[{X}:{X+3}] offset:{STG_P}
    """)
    a.label("P1_nostat")
    a("s_waitcnt lgkmcnt(0)")
    stamp(a, 5)
    a("s_barrier")

    a.label("P1_STORE")
    d = 8
    a(f"s_mul_i32 s{s_t1}, s{s_rt}, {128*3072}")
    a(f"s_mul_i32 s{s_t2}, s{s_ct}, 192")
    a(f"s_add_u32 s{s_t1}, s{s_t1}, s{s_t2}")
    for i in range(2):
        a(f"""
        v_add_u32 v3, {768*i}, v0
        v_mul_u32_u24 v4, 43691, v3
        v_lshrrev_b32 v4, 19, v4              ; row
        v_mul_u32_u24 v5, 12, v4
        v_sub_u32 v5, v3, v5                  ; slot
        v_lshlrev_b32 v5, 4, v5
        v_mul_u32_u24 v6, {PQ}, v4
        v_add_u32 v6, v6, v5
        ds_read_b128 v[{d+4*i}:{d+4*i+3}], v6 offset:{STG_Q}
        v_mul_u32_u24 v4, 3072, v4
        v_add_u32 v{40+i}, v4, v5
        """)
    a(f"s_cmp_lg_u32 s58, 11")
    a("s_cbranch_scc1 P1_nofin")
    a(f"s_cmp_lt_u32 s{s_ct}, 8")
    a("s_cbranch_scc1 P1_nofin")
    a(f"v_lshlrev_b32 v4, 4, v{v_lane}")
    for w in range(8):
        a(f"ds_read_b128 v[{48+4*w}:{48+4*w+3}], v4 offset:{STG_P + w*1024}")
    a(f"""
    v_and_b32 v5, 15, v{v_lane}
    v_lshlrev_b32 v5, 3, v5                      ; 8*slot
    v_lshrrev_b32 v6, 5, v{v_lane}
    v_lshl_add_u32 v5, v6, 2, v5                  ; + 4*half
    s_lshl_b32 s{s_t0}, s{s_rt}, 7
    v_add_u32 v5, s{s_t0}, v5
    v_lshlrev_b32 v5, 2, v5
    v_bfe_u32 v6, v{v_lane}, 4, 1
    v_lshl_add_u32 v5, v6, 13, v5                 ; stat * 2048*4
    s_sub_u32 s{s_t0}, s{s_ct}, 8
    s_lshl_b32 s{s_t0}, s{s_t0}, 14
    s_waitcnt lgkmcnt(0)
    """)
    for w in range(1, 8):
        for i in range(4): a(f"v_add_f32 v{48+i}, v{48+i}, v{48+4*w+i}")
    a(f"buffer_store_dwordx4 v[48:51], v5, s[{sGS}:{sGS+3}], s{s_t0} offen")
    a.label("P1_nofin")
    a("s_waitcnt lgkmcnt(0)")
    for i in range(2):
        a(f"buffer_store_dwordx4 v[{d+4*i}:{d+4*i+3}], v{40+i}, s[{sQKV}:{sQKV+3}], s{s_t1} offen")
    if STAMPS_ON():
        a("s_waitcnt vmcnt(0)")
    stamp(a, 6)
    stamp_flush(a, 58)
    a.label(END)
    a("s_endpgm")
    return a.text(), dict(name=name, vgpr=max(V.hi, 96), sgpr=100, lds=LDS1, grid=256, block=768)
```

```python
from asm import *

KA = dict(x=0, w_qkv=8, w_att_out=16, w_mlp_in=24, dw_csgu=32, w_mlp_out=40, dw_merge=48, w_merge=56, out=64, dbg=72, ws=80)

MB = 1 << 20
WS_QKV = 0
WS_UG  = 6 * MB
WS_GST = 10 * MB
WS_SST = 10 * MB + 256 * 1024
WS_RST = 10 * MB + 512 * 1024
WS_PT  = 11 * MB
WS_VP  = 15 * MB
WS_ZT  = 17 * MB
WS_MT  = 19 * MB
WS_MPT = 23 * MB
WS_END = 27 * MB

def srd(a, d, base_lo, base_hi, size, off=0):
    if off:
        a(f"s_add_u32 s{d}, s{base_lo}, {off}")
        a(f"s_addc_u32 s{d+1}, s{base_hi}, 0")
    else:
        a(f"s_mov_b32 s{d}, s{base_lo}")
        a(f"s_mov_b32 s{d+1}, s{base_hi}")
    a(f"s_mov_b32 s{d+2}, {size}")
    a(f"s_mov_b32 s{d+3}, 0x20000")

def interleave(a, mfmas, fillers, lead=0):
    f = list(fillers)
    for x in f[:lead]: a(x)
    f = f[lead:]
    n = len(mfmas)
    per = [len(f) // n + (1 if i < len(f) % n else 0) for i in range(n)]
    k = 0
    for i, m in enumerate(mfmas):
        a(m)
        for x in f[k:k + per[i]]: a(x)
        k += per[i]

KD = """.amdhsa_kernel {name}
  .amdhsa_next_free_vgpr {vgpr}
  .amdhsa_next_free_sgpr {sgpr}
  .amdhsa_accum_offset {acc}
  .amdhsa_group_segment_fixed_size 0
  .amdhsa_kernarg_size 88
  .amdhsa_user_sgpr_count 2
  .amdhsa_user_sgpr_kernarg_segment_ptr 1
  .amdhsa_system_sgpr_workgroup_id_x 1
.end_amdhsa_kernel
"""

class Stream:
    def __init__(self, srd, voffs, soff_imm, lds_imm, s_base, inc, s_lds, dep=False):
        self.srd = srd; self.voffs = voffs; self.soff_imm = soff_imm; self.lds_imm = lds_imm
        self.s_base = s_base; self.inc = inc; self.s_lds = s_lds
        self.dep = dep
    @property
    def n(self): return len(self.voffs)

def issue_chunk(a, streams, s_kc, s_slot, s_t0, s_t1, s_t2, flags=""):
    for st in streams:
        a(f"s_mul_i32 s{s_t0}, s{s_kc}, {st.inc}")
        a(f"s_add_u32 s{s_t0}, s{s_t0}, s{st.s_base}")
        a(f"s_add_u32 s{s_t1}, s{s_slot}, s{st.s_lds}")
        for v, so, lo in zip(st.voffs, st.soff_imm, st.lds_imm):
            if lo: a(f"s_add_u32 m0, s{s_t1}, {lo}")
            else:  a(f"s_mov_b32 m0, s{s_t1}")
            if so:
                a(f"s_add_u32 s{s_t2}, s{s_t0}, {so}")
                a(f"buffer_load_dwordx4 v{v}, s[{st.srd}:{st.srd+3}], s{s_t2} offen lds {flags}".rstrip())
            else:
                a(f"buffer_load_dwordx4 v{v}, s[{st.srd}:{st.srd+3}], s{s_t0} offen lds {flags}".rstrip())

def dma_list(streams, s_kc, s_slot, s_t0, s_t1, s_t2, flags=""):
    groups = []
    for st in streams:
        pre = [f"s_mul_i32 s{s_t0}, s{s_kc}, {st.inc}",
               f"s_add_u32 s{s_t0}, s{s_t0}, s{st.s_base}",
               f"s_add_u32 s{s_t1}, s{s_slot}, s{st.s_lds}"]
        for v, so, lo in zip(st.voffs, st.soff_imm, st.lds_imm):
            g = pre; pre = []
            g.append(f"s_add_u32 m0, s{s_t1}, {lo}" if lo else f"s_mov_b32 m0, s{s_t1}")
            if so:
                g.append(f"s_add_u32 s{s_t2}, s{s_t0}, {so}")
                g.append(f"buffer_load_dwordx4 v{v}, s[{st.srd}:{st.srd+3}], s{s_t2} offen {SCF if st.dep else ''} lds")
            else:
                g.append(f"buffer_load_dwordx4 v{v}, s[{st.srd}:{st.srd+3}], s{s_t0} offen {SCF if st.dep else ''} lds")
            groups.append(g)
    return groups

def loader_loop(a, streams, NC, S, stage_bytes, s_kc, s_slot, s_cnt, s_t0, s_t1, s_t2, lds_base=0,
                work=None, work_pre=None, work_post=None, ahead=2, hook=None):
    n = sum(st.n for st in streams)
    assert S >= ahead + 1 and n * ahead <= 63
    def adv():
        a(f"s_add_u32 s{s_kc}, s{s_kc}, 1")
        a(f"s_and_b32 s{s_kc}, s{s_kc}, {NC-1}")
        a(f"s_add_u32 s{s_slot}, s{s_slot}, {stage_bytes}")
        a(f"s_cmp_eq_u32 s{s_slot}, {lds_base + S*stage_bytes}")
        a(f"s_cselect_b32 s{s_slot}, {lds_base}, s{s_slot}")
    def issue(fill):
        gs = dma_list(streams, s_kc, s_slot, s_t0, s_t1, s_t2)
        per = [len(fill) // len(gs) + (1 if i < len(fill) % len(gs) else 0) for i in range(len(gs))]
        k = 0
        for g, p in zip(gs, per):
            for x in g: a(x)
            for x in fill[k:k+p]: a(x)
            k += p
        adv()
    a(f"s_mov_b32 s{s_slot}, {lds_base}")
    for i in range(ahead): issue([])
    if hook: hook()
    a(f"s_waitcnt vmcnt({n*(ahead-1)})")
    a("s_barrier")
    nst = NC - ahead
    L = a.newlabel("LD_st")
    a(f"s_mov_b32 s{s_cnt}, {nst}")
    a.label(L)
    if work_pre: work_pre()
    issue(work() if work else [])
    if work_post: work_post()
    a(f"s_waitcnt vmcnt({n*(ahead-1)})")
    a("s_barrier")
    a(f"s_sub_u32 s{s_cnt}, s{s_cnt}, 1")
    a(f"s_cmp_lg_u32 s{s_cnt}, 0")
    a(f"s_cbranch_scc1 {L}")
    for c_ in range(nst, NC):
        if work_pre: work_pre()
        if work:
            for x in work(): a(x)
        if work_post: work_post()
        if c_ < NC - 1:
            a(f"s_waitcnt vmcnt({n*(NC-2-c_)})")
            a("s_barrier")

STAMPS = False
SCF = ''
CYC = False
ST_BASE = 64
def stamp(a, idx, s_wave=None, sD=60):
    if not STAMPS: return
    b = ST_BASE + 4 * idx
    a(f"s_memrealtime s[{b}:{b+1}]")
    a(f"s_memtime s[{b+2}:{b+3}]")
    a("s_waitcnt lgkmcnt(0)")
def stamp_flush(a, s_wave, n=7, sD=60):
    if not STAMPS: return
    L = a.newlabel("ST")
    a(f"s_and_b32 s{sD-1}, s{s_wave}, 3")
    a(f"s_cmp_lg_u32 s{sD-1}, 0")
    a(f"s_cbranch_scc1 {L}")
    a(f"s_cmp_ge_u32 s{s_wave}, 8")
    a(f"s_cbranch_scc1 {L}")
    a(f"s_lshr_b32 s{sD-1}, s{s_wave}, 2")
    a(f"s_lshl_b32 s{sD-1}, s{sD-1}, 6")
    a(f"s_lshl_b32 s{sD-2}, s2, 7")
    a(f"s_add_u32 s{sD-1}, s{sD-1}, s{sD-2}")
    a("s_mov_b64 exec, 1")
    a(f"v_mov_b32 v2, s{sD-1}")
    for i in range(n):
        b = ST_BASE + 4 * i
        a(f"v_mov_b32 v{4+2*i}, s{b}")
        a(f"v_mov_b32 v{5+2*i}, s{b+2}")
    for i in range(n):
        a(f"buffer_store_dwordx2 v[{4+2*i}:{5+2*i}], v2, s[{sD}:{sD+3}], 0 offen offset:{i*8}")
    a("s_mov_b64 exec, -1")
    a.label(L)
def stamp_zero(a, n=7):
    if not STAMPS: return
    for i in range(n):
        a(f"s_mov_b32 s{ST_BASE+4*i}, 0")
        a(f"s_mov_b32 s{ST_BASE+4*i+2}, 0")
def stamp_init(a, ws_lo, ws_hi, phase, sD=60):
    if not STAMPS: return
    srd(a, sD, ws_lo, ws_hi, 256*128, WS_STAMP + phase * 32768)
WS_STAMP = 32 * MB

def r_loader_voff(a, vd, vt, v_lane, s_w, s_t, pitch):
    a(f"""
    v_lshrrev_b32 v{vt}, 3, v{v_lane}
    v_lshrrev_b32 v{vt+1}, 4, v{v_lane}
    s_and_b32 s{s_t}, s{s_w}, 1
    s_lshl_b32 s{s_t}, s{s_t}, 2
    v_add_u32 v{vt+1}, s{s_t}, v{vt+1}
    v_and_b32 v{vt+2}, 7, v{v_lane}
    v_xor_b32 v{vt+2}, v{vt+2}, v{vt+1}
    v_lshlrev_b32 v{vt+2}, 4, v{vt+2}
    v_mul_u32_u24 v{vt}, {pitch}, v{vt}
    v_add_u32 v{vd}, v{vt}, v{vt+2}
    """)
def t64_loader_voff(a, vd, vt, v_lane, pitch):
    a(f"""
    v_lshrrev_b32 v{vt}, 3, v{v_lane}
    v_bfe_u32 v{vt+1}, v{v_lane}, 4, 1
    v_lshlrev_b32 v{vt+1}, 2, v{vt+1}
    v_and_b32 v{vt+2}, 7, v{v_lane}
    v_xor_b32 v{vt+2}, v{vt+2}, v{vt+1}
    v_lshlrev_b32 v{vt+2}, 4, v{vt+2}
    v_mul_u32_u24 v{vt}, {pitch}, v{vt}
    v_add_u32 v{vd}, v{vt}, v{vt+2}
    """)
def t128_loader_voff(a, vd, vt, v_lane, pitch):
    a(f"""
    v_lshrrev_b32 v{vt}, 4, v{v_lane}
    v_lshlrev_b32 v{vt+1}, 2, v{vt}
    v_and_b32 v{vt+2}, 15, v{v_lane}
    v_xor_b32 v{vt+2}, v{vt+2}, v{vt+1}
    v_lshlrev_b32 v{vt+2}, 4, v{vt+2}
    v_mul_u32_u24 v{vt}, {pitch}, v{vt}
    v_add_u32 v{vd}, v{vt}, v{vt+2}
    """)
def r_frag_addrs(a, vd, vt, v_lane, s_rowblk, s_t, base):
    a(f"""
    v_and_b32 v{vt}, 31, v{v_lane}
    v_lshrrev_b32 v{vt+1}, 5, v{v_lane}
    v_lshrrev_b32 v{vt+2}, 1, v{vt}
    v_and_b32 v{vt+2}, 7, v{vt+2}
    v_lshlrev_b32 v{vt+3}, 7, v{vt}
    """)
    if s_rowblk is not None:
        a(f"s_lshl_b32 s{s_t}, s{s_rowblk}, 12")
        a(f"v_add_u32 v{vt+3}, s{s_t}, v{vt+3}")
    if base: a(f"v_add_u32 v{vt+3}, {base}, v{vt+3}")
    for s in range(4):
        a(f"""
        v_add_u32 v{vt+4}, {2*s}, v{vt+1}
        v_xor_b32 v{vt+4}, v{vt+4}, v{vt+2}
        v_lshl_add_u32 v{vd+s}, v{vt+4}, 4, v{vt+3}
        """)
def t_frag_common(a, vt, v_lane):
    a(f"""
    v_lshrrev_b32 v{vt}, 5, v{v_lane}
    v_lshlrev_b32 v{vt}, 3, v{vt}
    v_bfe_u32 v{vt+1}, v{v_lane}, 2, 2
    v_add_u32 v{vt}, v{vt}, v{vt+1}
    v_bfe_u32 v{vt+2}, v{v_lane}, 4, 1
    v_lshlrev_b32 v{vt+2}, 5, v{vt+2}
    v_and_b32 v{vt+3}, 3, v{v_lane}
    v_lshl_add_u32 v{vt+2}, v{vt+3}, 3, v{vt+2}
    """)
def t64_frag_addrs(a, vd, vt, v_lane, base):
    t_frag_common(a, vt, v_lane)
    a(f"""
    v_lshlrev_b32 v{vt+3}, 7, v{vt}
    v_add_u32 v{vt+3}, v{vt+3}, v{vt+2}
    v_add_u32 v{vt+3}, {base}, v{vt+3}
    v_bfe_u32 v{vt+4}, v{v_lane}, 3, 1
    v_lshlrev_b32 v{vt+4}, 6, v{vt+4}
    v_add_u32 v{vd}, v{vt+3}, v{vt+4}
    v_xor_b32 v{vt+4}, 64, v{vt+4}
    v_add_u32 v{vd+1}, v{vt+3}, v{vt+4}
    """)
def t64_frag_addr_blk(a, vd, vt, v_lane, base, s_blk, s_t):
    t_frag_common(a, vt, v_lane)
    a(f"""
    v_lshlrev_b32 v{vt+3}, 7, v{vt}
    v_add_u32 v{vt+3}, v{vt+3}, v{vt+2}
    v_add_u32 v{vt+3}, {base}, v{vt+3}
    v_bfe_u32 v{vt+4}, v{v_lane}, 3, 1
    v_xor_b32 v{vt+4}, s{s_blk}, v{vt+4}
    v_lshlrev_b32 v{vt+4}, 6, v{vt+4}
    v_add_u32 v{vd}, v{vt+3}, v{vt+4}
    """)
def t128_frag_addr_blk(a, vd, vt, v_lane, base, s_blk):
    t_frag_common(a, vt, v_lane)
    a(f"""
    v_lshlrev_b32 v{vt+3}, 8, v{vt}
    v_add_u32 v{vt+3}, v{vt+3}, v{vt+2}
    v_add_u32 v{vt+3}, {base}, v{vt+3}
    v_bfe_u32 v{vt+4}, v{v_lane}, 2, 2
    v_xor_b32 v{vt+4}, s{s_blk}, v{vt+4}
    v_lshlrev_b32 v{vt+4}, 6, v{vt+4}
    v_add_u32 v{vd}, v{vt+3}, v{vt+4}
    """)
def tr2(dst, vaddr, off, pitch):
    return [f"ds_read_b64_tr_b16 v[{dst}:{dst+1}], v{vaddr} offset:{off}",
            f"ds_read_b64_tr_b16 v[{dst+2}:{dst+3}], v{vaddr} offset:{off + 4*pitch}"]

def counted_step(a, mf, need, nxt, prev_n, per=4, extra=None):
    n = len(mf)
    k = 0; issued = 0
    for i in range(n):
        cnt = (prev_n - need[i]) + issued
        a(f"s_waitcnt lgkmcnt({min(cnt, 15)})")
        a(mf[i])
        g = nxt[k:k+per] if i < n - 1 else nxt[k:]
        for x in g: a(x); issued += 1
        k += per
        if extra and i in extra:
            for x in extra[i]: a(x)

class Ring:
    def __init__(self, a, S, stage, s_rs, s_delta, s_neg, s_pos):
        self.a, self.S, self.stage = a, S, stage
        self.s_rs, self.s_delta, self.s_neg, self.s_pos = s_rs, s_delta, s_neg, s_pos
    def init(self):
        a = self.a
        a(f"s_mov_b32 s{self.s_rs}, 0")
        a(f"s_mov_b32 s{self.s_neg}, {(-(self.S-1)*self.stage) & 0xffffffff}")
        a(f"s_mov_b32 s{self.s_pos}, {self.stage}")
    def bump(self, regs):
        a = self.a
        a(f"s_add_u32 s{self.s_rs}, s{self.s_rs}, {self.stage}")
        a(f"s_cmp_eq_u32 s{self.s_rs}, {self.S*self.stage}")
        a(f"s_cselect_b32 s{self.s_delta}, s{self.s_neg}, s{self.s_pos}")
        a(f"s_cselect_b32 s{self.s_rs}, 0, s{self.s_rs}")
        for r in regs: a(f"v_add_u32 v{r}, s{self.s_delta}, v{r}")

def gemm_mainloop(a, NC, ring, addr_regs, reads, mfmas, need, s_cnt, tag, per=4, chunk_hook=None, first_hook=None):
    nr = len(reads(0, 0))
    def chunk(last, par):
        for s in range(4):
            st = s & 1
            if s == 3 and not last:
                a("s_waitcnt lgkmcnt(0)")
                a("s_barrier")
                ring.bump(addr_regs)
            nxt = [] if (s == 3 and last) else reads((s + 1) & 3, st ^ 1)
            ex = chunk_hook(s, last, par) if chunk_hook else None
            counted_step(a, mfmas(st, s, par), need, nxt, nr, per=per, extra=ex)
    a("s_barrier")
    if first_hook: first_hook()
    for x in reads(0, 0): a(x)
    return chunk

def gemm_loop2(a, NC, ring, addr_regs, reads, mfmas, need, s_cnt, tag, D=2, per=4, hook=None, first_hook=None, unroll=1, pre_loop=None):
    nsets = 2 if D == 1 else 4
    nr = len(reads(0, 0))
    def chunk(ci, last):
        for s in range(4):
            st = s % nsets
            if s == (4 - D) % 4 and not last and (D < 4 or True):
                a("s_barrier")
                ring.bump(addr_regs)
            tgt = s + D
            if last and tgt >= 4: nxt = []
            else: nxt = reads(tgt % 4, tgt % nsets)
            ex = hook(ci, s, last) if hook else None
            mf = mfmas(st, s, ci)
            n = len(mf); k = 0; issued = 0
            for i in range(n):
                later = 0
                for j in range(1, D):
                    if not (last and s + j >= 4): later += nr
                cnt = (nr - need[i]) + later + issued
                a(f"s_waitcnt lgkmcnt({min(cnt, 15)})")
                a(mf[i])
                g = nxt[k:k+per] if i < n - 1 else nxt[k:]
                for x in g: a(x); issued += 1
                k += per
                if ex and i in ex:
                    for x in ex[i]: a(x)
    a("s_barrier")
    if first_hook: first_hook()
    for s in range(D):
        for x in reads(s, s % nsets): a(x)
    if pre_loop: pre_loop()
    nloop = (NC - 1) // unroll
    rem = (NC - 1) - nloop * unroll
    if nloop > 0:
        L = a.newlabel(f"{tag}_loop")
        a(f"s_mov_b32 s{s_cnt}, {nloop}")
        a.label(L)
        for u in range(unroll): chunk(u, False)
        a(f"s_sub_u32 s{s_cnt}, s{s_cnt}, 1")
        a(f"s_cmp_lg_u32 s{s_cnt}, 0")
        a(f"s_cbranch_scc1 {L}")
    for u in range(rem): chunk(u, False)
    chunk(rem % unroll, True)


PERS = False
WS_FLAGS = 30 * MB
WS_EPOCH = 30 * MB + 16384
S_EXP, S_FL = 3, 92

def pers_init(a):
    a(f"s_load_dwordx2 s[96:97], s[0:1], {KA['ws']}")
    a("s_waitcnt lgkmcnt(0)")
    a(f"s_add_u32 s{S_FL}, s96, {WS_FLAGS}")
    a(f"s_addc_u32 s{S_FL+1}, s97, 0")
    a(f"s_mov_b32 s{S_FL+2}, 32768")
    a(f"s_mov_b32 s{S_FL+3}, 0x20000")
    a(f"s_add_u32 s96, s96, {WS_EPOCH}")
    a(f"s_addc_u32 s97, s97, 0")
    a(f"s_load_dword s{S_EXP}, s[96:97], 0")
    a("s_waitcnt lgkmcnt(0)")
    a(f"s_add_u32 s{S_EXP}, s{S_EXP}, 1")

WS_GO_OFF = 8192
def grid_arrive(a, p):
    if not PERS: return
    L = a.newlabel("arr"); Lp = a.newlabel("agg"); Lg = a.newlabel("aggd")
    a("s_waitcnt vmcnt(0) lgkmcnt(0)")
    a("s_barrier")
    a("v_lshrrev_b32 v1, 6, v0")
    a("s_nop 0")
    a("v_readfirstlane_b32 s96, v1")
    a("s_cmp_lg_u32 s96, 0")
    a(f"s_cbranch_scc1 {L}")
    a(f"s_lshl_b32 s96, s2, 2")
    a(f"s_add_u32 s96, s96, {p*1024}")
    a(f"v_mov_b32 v1, s{S_EXP}")
    a("v_mov_b32 v2, 0")
    a("s_mov_b64 exec, 1")
    a(f"buffer_store_dword v1, v2, s[{S_FL}:{S_FL+3}], s96 offen sc1")
    a("s_mov_b64 exec, -1")
    a("s_cmp_lg_u32 s2, 0")
    a(f"s_cbranch_scc1 {L}")
    a("v_lshlrev_b32 v8, 4, v0")
    a(f"s_mov_b32 s97, {p*1024}")
    a("s_mov_b32 s96, 0x200000")
    a.label(Lp)
    a(f"buffer_load_dwordx4 v[4:7], v8, s[{S_FL}:{S_FL+3}], s97 offen sc1")
    a("s_waitcnt vmcnt(0)")
    for i in range(4): a(f"v_xor_b32 v{4+i}, s{S_EXP}, v{4+i}")
    a("v_or_b32 v4, v4, v5")
    a("v_or_b32 v6, v6, v7")
    a("v_or_b32 v4, v4, v6")
    a("v_cmp_ne_u32 vcc, 0, v4")
    a("s_sub_u32 s96, s96, 1")
    a("s_cmp_eq_u32 s96, 0")
    a(f"s_cbranch_scc1 {Lg}")
    a(f"s_cbranch_vccnz {Lp}")
    a.label(Lg)
    a(f"s_mov_b32 s97, {WS_GO_OFF + p*128}")
    a("s_mov_b64 exec, 1")
    a(f"buffer_store_dword v1, v2, s[{S_FL}:{S_FL+3}], s97 offen sc1")
    a("s_mov_b64 exec, -1")
    a.label(L)

def grid_wait(a, p, v, lane):
    if not PERS: return
    L = a.newlabel("gw"); Ld = a.newlabel("gwd")
    a(f"v_mov_b32 v{v+1}, 0")
    a(f"s_mov_b32 s97, {WS_GO_OFF + p*128}")
    a("s_mov_b32 s96, 0x200000")
    a.label(L)
    a(f"buffer_load_dword v{v}, v{v+1}, s[{S_FL}:{S_FL+3}], s97 offen sc1")
    a("s_waitcnt vmcnt(0)")
    a(f"v_readfirstlane_b32 s100, v{v}")
    a("s_sub_u32 s96, s96, 1")
    a("s_cmp_eq_u32 s96, 0")
    a(f"s_cbranch_scc1 {Ld}")
    a(f"s_cmp_lg_u32 s100, s{S_EXP}")
    a(f"s_cbranch_scc0 {Ld}")
    a("s_sleep 1")
    a(f"s_branch {L}")
    a.label(Ld)

def pers_finish(a):
    L = a.newlabel("fin")
    a("s_cmp_lg_u32 s2, 0")
    a(f"s_cbranch_scc1 {L}")
    a("v_cmp_eq_u32 vcc, 0, v0")
    a("s_and_saveexec_b64 s[96:97], vcc")
    a(f"s_cbranch_execz {L}")
    a(f"v_mov_b32 v1, s{S_EXP}")
    a("v_mov_b32 v2, 16384")
    a(f"buffer_store_dword v1, v2, s[{S_FL}:{S_FL+3}], 0 offen sc1")
    a.label(L)
```

```python
from common import *
import common, struct
def STAMPS_ON(): return common.STAMPS
def f2u(x): return struct.unpack("<I", struct.pack("<f", x))[0]

X_OFF, WQ_OFF, WM_OFF, STAGE = 0, 16384, 16384 + 12288, 36864
S1, NC1 = 4, 8
T_RSTD, T_NMR, T_CS, T_CS4 = 0, 512, 1024, 1536
RING = 2048
LDS1 = RING + S1 * STAGE
STG_Q, PQ = RING, 208
STG_M, PM = RING + 128 * 208, 272
STG_P = STG_M + 64 * 272

LOG2E = 1.4426950408889634
kA = -2.0 * 0.7978845608028654 * LOG2E
kB = kA * 0.044715

def gen_p1(name="p1_kernel", abl=()):
    SC = common.SCF
    a = Asm('p1_')
    END = "P1_END"
    sX, sWQ, sWM, sQKV, sUG, sGS = 8, 12, 16, 20, 24, 28
    s_wave, s_rt, s_ct, s_kc, s_slot, s_cnt, s_t0, s_t1, s_t2 = 36, 37, 38, 39, 40, 41, 42, 43, 44
    s_bx, s_bq, s_bm, s_lx, s_lq, s_lm = 45, 46, 47, 48, 49, 50
    s_ones, s_delta, s_neg, s_pos, s_rs = 51, 52, 56, 57, 53
    v_lane = 2
    a(f"""
    s_cmp_ge_u32 s2, 256
    s_cbranch_scc1 {END}
    s_load_dwordx2 s[4:5], s[0:1], {KA['x']}
    s_load_dwordx2 s[6:7], s[0:1], {KA['w_qkv']}
    s_load_dwordx2 s[32:33], s[0:1], {KA['w_mlp_in']}
    s_load_dwordx2 s[34:35], s[0:1], {KA['ws']}
    """)
    stamp_zero(a)
    if STAMPS_ON():
        a("s_memrealtime s[64:65]")
        a("s_memtime s[66:67]")
    a(f"""
    v_lshrrev_b32 v1, 6, v0
    v_and_b32 v2, 63, v0
    v_readfirstlane_b32 s{s_wave}, v1
    s_and_b32 s{s_t0}, s2, 7
    s_lshr_b32 s{s_t1}, s2, 3
    s_lshr_b32 s{s_rt}, s{s_t0}, 1
    s_lshl_b32 s{s_rt}, s{s_rt}, 2
    s_and_b32 s{s_t2}, s{s_t1}, 3
    s_add_u32 s{s_rt}, s{s_rt}, s{s_t2}
    s_and_b32 s{s_ct}, s{s_t0}, 1
    s_lshl_b32 s{s_ct}, s{s_ct}, 3
    s_lshr_b32 s{s_kc}, s{s_t1}, 2
    s_add_u32 s{s_ct}, s{s_ct}, s{s_kc}
    s_lshl_b32 s{s_t2}, s{s_t2}, 1
    s_add_u32 s{s_kc}, s{s_kc}, s{s_t2}
    s_and_b32 s{s_kc}, s{s_kc}, 7
    s_mov_b32 s58, s{s_wave}
    s_cmp_ge_u32 s{s_wave}, 4
    s_cbranch_scc1 P1_LOADER
    """)
    def out_srds():
        srd(a, sQKV, 34, 35, 2000 * 3072, WS_QKV)
        srd(a, sUG, 34, 35, 1024 * 4096, WS_UG)
        srd(a, sGS, 34, 35, 8 * 2 * 2048 * 4, WS_GST)
        stamp_init(a, 34, 35, 0)
    ring = Ring(a, S1, STAGE, s_rs, s_delta, s_neg, s_pos)

    V = Alloc(3, 256)
    vxa = V(4); vwq = V(1); vwm = V(2)
    vt = V(8, 2)
    fbase = V(48, 4)
    fx = [fbase, fbase + 4]
    fw = [[fbase + 8 + 20*st + 4*b for b in range(5)] for st in range(2)]
    acc = [V(16, 4) for _ in range(5)]
    csa = V(16, 4); vones = V(2, 2)
    r_frag_addrs(a, vxa, vt, v_lane, s_wave, s_t0, RING + X_OFF)
    t_frag_common(a, vt, v_lane)
    a(f"""
    v_mul_u32_u24 v{vwq}, 192, v{vt}
    v_add_u32 v{vwq}, v{vwq}, v{vt+2}
    v_add_u32 v{vwq}, {RING}, v{vwq}
    """)
    t64_frag_addrs(a, vwm, vt, v_lane, RING)
    ring.init()
    for b in range(5):
        for i in range(16): a(f"v_mov_b32 v{acc[b]+i}, 0")
    for i in range(16): a(f"v_mov_b32 v{csa+i}, 0")
    a(f"v_mov_b32 v{vones}, 0x3f803f80")
    a(f"v_mov_b32 v{vones+1}, 0x3f803f80")
    a("s_waitcnt lgkmcnt(0)")
    out_srds()
    def mk_cs_hook(w):
        def cs_hook(ci, s, last):
            if "nocs" in abl: return None
            st = s & 1
            T = "v_mfma_f32_4x4x4_16b_bf16"
            def colsum(dst, f): return f"{T} v[{dst}:{dst+3}], v[{vones}:{vones+1}], v[{f}:{f+1}], v[{dst}:{dst+3}]"
            def gram(dst, f): return f"{T} v[{dst}:{dst+3}], v[{f}:{f+1}], v[{f}:{f+1}], v[{dst}:{dst+3}]"
            x = fx[st]; fo = fw[st][w]; f4 = fw[st][4]
            ex = {0: [colsum(csa + 8, x), gram(csa + 12, x)],
                  1: [colsum(csa + 8, x + 2), gram(csa + 12, x + 2)],
                  3: [colsum(csa, fo)],
                  4: [colsum(csa, fo + 2)]}
            if s == w:
                ex[4] = [colsum(csa + 4, f4), colsum(csa, fo + 2), "s_nop 0", colsum(csa + 4, f4 + 2)]
            return ex
        return cs_hook
    def reads(step, st):
        r = [f"ds_read_b128 v[{fx[st]}:{fx[st]+3}], v{vxa+step}"]
        for b in range(3): r += tr2(fw[st][b], vwq, WQ_OFF + 16*step*192 + 64*b, 192)
        for b in range(2): r += tr2(fw[st][3+b], vwm + b, WM_OFF + 16*step*128, 128)
        return r
    def mfmas(st, s, ci):
        m = []
        if "nomfma" in abl: return ["s_nop 0"] * 5
        for b in range(3):
            m.append(f"v_mfma_f32_32x32x16_bf16 v[{acc[b]}:{acc[b]+15}], v[{fw[st][b]}:{fw[st][b]+3}], v[{fx[st]}:{fx[st]+3}], v[{acc[b]}:{acc[b]+15}]")
        for b in range(3, 5):
            m.append(f"v_mfma_f32_32x32x16_bf16 v[{acc[b]}:{acc[b]+15}], v[{fx[st]}:{fx[st]+3}], v[{fw[st][b]}:{fw[st][b]+3}], v[{acc[b]}:{acc[b]+15}]")
        return m
    nvar = 1 if "nocs" in abl else 4
    for w in range(nvar):
        if w < nvar - 1:
            a(f"s_cmp_lg_u32 s{s_wave}, {w}")
            a(f"s_cbranch_scc1 P1_var{w+1}")
        gemm_loop2(a, NC1, ring, [vxa, vxa+1, vxa+2, vxa+3, vwq, vwm, vwm+1], reads, mfmas, [3, 5, 7, 9, 11], s_cnt, f"P1w{w}",
                   D=1, per=4, hook=mk_cs_hook(w), first_hook=lambda: stamp(a, 2))
        if w < nvar - 1:
            a("s_branch P1_mdone")
            a.label(f"P1_var{w+1}")
    a.label("P1_mdone")
    stamp(a, 3)
    a(f"""
    v_and_b32 v{vt+1}, 3, v{v_lane}
    v_cmp_eq_u32 vcc, 1, v{vt+1}
    v_cndmask_b32 v{csa+12}, v{csa+12}, v{csa+13}, vcc
    v_cmp_eq_u32 vcc, 2, v{vt+1}
    v_cndmask_b32 v{csa+12}, v{csa+12}, v{csa+14}, vcc
    v_cmp_eq_u32 vcc, 3, v{vt+1}
    v_cndmask_b32 v{csa+12}, v{csa+12}, v{csa+15}, vcc
    v_mov_b32 v{csa+1}, v{csa}
    v_mov_b32 v{csa+5}, v{csa+4}
    v_mov_b32 v{csa+9}, v{csa+8}
    v_mov_b32 v{csa+13}, v{csa+12}
    s_nop 1
    v_permlane32_swap_b32 v{csa}, v{csa+1}
    v_permlane32_swap_b32 v{csa+4}, v{csa+5}
    v_permlane32_swap_b32 v{csa+8}, v{csa+9}
    v_permlane32_swap_b32 v{csa+12}, v{csa+13}
    v_add_f32 v{csa}, v{csa}, v{csa+1}
    v_add_f32 v{csa+4}, v{csa+4}, v{csa+5}
    v_add_f32 v{csa+8}, v{csa+8}, v{csa+9}
    v_add_f32 v{csa+12}, v{csa+12}, v{csa+13}
    v_mul_f32 v{csa+8}, 0x3b000000, v{csa+8}               ; mean
    v_mul_f32 v{csa+12}, 0x3b000000, v{csa+12}             ; E[x^2]
    v_fma_f32 v{csa+12}, -v{csa+8}, v{csa+8}, v{csa+12}
    v_max_f32 v{csa+12}, 0, v{csa+12}
    v_add_f32 v{csa+12}, 0x3727c5ac, v{csa+12}
    v_rsq_f32 v{csa+10}, v{csa+12}                          ; rstd
    v_mul_f32 v{csa+11}, -1.0, v{csa+8}
    v_and_b32 v{vt}, 31, v{v_lane}
    v_mul_f32 v{csa+11}, v{csa+11}, v{csa+10}               ; -mean*rstd
    s_lshl_b32 s{s_t0}, s{s_wave}, 5
    v_add_u32 v{vt}, s{s_t0}, v{vt}
    v_lshlrev_b32 v{vt}, 2, v{vt}
    ds_write_b32 v{vt}, v{csa} offset:{T_CS}
    ds_write_b32 v{vt}, v{csa+4} offset:{T_CS4}
    ds_write_b32 v{vt}, v{csa+10} offset:{T_RSTD}
    ds_write_b32 v{vt}, v{csa+11} offset:{T_NMR}
    s_waitcnt lgkmcnt(0)
    """)
    a("s_barrier")
    stamp(a, 4)
    e = Alloc(fbase, fbase + 48)
    rs = e(16, 4); nm = e(16, 4); tp = e(4, 4); vcsl = e(2, 2); g2 = e(4, 4)
    t0 = vt; vh16 = vt + 2; vstq = vt + 3; vtk = vt + 4; v_rstd = vxa; v_nmr = vxa + 2
    a(f"""
    v_lshrrev_b32 v{vh16}, 5, v{v_lane}
    v_lshlrev_b32 v{vh16}, 4, v{vh16}            ; h*16
    s_lshl_b32 s{s_t0}, s{s_wave}, 7             ; 32w tokens * 4 B
    v_add_u32 v{vtk}, s{s_t0}, v{vh16}
    v_and_b32 v{t0}, 31, v{v_lane}
    v_lshlrev_b32 v{t0+1}, 2, v{t0}
    ds_read_b32 v{vcsl}, v{t0+1} offset:{T_CS + 96*4}
    ds_read_b32 v{vcsl+1}, v{t0+1} offset:{T_CS4}
    ds_read_b32 v{g2}, v{t0+1} offset:{T_CS4 + 128}
    ds_read_b32 v{g2+1}, v{t0+1} offset:{T_CS4 + 256}
    ds_read_b32 v{g2+2}, v{t0+1} offset:{T_CS4 + 384}
    """)
    for r in range(4):
        a(f"ds_read_b128 v[{rs+4*r}:{rs+4*r+3}], v{vtk} offset:{T_RSTD + 8*r*4}")
        a(f"ds_read_b128 v[{nm+4*r}:{nm+4*r+3}], v{vtk} offset:{T_NMR + 8*r*4}")
    a(f"""
    v_mul_u32_u24 v{vstq}, {PM}, v{t0}
    s_lshl_b32 s{s_t0}, s{s_wave}, 6             ; 32w tokens * 2 B
    v_add_u32 v{vstq}, s{s_t0}, v{vstq}
    v_lshrrev_b32 v{t0+1}, 1, v{vh16}
    v_add_u32 v{vstq}, v{vstq}, v{t0+1}
    s_waitcnt lgkmcnt(0)
    v_add_f32 v{vcsl+1}, v{vcsl+1}, v{g2}
    v_add_f32 v{g2+1}, v{g2+1}, v{g2+2}
    v_add_f32 v{vcsl+1}, v{vcsl+1}, v{g2+1}
    """)
    for b in range(2):
        for r in range(4):
            for p in range(2):
                x = acc[3+b] + 4*r + 2*p; g = g2 + 2*p
                a(f"v_pk_mul_f32 v[{g}:{g+1}], v[{nm+4*r+2*p}:{nm+4*r+2*p+1}], v[{vcsl}:{vcsl+1}] op_sel:[0,{b}] op_sel_hi:[1,{b}]")
                a(f"v_pk_fma_f32 v[{x}:{x+1}], v[{x}:{x+1}], v[{rs+4*r+2*p}:{rs+4*r+2*p+1}], v[{g}:{g+1}]")
            x = acc[3+b] + 4*r
            a(f"v_cvt_pk_bf16_f32 v{tp+2*(r&1)}, v{x}, v{x+1}")
            a(f"v_cvt_pk_bf16_f32 v{tp+2*(r&1)+1}, v{x+2}, v{x+3}")
            a(f"ds_write_b64 v{vstq}, v[{tp+2*(r&1)}:{tp+2*(r&1)+1}] offset:{STG_M + 32*b*PM + 8*r*2}")
    a("s_waitcnt lgkmcnt(0)")
    a("s_barrier")
    csr = rs
    v_rn = csa + 10
    a(f"""
    v_and_b32 v{t0}, 31, v{v_lane}
    s_lshl_b32 s{s_t0}, s{s_wave}, 5
    v_add_u32 v{vstq}, s{s_t0}, v{t0}
    v_mul_u32_u24 v{vstq}, {PQ}, v{vstq}
    v_lshrrev_b32 v{t0}, 1, v{vh16}
    v_add_u32 v{vstq}, v{vstq}, v{t0}
    """)
    bufs = [rs, nm]
    for r in range(4):
        a(f"ds_read_b128 v[{bufs[0]+4*r}:{bufs[0]+4*r+3}], v{vh16} offset:{T_CS + 8*r*4}")
    for b in range(3):
        cur = bufs[b & 1]
        if b < 2:
            for r in range(4):
                a(f"ds_read_b128 v[{bufs[(b+1)&1]+4*r}:{bufs[(b+1)&1]+4*r+3}], v{vh16} offset:{T_CS + (32*(b+1) + 8*r)*4}")
            a("s_waitcnt lgkmcnt(4)")
        else:
            a("s_waitcnt lgkmcnt(0)")
        for r in range(4):
            for p in range(2):
                c = cur + 4*r + 2*p; x = acc[b] + 4*r + 2*p
                a(f"v_pk_mul_f32 v[{c}:{c+1}], v[{c}:{c+1}], v[{v_rn}:{v_rn+1}] op_sel:[0,1] op_sel_hi:[1,1]")
                a(f"v_pk_fma_f32 v[{x}:{x+1}], v[{x}:{x+1}], v[{v_rn}:{v_rn+1}], v[{c}:{c+1}] op_sel_hi:[1,0,1]")
            x = acc[b] + 4*r
            a(f"v_cvt_pk_bf16_f32 v{tp+2*(r&1)}, v{x}, v{x+1}")
            a(f"v_cvt_pk_bf16_f32 v{tp+2*(r&1)+1}, v{x+2}, v{x+3}")
            a(f"ds_write_b64 v{vstq}, v[{tp+2*(r&1)}:{tp+2*(r&1)+1}] offset:{STG_Q + (32*b + 8*r)*2}")
    a("s_waitcnt lgkmcnt(0)")
    stamp(a, 5)
    a("s_barrier")
    a("s_branch P1_STORE")

    def cs_final(l_cs, ng, lt, col_sgpr_list):
        for g in range(ng):
            a(f"""
            v_mov_b32 v{lt+4}, v{l_cs+g}
            s_nop 1
            v_permlane16_swap_b32 v{l_cs+g}, v{lt+4}
            v_add_f32 v{l_cs+g}, v{l_cs+g}, v{lt+4}
            v_mov_b32 v{lt+4}, v{l_cs+g}
            s_nop 1
            v_permlane32_swap_b32 v{l_cs+g}, v{lt+4}
            v_add_f32 v{l_cs+g}, v{l_cs+g}, v{lt+4}
            """)
    def grp_lane(lt):
        a(f"""
        v_lshrrev_b32 v{lt}, 4, v{v_lane}
        v_lshlrev_b32 v{lt}, 2, v{lt}
        v_bfe_u32 v{lt+1}, v{v_lane}, 2, 2
        v_add_u32 v{lt}, v{lt}, v{lt+1}
        v_and_b32 v{lt+1}, 3, v{v_lane}
        v_lshlrev_b32 v{lt+1}, 3, v{lt+1}
        """)

    a.label("P1_LOADER")
    vx, vq, vm = 3, 4, 7
    vt = 8
    a(f"s_sub_u32 s{s_wave}, s{s_wave}, 4")
    r_loader_voff(a, vx, vt, v_lane, s_wave, s_t0, 1024)
    a(f"""
    s_lshl_b32 s{s_bx}, s{s_rt}, 17              ; rt*128*1024
    s_lshl_b32 s{s_t0}, s{s_wave}, 13            ; 8 rows * 1024 * w
    s_add_u32 s{s_bx}, s{s_bx}, s{s_t0}
    s_lshl_b32 s{s_lx}, s{s_wave}, 10
    """)
    t64_loader_voff(a, vm, vt, v_lane, 2048)
    for jj in range(3):
        a(f"""
        v_add_u32 v{vt}, {64*jj}, v{v_lane}
        v_mul_u32_u24 v{vt+1}, 43691, v{vt}
        v_lshrrev_b32 v{vt+1}, 19, v{vt+1}          ; row = f/12
        v_mul_u32_u24 v{vt+2}, 12, v{vt+1}
        v_sub_u32 v{vt+2}, v{vt}, v{vt+2}           ; slot
        v_lshlrev_b32 v{vt+2}, 4, v{vt+2}
        v_mul_u32_u24 v{vt+1}, 3072, v{vt+1}
        v_add_u32 v{vq+jj}, v{vt+1}, v{vt+2}
        """)
    a(f"""
    s_mul_i32 s{s_bq}, s{s_wave}, {16*3072}
    s_mul_i32 s{s_t0}, s{s_ct}, 192
    s_add_u32 s{s_bq}, s{s_bq}, s{s_t0}
    s_mul_i32 s{s_bm}, s{s_wave}, {16*2048}
    s_lshl_b32 s{s_t0}, s{s_ct}, 7
    s_add_u32 s{s_bm}, s{s_bm}, s{s_t0}
    s_mul_i32 s{s_lq}, s{s_wave}, 3072
    s_add_u32 s{s_lq}, s{s_lq}, {WQ_OFF}
    s_lshl_b32 s{s_lm}, s{s_wave}, 11
    s_add_u32 s{s_lm}, s{s_lm}, {WM_OFF}
    s_waitcnt lgkmcnt(0)
    """)
    srd(a, sX, 4, 5, 2000 * 1024)
    srd(a, sWQ, 6, 7, 512 * 3072)
    srd(a, sWM, 32, 33, 512 * 2048)
    streams = [
        Stream(sX, [vx]*4, [i*32*1024 for i in range(4)], [X_OFF + i*4096 for i in range(4)], s_bx, 128, s_lx),
        Stream(sWQ, [vq, vq+1, vq+2], [0, 0, 0], [0, 1024, 2048], s_bq, 64*3072, s_lq),
        Stream(sWM, [vm, vm], [0, 8*2048], [0, 1024], s_bm, 64*2048, s_lm),
    ]
    def hook():
        out_srds()
    stamp(a, 2)
    loader_loop(a, streams, NC1, S1, STAGE, s_kc, s_slot, s_cnt, s_t0, s_t1, s_t2, lds_base=RING, hook=hook,
                ahead=(3 if 'ah3' in abl else 2))
    stamp(a, 3)

    if "nopf" not in abl:
        a(f"""
        s_load_dwordx2 s[8:9], s[0:1], {KA['w_att_out']}
        s_load_dwordx2 s[12:13], s[0:1], {KA['w_mlp_out']}
        s_load_dwordx2 s[16:17], s[0:1], {KA['w_merge']}
        v_and_b32 v3, 15, v{v_lane}
        s_lshl_b32 s{s_t0}, s2, 4
        v_add_u32 v3, s{s_t0}, v3
        v_lshlrev_b32 v3, 7, v3                      ; line*128
        s_waitcnt lgkmcnt(0)
        s_mov_b32 s10, {512*1024}
        s_mov_b32 s11, 0x20000
        s_mov_b32 s14, {512*1024}
        s_mov_b32 s15, 0x20000
        s_mov_b32 s18, {1024*1024}
        s_mov_b32 s19, 0x20000
        v_cmp_gt_u32 vcc, 16, v{v_lane}
        s_and_saveexec_b64 s[54:55], vcc
        s_cmp_eq_u32 s58, 4
        s_cbranch_scc0 P1_pf9
        buffer_load_dword v127, v3, s[8:11], 0 offen
        s_branch P1_pfd
        P1_pf9:
        s_cmp_eq_u32 s58, 5
        s_cbranch_scc0 P1_pf10
        buffer_load_dword v127, v3, s[12:15], 0 offen
        s_branch P1_pfd
        P1_pf10:
        s_sub_u32 s{s_t1}, s58, 6
        s_lshl_b32 s{s_t1}, s{s_t1}, 19
        buffer_load_dword v127, v3, s[16:19], s{s_t1} offen
        P1_pfd:
        s_mov_b64 exec, s[54:55]
        """)
    a.label("P1_HELP_EPI")
    a("s_barrier")
    a("s_barrier")
    H = 8
    a(f"""
    v_subrev_u32 v3, 256, v0                      ; htid (0..255)
    v_lshrrev_b32 v4, 4, v3                       ; row 0..15
    v_and_b32 v5, 15, v3                          ; slot
    v_lshlrev_b32 v5, 4, v5
    v_mul_u32_u24 v6, {PM}, v4
    v_add_u32 v6, v6, v5
    """)
    for j in range(4):
        a(f"ds_read_b128 v[{H+4*j}:{H+4*j+3}], v6 offset:{STG_M + 16*j*PM}")
    a(f"""
    v_lshl_add_u32 v7, v4, 12, v5
    s_lshl_b32 s{s_t2}, s{s_ct}, 18               ; 64 rows * 4096
    s_lshl_b32 s{s_t0}, s{s_rt}, 8                ; 128 tokens * 2 B
    s_add_u32 s{s_t2}, s{s_t2}, s{s_t0}
    """)
    X = 24
    G = 56
    cA, cB = 88, 89
    a(f"""
    v_mov_b32 v{cA}, {hex(f2u(kA))}
    v_mov_b32 v{cB}, {hex(f2u(kB))}
    """)
    for half in range(2):
        a(f"s_waitcnt lgkmcnt({2 if half == 0 else 0})")
        x0 = X + 16*half; g0 = G + 16*half; h0 = H + 8*half
        for i in range(8):
            a(f"v_lshlrev_b32 v{x0+2*i}, 16, v{h0+i}")
            a(f"v_and_b32 v{x0+2*i+1}, 0xffff0000, v{h0+i}")
        for i in range(16): a(f"v_mul_f32 v{g0+i}, v{x0+i}, v{x0+i}")
        for i in range(16): a(f"v_fma_f32 v{g0+i}, v{g0+i}, v{cB}, v{cA}")
        for i in range(16): a(f"v_mul_f32 v{g0+i}, v{g0+i}, v{x0+i}")
        for i in range(16): a(f"v_exp_f32 v{g0+i}, v{g0+i}")
        for i in range(16): a(f"v_add_f32 v{g0+i}, 1.0, v{g0+i}")
        for i in range(16): a(f"v_rcp_f32 v{g0+i}, v{g0+i}")
        for i in range(16): a(f"v_mul_f32 v{x0+i}, v{x0+i}, v{g0+i}")
        for i in range(8): a(f"v_cvt_pk_bf16_f32 v{h0+i}, v{x0+2*i}, v{x0+2*i+1}")
        for j in range(2):
            jj = 2*half + j
            a(f"s_add_u32 s{s_t1}, s{s_t2}, {16*jj*4096}")
            a(f"buffer_store_dwordx4 v[{H+4*jj}:{H+4*jj+3}], v7, s[{sUG}:{sUG+3}], s{s_t1} offen {SC}")
    a(f"s_cmp_lt_u32 s{s_ct}, 8")
    a("s_cbranch_scc1 P1_nostat")
    for i in range(8):
        a(f"v_mul_f32 v{G+i}, v{X+i}, v{X+i}")
        for j in range(1, 4):
            a(f"v_fma_f32 v{G+i}, v{X+8*j+i}, v{X+8*j+i}, v{G+i}")
        a(f"v_add_f32 v{X+i}, v{X+i}, v{X+8+i}")
        a(f"v_add_f32 v{X+16+i}, v{X+16+i}, v{X+24+i}")
    for i in range(8): a(f"v_add_f32 v{X+i}, v{X+i}, v{X+16+i}")
    for i in range(8): a(f"v_permlane16_swap_b32 v{X+i}, v{G+i}")
    for i in range(8): a(f"v_add_f32 v{X+i}, v{X+i}, v{G+i}")
    for i in range(4): a(f"v_permlane32_swap_b32 v{X+i}, v{X+4+i}")
    for i in range(4): a(f"v_add_f32 v{X+i}, v{X+i}, v{X+4+i}")
    a(f"""
    v_lshlrev_b32 v4, 4, v3                       ; htid*16
    ds_write_b128 v4, v[{X}:{X+3}] offset:{STG_P}
    """)
    a.label("P1_nostat")
    a("s_waitcnt lgkmcnt(0)")
    stamp(a, 5)
    a("s_barrier")

    a.label("P1_STORE")
    d = 8
    a(f"s_mul_i32 s{s_t1}, s{s_rt}, {128*3072}")
    a(f"s_mul_i32 s{s_t2}, s{s_ct}, 192")
    a(f"s_add_u32 s{s_t1}, s{s_t1}, s{s_t2}")
    for i in range(3):
        a(f"""
        v_add_u32 v3, {512*i}, v0
        v_mul_u32_u24 v4, 43691, v3
        v_lshrrev_b32 v4, 19, v4              ; row
        v_mul_u32_u24 v5, 12, v4
        v_sub_u32 v5, v3, v5                  ; slot
        v_lshlrev_b32 v5, 4, v5
        v_mul_u32_u24 v6, {PQ}, v4
        v_add_u32 v6, v6, v5
        ds_read_b128 v[{d+4*i}:{d+4*i+3}], v6 offset:{STG_Q}
        v_mul_u32_u24 v4, 3072, v4
        v_add_u32 v{40+i}, v4, v5
        """)
    a(f"s_cmp_lg_u32 s58, 7")
    a("s_cbranch_scc1 P1_nofin")
    a(f"s_cmp_lt_u32 s{s_ct}, 8")
    a("s_cbranch_scc1 P1_nofin")
    a(f"v_lshlrev_b32 v4, 4, v{v_lane}")
    for w in range(4):
        a(f"ds_read_b128 v[{48+4*w}:{48+4*w+3}], v4 offset:{STG_P + w*1024}")
    a(f"""
    v_and_b32 v5, 15, v{v_lane}
    v_lshlrev_b32 v5, 3, v5                      ; 8*slot
    v_lshrrev_b32 v6, 5, v{v_lane}
    v_lshl_add_u32 v5, v6, 2, v5                  ; + 4*half
    s_lshl_b32 s{s_t0}, s{s_rt}, 7
    v_add_u32 v5, s{s_t0}, v5
    v_lshlrev_b32 v5, 2, v5
    v_bfe_u32 v6, v{v_lane}, 4, 1
    v_lshl_add_u32 v5, v6, 13, v5                 ; stat * 2048*4
    s_sub_u32 s{s_t0}, s{s_ct}, 8
    s_lshl_b32 s{s_t0}, s{s_t0}, 14
    s_waitcnt lgkmcnt(0)
    """)
    for w in range(1, 4):
        for i in range(4): a(f"v_add_f32 v{48+i}, v{48+i}, v{48+4*w+i}")
    a(f"buffer_store_dwordx4 v[48:51], v5, s[{sGS}:{sGS+3}], s{s_t0} offen {SC}")
    a.label("P1_nofin")
    a("s_waitcnt lgkmcnt(0)")
    for i in range(3):
        a(f"buffer_store_dwordx4 v[{d+4*i}:{d+4*i+3}], v{40+i}, s[{sQKV}:{sQKV+3}], s{s_t1} offen {SC}")
    if STAMPS_ON():
        a("s_waitcnt vmcnt(0)")
    stamp(a, 6)
    stamp_flush(a, 58)
    a.label(END)
    if common.PERS: grid_arrive(a, 0)
    else: a("s_endpgm")
    return a.text(), dict(name=name, vgpr=max(V.hi, 96), sgpr=100, lds=LDS1, grid=256, block=512)
```

```python
from common import *
import common, struct
def STAMPS_ON(): return common.STAMPS
def f2u(x): return struct.unpack("<I", struct.pack("<f", x))[0]

NC = 8
LDS2 = 163840
Z_RS, Z_NM, Z_WP, Z_GN, Z_PG = 0, 1152, 2304, 27136, 608

WP_CH = 388

def conv_T_addr(a, vd, vt, v_lane, base):
    a(f"""
    v_lshrrev_b32 v{vt}, 4, v{v_lane}
    v_lshlrev_b32 v{vt}, 3, v{vt}
    v_and_b32 v{vt+1}, 15, v{v_lane}
    v_sub_u32 v{vt}, v{vt}, v{vt+1}
    v_add_u32 v{vt}, 15, v{vt}
    v_lshlrev_b32 v{vt}, 1, v{vt}
    v_and_b32 v{vt+1}, 1, v{vt+1}
    v_xor_b32 v{vt+1}, 1, v{vt+1}
    v_mul_u32_u24 v{vt+1}, 190, v{vt+1}
    v_add_u32 v{vt}, v{vt}, v{vt+1}
    v_add_u32 v{vd}, {base}, v{vt}
    """)

def conv_T_reads(dst, vaddr, s, ch3=0):
    o = ch3 * (WP_CH // 4) + 16 * s
    return [f"ds_read2_b32 v[{dst}:{dst+1}], v{vaddr} offset0:{o} offset1:{o+1}",
            f"ds_read2_b32 v[{dst+2}:{dst+3}], v{vaddr} offset0:{o+2} offset1:{o+3}"]

def filter_table_loads(a, s_dw_srd, s_c0bytes, nch, pitch_bytes, vt, nthreads=512):
    sh = nch.bit_length() - 1
    per = nthreads // nch
    rounds = (31 + per - 1) // per
    assert rounds <= 4
    for j in range(rounds):
        a(f"""
        v_lshrrev_b32 v{vt+5}, {sh}, v0
        v_add_u32 v{vt+5}, {per*j}, v{vt+5}          ; tap i
        v_and_b32 v{vt+6}, {nch-1}, v0                ; channel
        v_mul_u32_u24 v{vt+7}, {pitch_bytes}, v{vt+5}
        v_lshl_add_u32 v{vt+7}, v{vt+6}, 1, v{vt+7}
        v_cmp_gt_u32 vcc, 31, v{vt+5}
        v_cndmask_b32 v{vt+7}, -1, v{vt+7}, vcc
        buffer_load_ushort v{vt+8+j}, v{vt+7}, s[{s_dw_srd}:{s_dw_srd+3}], s{s_c0bytes} offen
        v_mul_u32_u24 v{vt+6}, {WP_CH}, v{vt+6}
        v_lshl_add_u32 v{vt+12+j}, v{vt+5}, 1, v{vt+6}
        """)
    return rounds

def filter_table_zero(a, nch, wp_base, vt, nthreads=512):
    ngran = (nch * WP_CH + 15) // 16
    a(f"""
    v_mov_b32 v{vt}, 0
    v_mov_b32 v{vt+1}, 0
    v_mov_b32 v{vt+2}, 0
    v_mov_b32 v{vt+3}, 0
    """)
    for j in range((ngran + nthreads - 1) // nthreads):
        a(f"""
        v_add_u32 v{vt+5}, {nthreads*j}, v0
        v_lshlrev_b32 v{vt+4}, 4, v{vt+5}
        v_cmp_gt_u32 vcc, {ngran}, v{vt+5}
        s_and_saveexec_b64 s[54:55], vcc
        ds_write_b128 v{vt+4}, v[{vt}:{vt+3}] offset:{wp_base}
        s_mov_b64 exec, s[54:55]
        """)

def filter_table_write(a, nch, wp_base, vt, rounds, nthreads=512):
    sh = nch.bit_length() - 1
    per = nthreads // nch
    for j in range(rounds):
        a(f"""
        v_lshrrev_b32 v{vt+5}, {sh}, v0
        v_add_u32 v{vt+5}, {per*j}, v{vt+5}
        v_cmp_gt_u32 vcc, 31, v{vt+5}
        s_and_saveexec_b64 s[54:55], vcc
        ds_write_b16 v{vt+12+j}, v{vt+8+j} offset:{wp_base + 32}
        ds_write_b16 v{vt+12+j}, v{vt+8+j} offset:{wp_base + 192 + 30}
        s_mov_b64 exec, s[54:55]
        """)

def build_filter_table(a, s_dw_srd, s_c0bytes, nch, pitch_bytes, wp_base, vt, s_t, nthreads=512):
    filter_table_zero(a, nch, wp_base, vt, nthreads)
    rounds = filter_table_loads(a, s_dw_srd, s_c0bytes, nch, pitch_bytes, vt, nthreads)
    a("s_waitcnt lgkmcnt(0)")
    a("s_barrier")
    a("s_waitcnt vmcnt(0)")
    filter_table_write(a, nch, wp_base, vt, rounds, nthreads)

def gen_p2(name="p2_kernel", abl=()):
    SC = common.SCF
    a = Asm('p2_')
    END = "P2_END"
    sA, sB, sO1, sO2, sU, sG = 8, 12, 16, 20, 24, 28
    s_wave, s_i0, s_i1, s_kc, s_slot, s_cnt, s_t0, s_t1, s_t2 = 36, 37, 38, 39, 40, 41, 42, 43, 44
    s_b0, s_b1, s_l0, s_l1 = 45, 46, 48, 49
    s_b, s_delta, s_neg, s_pos, s_rs = 51, 52, 56, 57, 53
    s_xcd, s_idx = 47, 50
    v_lane = 2
    a(f"""
    s_cmp_ge_u32 s2, 256
    s_cbranch_scc1 {END}
    s_load_dwordx2 s[4:5], s[0:1], {KA['ws']}
    s_load_dwordx2 s[6:7], s[0:1], {KA['w_att_out']}
    s_load_dwordx2 s[32:33], s[0:1], {KA['dw_csgu']}
    """)
    stamp_zero(a)
    if STAMPS_ON():
        a("s_memrealtime s[64:65]")
        a("s_memtime s[66:67]")
    a(f"""
    v_lshrrev_b32 v1, 6, v0
    v_and_b32 v2, 63, v0
    v_readfirstlane_b32 s{s_wave}, v1
    s_and_b32 s{s_xcd}, s2, 7
    s_lshr_b32 s{s_idx}, s2, 3
    s_mov_b32 s58, s{s_wave}
    s_waitcnt lgkmcnt(0)
    """)
    stamp_init(a, 4, 5, 1)
    a(f"s_cmp_ge_u32 s{s_idx}, 16")
    a("s_cbranch_scc1 P2_VROLE")

    K_OFF, Q_OFF, STAGE, S = 0, 16384, 32768, 5
    a(f"""
    s_lshr_b32 s{s_b}, s{s_xcd}, 2                 ; batch
    s_and_b32 s{s_t0}, s{s_xcd}, 3                 ; quadrant
    s_lshr_b32 s{s_i0}, s{s_t0}, 1
    s_lshl_b32 s{s_i0}, s{s_i0}, 2
    s_and_b32 s{s_t1}, s{s_idx}, 3
    s_add_u32 s{s_i0}, s{s_i0}, s{s_t1}            ; qt
    s_and_b32 s{s_i1}, s{s_t0}, 1
    s_lshl_b32 s{s_i1}, s{s_i1}, 2
    s_lshr_b32 s{s_t2}, s{s_idx}, 2
    s_add_u32 s{s_i1}, s{s_i1}, s{s_t2}            ; kt
    s_lshl_b32 s{s_t1}, s{s_t1}, 1
    s_add_u32 s{s_kc}, s{s_t1}, s{s_t2}
    s_and_b32 s{s_kc}, s{s_kc}, 7
    s_mul_i32 s{s_t0}, s{s_b}, {1000*3072}
    s_add_u32 s{sA}, s4, s{s_t0}
    s_addc_u32 s{sA+1}, s5, 0
    s_mov_b32 s{sA+2}, {1000*3072}
    s_mov_b32 s{sA+3}, 0x20000
    s_lshl_b32 s{s_t0}, s{s_b}, 21                 ; batch * 1024*2048
    s_add_u32 s{s_t0}, s{s_t0}, {WS_PT}
    s_add_u32 s{sO1}, s4, s{s_t0}
    s_addc_u32 s{sO1+1}, s5, 0
    s_mov_b32 s{sO1+2}, {1000*2048}
    s_mov_b32 s{sO1+3}, 0x20000
    """)
    if "norot" in abl: a(f"s_mov_b32 s{s_kc}, 0")
    srd(a, sO2, 4, 5, 2*8*2*1024*4, WS_SST)
    a(f"s_cmp_ge_u32 s{s_wave}, 4")
    a("s_cbranch_scc1 P2_S_LOADER")
    V = Alloc(3, 256)
    vq = V(4); vk = V(4); vt = V(8, 2)
    fq = [V(4, 4) for _ in range(4)]
    fk = [[V(4, 4) for _ in range(4)] for _ in range(4)]
    acc = [V(16, 4) for _ in range(4)]
    r_frag_addrs(a, vq, vt, v_lane, s_wave, s_t0, Q_OFF)
    r_frag_addrs(a, vk, vt, v_lane, None, s_t0, K_OFF)
    ring = Ring(a, S, STAGE, s_rs, s_delta, s_neg, s_pos); ring.init()
    for b in range(4):
        for i in range(16): a(f"v_mov_b32 v{acc[b]+i}, 0")
    def reads(step, st):
        r = [f"ds_read_b128 v[{fq[st]}:{fq[st]+3}], v{vq+step}"]
        for b in range(4): r.append(f"ds_read_b128 v[{fk[st][b]}:{fk[st][b]+3}], v{vk+step} offset:{b*4096}")
        return r
    def mfmas(st, s, par):
        return [f"v_mfma_f32_32x32x16_bf16 v[{acc[b]}:{acc[b]+15}], v[{fk[st][b]}:{fk[st][b]+3}], v[{fq[st]}:{fq[st]+3}], v[{acc[b]}:{acc[b]+15}]" for b in range(4)]
    grid_wait(a, 0, vt, v_lane)
    gemm_loop2(a, NC, ring, [vq+i for i in range(4)] + [vk+i for i in range(4)], reads, mfmas, [2, 3, 4, 5], s_cnt, "S", D=2, per=2,
               first_hook=lambda: stamp(a, 2))
    stamp(a, 3)
    vm = V(2, 2); vl = V(4, 4); cS = V(2, 2); tp = V(4, 4); vst = V(1)
    CS = 1.4426950408889634 / (512 ** 0.5)
    a(f"s_cmp_lg_u32 s{s_i1}, 7")
    a("s_cbranch_scc1 P2_S_nomask")
    for i in range(4, 16): a(f"v_mov_b32 v{acc[3]+i}, 0xff800000")
    a.label("P2_S_nomask")
    allr = [acc[b] + i for b in range(4) for i in range(16)]
    a(f"v_max3_f32 v{vm}, v{allr[0]}, v{allr[1]}, v{allr[2]}")
    a(f"v_max3_f32 v{vm+1}, v{allr[3]}, v{allr[4]}, v{allr[5]}")
    k = 6; t = 0
    while k < 64:
        if k + 1 < 64:
            a(f"v_max3_f32 v{vm+t}, v{allr[k]}, v{allr[k+1]}, v{vm+t}"); k += 2
        else:
            a(f"v_max_f32 v{vm+t}, v{allr[k]}, v{vm+t}"); k += 1
        t ^= 1
    a(f"""
    v_max_f32 v{vm}, v{vm}, v{vm+1}
    v_mov_b32 v{vm+1}, v{vm}
    s_nop 1
    v_permlane32_swap_b32 v{vm}, v{vm+1}
    v_max_f32 v{vm}, v{vm}, v{vm+1}
    v_mul_f32 v{vm}, {hex(f2u(CS))}, v{vm}
    v_sub_f32 v{vm+1}, 0, v{vm}
    v_mov_b32 v{cS}, {hex(f2u(CS))}
    v_mov_b32 v{cS+1}, {hex(f2u(CS))}
    v_mov_b32 v{vl}, 0
    v_mov_b32 v{vl+1}, 0
    v_mov_b32 v{vl+2}, 0
    v_mov_b32 v{vl+3}, 0
    v_and_b32 v{vt}, 31, v{v_lane}
    s_lshl_b32 s{s_t0}, s{s_wave}, 5
    v_add_u32 v{vt}, s{s_t0}, v{vt}
    v_mul_u32_u24 v{vst}, 272, v{vt}
    v_lshrrev_b32 v{vt+1}, 5, v{v_lane}
    v_lshl_add_u32 v{vst}, v{vt+1}, 3, v{vst}        ; + h*8 bytes
    s_barrier
    """)
    for b in range(4):
        for r in range(4):
            x = acc[b] + 4*r
            for p in range(2):
                a(f"v_pk_fma_f32 v[{x+2*p}:{x+2*p+1}], v[{x+2*p}:{x+2*p+1}], v[{cS}:{cS+1}], v[{vm}:{vm+1}] op_sel:[0,0,1] op_sel_hi:[1,1,1]")
            for i in range(4): a(f"v_exp_f32 v{x+i}, v{x+i}")
            a(f"v_pk_add_f32 v[{vl}:{vl+1}], v[{vl}:{vl+1}], v[{x}:{x+1}]")
            a(f"v_pk_add_f32 v[{vl+2}:{vl+3}], v[{vl+2}:{vl+3}], v[{x+2}:{x+3}]")
            a(f"v_cvt_pk_bf16_f32 v{tp+2*(r&1)}, v{x}, v{x+1}")
            a(f"v_cvt_pk_bf16_f32 v{tp+2*(r&1)+1}, v{x+2}, v{x+3}")
            a(f"ds_write_b64 v{vst}, v[{tp+2*(r&1)}:{tp+2*(r&1)+1}] offset:{(32*b + 8*r)*2}")
    a(f"""
    v_add_f32 v{vl}, v{vl}, v{vl+1}
    v_add_f32 v{vl+2}, v{vl+2}, v{vl+3}
    v_add_f32 v{vl}, v{vl}, v{vl+2}
    v_mov_b32 v{vl+1}, v{vl}
    s_nop 1
    v_permlane32_swap_b32 v{vl}, v{vl+1}
    v_add_f32 v{vl}, v{vl}, v{vl+1}
    v_cmp_gt_u32 vcc, 32, v{v_lane}
    s_nop 1
    v_cndmask_b32 v{vl}, v{vl}, v{vm}, vcc
    s_lshl_b32 s{s_t0}, s{s_i0}, 7
    v_add_u32 v{vt}, s{s_t0}, v{vt}
    v_lshlrev_b32 v{vt}, 2, v{vt}
    v_lshrrev_b32 v{vt+1}, 5, v{v_lane}
    v_lshl_add_u32 v{vt}, v{vt+1}, 12, v{vt}         ; stat * 1024*4
    s_lshl_b32 s{s_t0}, s{s_b}, 3
    s_add_u32 s{s_t0}, s{s_t0}, s{s_i1}
    s_lshl_b32 s{s_t0}, s{s_t0}, 13                 ; (b*8+kt) * 2*1024*4
    buffer_store_dword v{vl}, v{vt}, s[{sO2}:{sO2+3}], s{s_t0} offen {SC}
    s_waitcnt lgkmcnt(0)
    """)
    stamp(a, 5)
    a("s_barrier")
    a("s_branch P2_S_STORE")
    a.label("P2_S_LOADER")
    vo, vt_l = 3, 8
    a(f"s_sub_u32 s{s_wave}, s{s_wave}, 4")
    r_loader_voff(a, vo, vt_l, v_lane, s_wave, s_t0, 3072)
    a(f"""
    s_lshl_b32 s{s_b0}, s{s_i1}, 7
    s_lshl_b32 s{s_t0}, s{s_wave}, 3
    s_add_u32 s{s_b0}, s{s_b0}, s{s_t0}
    s_mul_i32 s{s_b0}, s{s_b0}, 3072
    s_add_u32 s{s_b0}, s{s_b0}, 1024               ; k rows
    s_lshl_b32 s{s_b1}, s{s_i0}, 7
    s_add_u32 s{s_b1}, s{s_b1}, s{s_t0}
    s_mul_i32 s{s_b1}, s{s_b1}, 3072               ; q rows
    s_lshl_b32 s{s_l0}, s{s_wave}, 10
    """)
    streams = [
        Stream(sA, [vo]*4, [i*32*3072 for i in range(4)], [Q_OFF + i*4096 for i in range(4)], s_b1, 128, s_l0, dep=True),
        Stream(sA, [vo]*4, [i*32*3072 for i in range(4)], [K_OFF + i*4096 for i in range(4)], s_b0, 128, s_l0, dep=True),
    ]
    grid_wait(a, 0, 12, v_lane)
    stamp(a, 2)
    loader_loop(a, streams, NC, S, STAGE, s_kc, s_slot, s_cnt, s_t0, s_t1, s_t2, ahead=3)
    stamp(a, 3)
    a("s_barrier")
    a("s_barrier")
    a.label("P2_S_STORE")
    a(f"""
    s_lshl_b32 s{s_t1}, s{s_i0}, 18              ; qt*128*2048
    s_lshl_b32 s{s_t2}, s{s_i1}, 8               ; kt*256
    s_add_u32 s{s_t1}, s{s_t1}, s{s_t2}
    """)
    for i in range(4):
        a(f"""
        v_add_u32 v3, {512*i}, v0
        v_lshrrev_b32 v4, 4, v3
        v_and_b32 v5, 15, v3
        v_lshlrev_b32 v5, 4, v5
        v_mul_u32_u24 v6, 272, v4
        v_add_u32 v6, v6, v5
        ds_read_b128 v[{8+4*i}:{8+4*i+3}], v6
        v_lshl_add_u32 v{40+i}, v4, 11, v5
        """)
    a("s_waitcnt lgkmcnt(0)")
    for i in range(4):
        a(f"buffer_store_dwordx4 v[{8+4*i}:{8+4*i+3}], v{40+i}, s[{sO1}:{sO1+3}], s{s_t1} offen {SC}")
    a("s_branch P2_FIN")

    a.label("P2_VROLE")
    a(f"s_cmp_ge_u32 s{s_idx}, 24")
    a("s_cbranch_scc1 P2_ZROLE")
    V_OFF, W_OFF, STAGE, S = 0, 16384, 32768, 5
    a(f"""
    s_sub_u32 s{s_idx}, s{s_idx}, 16
    s_lshr_b32 s{s_t0}, s{s_idx}, 2
    s_lshl_b32 s{s_i0}, s{s_xcd}, 1
    s_add_u32 s{s_i0}, s{s_i0}, s{s_t0}            ; rt
    s_and_b32 s{s_i1}, s{s_idx}, 3
    s_mov_b32 s{s_kc}, s{s_idx}
    """)
    if "norot" in abl: a(f"s_mov_b32 s{s_kc}, 0")
    srd(a, sA, 4, 5, 2000 * 3072, WS_QKV)
    srd(a, sB, 6, 7, 512 * 1024)
    srd(a, sO1, 4, 5, 2000 * 1024, WS_VP)
    a(f"s_cmp_ge_u32 s{s_wave}, 4")
    a("s_cbranch_scc1 P2_V_LOADER")
    V2 = Alloc(3, 256)
    vv = V2(4); vw = V2(2); vt = V2(8, 2)
    fv = [[V2(4, 4) for _ in range(2)] for _ in range(4)]
    fw = [[V2(4, 4) for _ in range(2)] for _ in range(4)]
    acc = [[V2(16, 4) for _ in range(2)] for _ in range(2)]
    tp = V2(4, 4); vst = V2(1)
    s_wc, s_wt = 24, 25
    a(f"s_and_b32 s{s_wc}, s{s_wave}, 1")
    a(f"s_lshl_b32 s{s_wc}, s{s_wc}, 1")
    a(f"s_lshr_b32 s{s_wt}, s{s_wave}, 1")
    a(f"s_lshl_b32 s{s_wt}, s{s_wt}, 1")
    r_frag_addrs(a, vv, vt, v_lane, s_wt, s_t0, V_OFF)
    t128_frag_addr_blk(a, vw, vt, v_lane, W_OFF, s_wc)
    a(f"s_add_u32 s{s_t1}, s{s_wc}, 1")
    t128_frag_addr_blk(a, vw + 1, vt, v_lane, W_OFF, s_t1)
    ring = Ring(a, S, STAGE, s_rs, s_delta, s_neg, s_pos); ring.init()
    for cb in range(2):
        for tb in range(2):
            for i in range(16): a(f"v_mov_b32 v{acc[cb][tb]+i}, 0")
    def reads(step, st):
        r = [f"ds_read_b128 v[{fv[st][0]}:{fv[st][0]+3}], v{vv+step}"]
        r += tr2(fw[st][0], vw, 16*step*256, 256)
        r += [f"ds_read_b128 v[{fv[st][1]}:{fv[st][1]+3}], v{vv+step} offset:4096"]
        r += tr2(fw[st][1], vw + 1, 16*step*256, 256)
        return r
    def mfmas(st, s, par):
        return [f"v_mfma_f32_32x32x16_bf16 v[{acc[cb][tb]}:{acc[cb][tb]+15}], v[{fw[st][cb]}:{fw[st][cb]+3}], v[{fv[st][tb]}:{fv[st][tb]+3}], v[{acc[cb][tb]}:{acc[cb][tb]+15}]"
                for cb, tb in ((0, 0), (0, 1), (1, 0), (1, 1))]
    grid_wait(a, 0, vt, v_lane)
    gemm_loop2(a, NC, ring, [vv+i for i in range(4)] + [vw, vw+1], reads, mfmas, [3, 4, 6, 6], s_cnt, "V", D=2, per=2,
               first_hook=lambda: stamp(a, 2))
    stamp(a, 3)
    a(f"""
    v_and_b32 v{vt}, 31, v{v_lane}
    s_lshl_b32 s{s_t0}, s{s_wt}, 5
    v_add_u32 v{vt}, s{s_t0}, v{vt}
    v_mul_u32_u24 v{vst}, 272, v{vt}
    s_lshl_b32 s{s_t0}, s{s_wc}, 6
    v_add_u32 v{vst}, s{s_t0}, v{vst}
    v_lshrrev_b32 v{vt+1}, 5, v{v_lane}
    v_lshl_add_u32 v{vst}, v{vt+1}, 3, v{vst}
    s_barrier
    """)
    for cb in range(2):
        for tb in range(2):
            for r in range(4):
                x = acc[cb][tb] + 4*r
                a(f"v_cvt_pk_bf16_f32 v{tp+2*(r&1)}, v{x}, v{x+1}")
                a(f"v_cvt_pk_bf16_f32 v{tp+2*(r&1)+1}, v{x+2}, v{x+3}")
                a(f"ds_write_b64 v{vst}, v[{tp+2*(r&1)}:{tp+2*(r&1)+1}] offset:{tb*32*272 + (32*cb + 8*r)*2}")
    a("s_waitcnt lgkmcnt(0)")
    stamp(a, 5)
    a("s_barrier")
    a("s_branch P2_V_STORE")
    a.label("P2_V_LOADER")
    vo, vo2, vt_l = 3, 4, 8
    a(f"s_sub_u32 s{s_wave}, s{s_wave}, 4")
    r_loader_voff(a, vo, vt_l, v_lane, s_wave, s_t0, 3072)
    t128_loader_voff(a, vo2, vt_l, v_lane, 1024)
    a(f"""
    s_lshl_b32 s{s_b0}, s{s_i0}, 7
    s_lshl_b32 s{s_t0}, s{s_wave}, 3
    s_add_u32 s{s_b0}, s{s_b0}, s{s_t0}
    s_mul_i32 s{s_b0}, s{s_b0}, 3072
    s_add_u32 s{s_b0}, s{s_b0}, 2048               ; v columns
    s_lshl_b32 s{s_b1}, s{s_wave}, 14              ; 16 rows * 1024
    s_lshl_b32 s{s_t0}, s{s_i1}, 8
    s_add_u32 s{s_b1}, s{s_b1}, s{s_t0}
    s_lshl_b32 s{s_l0}, s{s_wave}, 10
    s_lshl_b32 s{s_l1}, s{s_wave}, 12
    s_add_u32 s{s_l1}, s{s_l1}, {W_OFF}
    """)
    streams = [
        Stream(sA, [vo]*4, [i*32*3072 for i in range(4)], [V_OFF + i*4096 for i in range(4)], s_b0, 128, s_l0, dep=True),
        Stream(sB, [vo2]*4, [i*4*1024 for i in range(4)], [i*1024 for i in range(4)], s_b1, 64*1024, s_l1),
    ]
    grid_wait(a, 0, 12, v_lane)
    stamp(a, 2)
    loader_loop(a, streams, NC, S, STAGE, s_kc, s_slot, s_cnt, s_t0, s_t1, s_t2, ahead=3)
    stamp(a, 3)
    a("s_barrier")
    a("s_barrier")
    a.label("P2_V_STORE")
    a(f"""
    s_lshl_b32 s{s_t1}, s{s_i0}, 17              ; rt*128*1024
    s_lshl_b32 s{s_t2}, s{s_i1}, 8               ; ct*256
    s_add_u32 s{s_t1}, s{s_t1}, s{s_t2}
    """)
    for i in range(4):
        a(f"""
        v_add_u32 v3, {512*i}, v0
        v_lshrrev_b32 v4, 4, v3
        v_and_b32 v5, 15, v3
        v_lshlrev_b32 v5, 4, v5
        v_mul_u32_u24 v6, 272, v4
        v_add_u32 v6, v6, v5
        ds_read_b128 v[{8+4*i}:{8+4*i+3}], v6
        v_lshl_add_u32 v{40+i}, v4, 10, v5
        """)
    a("s_waitcnt lgkmcnt(0)")
    for i in range(4):
        a(f"buffer_store_dwordx4 v[{8+4*i}:{8+4*i+3}], v{40+i}, s[{sO1}:{sO1+3}], s{s_t1} offen {SC}")
    a("s_branch P2_FIN")

    a.label("P2_ZROLE")
    NCH = 64
    s_c0, s_t0g, s_flat = s_i0, s_i1, s_b0
    a(f"""
    s_lshl_b32 s{s_c0}, s{s_xcd}, 6                ; c0
    s_sub_u32 s{s_t0}, s{s_idx}, 24                ; tg
    s_lshr_b32 s{s_b}, s{s_t0}, 2
    s_and_b32 s{s_t0g}, s{s_t0}, 3
    s_lshl_b32 s{s_t0g}, s{s_t0g}, 8               ; t0
    s_mul_i32 s{s_flat}, s{s_b}, 1000
    s_add_u32 s{s_flat}, s{s_flat}, s{s_t0g}
    """)
    srd(a, sG, 4, 5, 8*2*2048*4, WS_GST)
    srd(a, sU, 4, 5, 1024*4096, WS_UG)
    srd(a, sO2, 4, 5, 512*4096, WS_ZT)
    srd(a, sB, 32, 33, 31*1024)
    sM = 98
    grid_wait(a, 0, 8, v_lane)
    a(f"""
    v_mul_u32_u24 v6, 58255, v0
    v_lshrrev_b32 v6, 21, v6                       ; r0
    v_mul_u32_u24 v7, 36, v6
    v_sub_u32 v7, v0, v7                           ; slot
    v_lshlrev_b32 v5, 4, v7
    v_lshlrev_b32 v49, 1, v5
    s_add_u32 s{s_t1}, s{s_c0}, 512
    s_lshl_b32 s{s_t1}, s{s_t1}, 12
    s_lshl_b32 s{s_t2}, s{s_flat}, 1
    s_add_u32 s{s_t1}, s{s_t1}, s{s_t2}
    s_sub_u32 s{s_t1}, s{s_t1}, 32                 ; origin t0-16
    """)
    for j in range(5):
        a(f"""
        v_add_u32 v3, {14*j}, v6                     ; row
        v_lshl_add_u32 v54, v3, 12, v5               ; global offset
        v_mul_u32_u24 v4, {Z_PG}, v3
        v_add_u32 v{44+j}, v4, v5                    ; LDS offset in GN
        v_cmp_gt_u32 vcc, {NCH}, v3
        v_cmp_gt_u32 s[54:55], 504, v0
        s_and_b64 vcc, vcc, s[54:55]
        v_cndmask_b32 v54, -1, v54, vcc
        v_cndmask_b32 v{44+j}, {Z_PG*NCH}, v{44+j}, vcc      ; invalid -> dummy row behind the tile
        buffer_load_dwordx4 v[{24+4*j}:{24+4*j+3}], v54, s[{sU}:{sU+3}], s{s_t1} offen {SC}
        """.replace(f"v_cmp_gt_u32 s[54:55], 504, v0", "v_mov_b32 v4, 504\n        v_cmp_gt_u32 s[54:55], v4, v0").replace(f"v_cndmask_b32 v{44+j}, {Z_PG*NCH}, v{44+j}, vcc", f"v_mov_b32 v4, {Z_PG*NCH}\n        v_cndmask_b32 v{44+j}, v4, v{44+j}, vcc"))
    a(f"""
    v_add_u32 v3, s{s_t0g}, v0
    v_subrev_u32 v3, 16, v3                        ; t = t0 - 16 + tid
    v_cmp_gt_u32 vcc, 1000, v3
    s_mov_b64 s[{sM}:{sM+1}], vcc
    v_add_u32 v4, s{s_flat}, v0
    v_subrev_u32 v4, 16, v4
    v_lshlrev_b32 v4, 2, v4
    v_cndmask_b32 v4, -1, v4, vcc
    """)
    for p_ in range(8):
        for st in range(2):
            a(f"s_mov_b32 s{s_t0}, {p_*16384 + st*8192}")
            a(f"buffer_load_dword v{8+2*p_+st}, v4, s[{sG}:{sG+3}], s{s_t0} offen {SC}")
    a(f"s_lshl_b32 s{s_t2}, s{s_c0}, 1")
    rounds = filter_table_loads(a, sB, s_t2, NCH, 1024, 60)
    vG, vMask = 92, 93
    a(f"""
    v_and_b32 v5, 15, v{v_lane}
    v_lshlrev_b32 v5, 5, v5                        ; 16*b*2
    v_lshrrev_b32 v6, 4, v{v_lane}                 ; g
    v_lshl_add_u32 v{vG}, v6, 3, v5                 ; (16b + 4g)*2 bytes
    v_lshrrev_b32 v7, 1, v{vG}
    v_add_u32 v7, s{s_t0g}, v7                      ; t
    v_cmp_gt_u32 vcc, 1000, v7
    v_cndmask_b32 v{vMask}, -1, v{vG}, vcc
    s_lshl_b32 s{s_t0}, s{s_wave}, 3
    s_add_u32 s{s_t0}, s{s_t0}, s{s_c0}
    s_lshl_b32 s{s_t0}, s{s_t0}, 12
    s_lshl_b32 s{s_t1}, s{s_flat}, 1
    s_add_u32 s{s_l0}, s{s_t0}, s{s_t1}
    """)
    U = 96
    for c in range(8):
        a(f"s_add_u32 s{s_t1}, s{s_l0}, {c*4096}")
        a(f"buffer_load_dwordx2 v[{U+2*c}:{U+2*c+1}], v{vG}, s[{sU}:{sU+3}], s{s_t1} offen {SC}")
    filter_table_zero(a, NCH, Z_WP, 60)
    a(f"""
    v_lshrrev_b32 v3, 1, v0
    v_mul_u32_u24 v3, {Z_PG}, v3
    v_and_b32 v4, 1, v0
    v_lshl_add_u32 v3, v4, 4, v3
    v_cmp_gt_u32 vcc, {2*NCH}, v0
    s_and_saveexec_b64 s[54:55], vcc
    ds_write_b128 v3, v[60:63] offset:{Z_GN + 576}
    s_mov_b64 exec, s[54:55]
    s_waitcnt lgkmcnt(0)
    s_barrier
    s_waitcnt vmcnt({8})
    """)
    stamp(a, 2)
    filter_table_write(a, NCH, Z_WP, 60, rounds)
    a(f"""
    v_add_f32 v8, v8, v10
    v_add_f32 v9, v9, v11
    v_add_f32 v12, v12, v14
    v_add_f32 v13, v13, v15
    v_add_f32 v16, v16, v18
    v_add_f32 v17, v17, v19
    v_add_f32 v20, v20, v22
    v_add_f32 v21, v21, v23
    v_add_f32 v8, v8, v12
    v_add_f32 v9, v9, v13
    v_add_f32 v16, v16, v20
    v_add_f32 v17, v17, v21
    v_add_f32 v8, v8, v16
    v_add_f32 v9, v9, v17
    v_mul_f32 v8, 0x3b000000, v8
    v_mul_f32 v9, 0x3b000000, v9
    v_fma_f32 v9, -v8, v8, v9
    v_max_f32 v9, 0, v9
    v_add_f32 v9, 0x3727c5ac, v9
    v_rsq_f32 v9, v9
    s_nop 0
    v_cndmask_b32 v9, 0, v9, s[{sM}:{sM+1}]
    v_mul_f32 v8, -1.0, v8
    v_mul_f32 v8, v8, v9
    v_lshlrev_b32 v10, 2, v0
    v_cmp_gt_u32 vcc, 288, v0
    s_and_saveexec_b64 s[54:55], vcc
    ds_write_b32 v10, v9 offset:{Z_RS}
    ds_write_b32 v10, v8 offset:{Z_NM}
    s_mov_b64 exec, s[54:55]
    s_waitcnt lgkmcnt(0)
    s_barrier
    ds_read_b128 v[8:11], v49 offset:{Z_RS}
    ds_read_b128 v[12:15], v49 offset:{Z_RS+16}
    ds_read_b128 v[16:19], v49 offset:{Z_NM}
    ds_read_b128 v[20:23], v49 offset:{Z_NM+16}
    s_waitcnt lgkmcnt(0)
    """)
    for j in range(5):
        d = 24 + 4*j
        for i in range(4):
            t = 56 + 2*(i & 1)
            a(f"v_lshlrev_b32 v{t}, 16, v{d+i}")
            a(f"v_and_b32 v{t+1}, 0xffff0000, v{d+i}")
            a(f"v_fma_f32 v{t}, v{t}, v{8+2*i}, v{16+2*i}")
            a(f"v_fma_f32 v{t+1}, v{t+1}, v{9+2*i}, v{17+2*i}")
            a(f"v_cvt_pk_bf16_f32 v{d+i}, v{t}, v{t+1}")
        a(f"ds_write_b128 v{44+j}, v[{d}:{d+3}] offset:{Z_GN}")
    a("s_waitcnt lgkmcnt(0)")
    a("s_barrier")
    stamp(a, 3)
    vT, vB = 8, 9
    conv_T_addr(a, vT, 12, v_lane, Z_WP)
    a(f"""
    s_mul_i32 s{s_t0}, s{s_wave}, {8*WP_CH}
    v_add_u32 v{vT}, s{s_t0}, v{vT}
    v_and_b32 v12, 15, v{v_lane}
    v_lshlrev_b32 v12, 5, v12                      ; 16*b*2
    v_lshrrev_b32 v13, 4, v{v_lane}                ; g
    v_lshl_add_u32 v{vB}, v13, 4, v12               ; + 8g*2
    s_mul_i32 s{s_t0}, s{s_wave}, {8*Z_PG}
    s_add_u32 s{s_t0}, s{s_t0}, {Z_GN}
    v_add_u32 v{vB}, s{s_t0}, v{vB}
    v_add_u32 v10, {3*WP_CH}, v{vT}
    v_add_u32 v11, {6*WP_CH}, v{vT}
    """)
    D = 112
    vTb = [vT, 10, 11]
    for half in range(2):
        FB = 16
        for c in range(4):
            ch = 4*half + c
            base = FB + 16*c
            for s in range(2):
                for x in conv_T_reads(base + 8*s, vTb[ch // 3], s, ch % 3): a(x)
                a(f"ds_read_b128 v[{base+8*s+4}:{base+8*s+7}], v{vB} offset:{ch*Z_PG + 64*s}")
            if c == 1: a("s_waitcnt lgkmcnt(6)")
            if c == 2: a("s_waitcnt lgkmcnt(9)")
        if half == 0: a("s_waitcnt vmcnt(0)")
        for c in range(4):
            base = FB + 16*c
            a(f"s_waitcnt lgkmcnt({min(15, 6*(3-c))})" if c < 3 else "s_waitcnt lgkmcnt(0)")
            a(f"v_mfma_f32_16x16x32_bf16 v[{D+4*c}:{D+4*c+3}], v[{base}:{base+3}], v[{base+4}:{base+7}], 0")
            a(f"v_mfma_f32_16x16x32_bf16 v[{D+4*c}:{D+4*c+3}], v[{base+8}:{base+11}], v[{base+12}:{base+15}], v[{D+4*c}:{D+4*c+3}]")
        for c in range(4):
            ch = 4*half + c
            u = U + 2*ch; d = D + 4*c
            a(f"""
            v_lshlrev_b32 v84, 16, v{u}
            v_and_b32 v85, 0xffff0000, v{u}
            v_lshlrev_b32 v86, 16, v{u+1}
            v_and_b32 v87, 0xffff0000, v{u+1}
            v_mul_f32 v84, v84, v{d}
            v_mul_f32 v85, v85, v{d+1}
            v_mul_f32 v86, v86, v{d+2}
            v_mul_f32 v87, v87, v{d+3}
            v_cvt_pk_bf16_f32 v{u}, v84, v85
            v_cvt_pk_bf16_f32 v{u+1}, v86, v87
            s_add_u32 s{s_t1}, s{s_l0}, {ch*4096}
            buffer_store_dwordx2 v[{u}:{u+1}], v{vMask}, s[{sO2}:{sO2+3}], s{s_t1} offen {SC}
            """)
    a.label("P2_FIN")
    if STAMPS_ON():
        a("s_waitcnt vmcnt(0)")
    stamp(a, 6)
    stamp_flush(a, 58)
    a.label(END)
    if common.PERS: grid_arrive(a, 1)
    else: a("s_endpgm")
    return a.text(), dict(name=name, vgpr=max(V.hi, V2.hi, 128), sgpr=100, lds=LDS2, grid=256, block=512)
```

```python
from common import *
import common, struct
from p2 import conv_T_addr, build_filter_table, conv_T_reads, WP_CH
def STAMPS_ON(): return common.STAMPS
def f2u(x): return struct.unpack("<I", struct.pack("<f", x))[0]

LDS3 = 4096 + 5 * 24576

def prologue(a, END, ptrs, s_wave, s_xcd, s_idx, phase):
    a(f"s_cmp_ge_u32 s2, 256")
    a(f"s_cbranch_scc1 {END}")
    for reg, nm in ptrs:
        a(f"s_load_dwordx2 s[{reg}:{reg+1}], s[0:1], {KA[nm]}")
    stamp_zero(a)
    if STAMPS_ON():
        a("s_memrealtime s[64:65]")
        a("s_memtime s[66:67]")
    a(f"""
    v_lshrrev_b32 v1, 6, v0
    v_and_b32 v2, 63, v0
    v_readfirstlane_b32 s{s_wave}, v1
    s_and_b32 s{s_xcd}, s2, 7
    s_lshr_b32 s{s_idx}, s2, 3
    s_mov_b32 s58, s{s_wave}
    s_waitcnt lgkmcnt(0)
    """)

def store_T_tile(a, sO, s_rowbase, s_tbase_bytes, s_valid_gran, stg_pitch=272):
    for i in range(2):
        a(f"""
        v_add_u32 v3, {512*i}, v0
        v_lshrrev_b32 v4, 4, v3
        v_and_b32 v5, 15, v3
        v_cmp_gt_u32 vcc, s{s_valid_gran}, v5
        v_lshlrev_b32 v5, 4, v5
        v_mul_u32_u24 v6, {stg_pitch}, v4
        v_add_u32 v6, v6, v5
        ds_read_b128 v[{8+4*i}:{8+4*i+3}], v6
        v_lshl_add_u32 v{40+i}, v4, 12, v5
        v_cndmask_b32 v{40+i}, -1, v{40+i}, vcc
        """)
    a("s_waitcnt lgkmcnt(0)")
    for i in range(2):
        a(f"buffer_store_dwordx4 v[{8+4*i}:{8+4*i+3}], v{40+i}, s[{sO}:{sO+3}], s{s_rowbase} offen")

def gen_p3(name="p3_kernel", abl=()):
    a = Asm('p3_')
    END = "P3_END"
    sA, sB, sO, sS = 8, 12, 16, 20
    s_wave, s_i0, s_i1, s_kc, s_slot, s_cnt, s_t0, s_t1, s_t2 = 36, 37, 38, 39, 40, 41, 42, 43, 44
    s_b0, s_b1, s_l0, s_l1 = 45, 46, 48, 49
    s_b, s_delta, s_neg, s_pos, s_rs = 51, 52, 56, 57, 53
    s_xcd, s_idx = 47, 50
    s_kt, s_ob, s_vg = 24, 25, 26
    v_lane = 2
    RING = 4096
    prologue(a, END, [(4, 'ws'), (6, 'w_mlp_out')], s_wave, s_xcd, s_idx, 2)
    stamp_init(a, 4, 5, 2)
    srd(a, sO, 4, 5, 1024 * 4096, WS_MT)
    a(f"s_cmp_ge_u32 s{s_idx}, 16")
    a("s_cbranch_scc1 P3_LOC")
    A_OFF, B_OFF, STAGE, S, NC = 0, 16384, 24576, 5, 16
    a(f"""
    s_lshr_b32 s{s_b}, s{s_xcd}, 2
    s_and_b32 s{s_i0}, s{s_xcd}, 3
    s_lshl_b32 s{s_i0}, s{s_i0}, 1
    s_lshr_b32 s{s_t0}, s{s_idx}, 3
    s_add_u32 s{s_i0}, s{s_i0}, s{s_t0}            ; tt
    s_and_b32 s{s_i1}, s{s_idx}, 7                 ; ct
    s_lshl_b32 s{s_t0}, s{s_t0}, 2
    s_add_u32 s{s_kt}, s{s_i1}, s{s_t0}
    s_and_b32 s{s_kt}, s{s_kt}, 7
    s_lshl_b32 s{s_kc}, s{s_kt}, 1
    s_lshl_b32 s{s_t0}, s{s_b}, 21
    s_add_u32 s{s_t0}, s{s_t0}, {WS_PT}
    s_add_u32 s{sA}, s4, s{s_t0}
    s_addc_u32 s{sA+1}, s5, 0
    s_mov_b32 s{sA+2}, {1000*2048}
    s_mov_b32 s{sA+3}, 0x20000
    s_mul_i32 s{s_t0}, s{s_b}, {1000*1024}
    s_add_u32 s{s_t0}, s{s_t0}, {WS_VP}
    s_add_u32 s{sB}, s4, s{s_t0}
    s_addc_u32 s{sB+1}, s5, 0
    s_mov_b32 s{sB+2}, {1000*1024}
    s_mov_b32 s{sB+3}, 0x20000
    s_lshl_b32 s{s_ob}, s{s_i1}, 18
    s_mul_i32 s{s_t0}, s{s_b}, 1000
    s_lshl_b32 s{s_t1}, s{s_i0}, 7
    s_add_u32 s{s_t0}, s{s_t0}, s{s_t1}
    s_lshl_b32 s{s_t0}, s{s_t0}, 1
    s_add_u32 s{s_ob}, s{s_ob}, s{s_t0}
    s_sub_u32 s{s_vg}, 1000, s{s_t1}
    s_lshr_b32 s{s_vg}, s{s_vg}, 3
    s_min_u32 s{s_vg}, s{s_vg}, 16
    """)
    if "norot" in abl:
        a(f"s_mov_b32 s{s_kc}, 0")
        a(f"s_mov_b32 s{s_kt}, 0")
    srd(a, sS, 4, 5, 2*8*2*1024*4, WS_SST)
    a(f"s_cmp_ge_u32 s{s_wave}, 4")
    a("s_cbranch_scc1 P3_PV_LOADER")
    V = Alloc(3, 256)
    va = V(4); vb = V(2); vt = V(8, 2)
    fa = [V(4, 4) for _ in range(4)]
    fb = [[V(4, 4) for _ in range(2)] for _ in range(4)]
    tmp = [[V(16, 4) for _ in range(2)] for _ in range(2)]
    acc = [V(16, 4) for _ in range(2)]
    sc = V(16, 4)
    vsc = V(1); tp = V(4, 4); vst = V(1)
    a(f"s_cmp_ge_u32 s{s_wave}, 2")
    a("s_cbranch_scc1 P3_noscale")
    M = tmp[0][0]; Ls = tmp[0][1]
    a(f"""
    s_lshl_b32 s{s_t0}, s{s_i0}, 7
    v_add_u32 v{vt}, s{s_t0}, v0
    v_lshlrev_b32 v{vt}, 2, v{vt}
    s_lshl_b32 s{s_t1}, s{s_b}, 16                 ; b*8*2*1024*4
    """)
    for k in range(8):
        a(f"s_add_u32 s{s_t2}, s{s_t1}, {k*8192}")
        a(f"buffer_load_dword v{M+k}, v{vt}, s[{sS}:{sS+3}], s{s_t2} offen")
        a(f"s_add_u32 s{s_t2}, s{s_t1}, {k*8192 + 4096}")
        a(f"buffer_load_dword v{Ls+k}, v{vt}, s[{sS}:{sS+3}], s{s_t2} offen")
    a("s_waitcnt vmcnt(0)")
    a(f"v_max3_f32 v{vt+1}, v{M}, v{M+1}, v{M+2}")
    a(f"v_max3_f32 v{vt+1}, v{M+3}, v{M+4}, v{vt+1}")
    a(f"v_max3_f32 v{vt+1}, v{M+5}, v{M+6}, v{vt+1}")
    a(f"v_max_f32 v{vt+1}, v{M+7}, v{vt+1}")
    for k in range(8): a(f"v_sub_f32 v{M+k}, v{M+k}, v{vt+1}")
    for k in range(8): a(f"v_exp_f32 v{M+k}, v{M+k}")
    a(f"v_mul_f32 v{vt+2}, v{M}, v{Ls}")
    for k in range(1, 8): a(f"v_fma_f32 v{vt+2}, v{M+k}, v{Ls+k}, v{vt+2}")
    a(f"v_rcp_f32 v{vt+2}, v{vt+2}")
    a(f"v_lshlrev_b32 v{vt+3}, 2, v0")
    for k in range(8):
        a(f"v_mul_f32 v{M+k}, v{M+k}, v{vt+2}")
        a(f"ds_write_b32 v{vt+3}, v{M+k} offset:{k*512}")
    a("s_waitcnt lgkmcnt(0)")
    a.label("P3_noscale")
    r_frag_addrs(a, va, vt, v_lane, s_wave, s_t0, RING + A_OFF)
    t64_frag_addrs(a, vb, vt, v_lane, RING + B_OFF)
    ring = Ring(a, S, STAGE, s_rs, s_delta, s_neg, s_pos); ring.init()
    for b in range(2):
        for i in range(16): a(f"v_mov_b32 v{acc[b]+i}, 0")
    a(f"""
    v_lshrrev_b32 v{vsc}, 5, v{v_lane}
    v_lshlrev_b32 v{vsc}, 4, v{vsc}
    s_lshl_b32 s{s_t0}, s{s_wave}, 7
    v_add_u32 v{vsc}, s{s_t0}, v{vsc}
    """)
    def reads(step, st):
        r = [f"ds_read_b128 v[{fa[st]}:{fa[st]+3}], v{va+step}"]
        for b in range(2): r += tr2(fb[st][b], vb + b, 16*step*128, 128)
        return r
    regs = [va+i for i in range(4)] + [vb, vb+1]
    def mfmas(st, s, ci):
        par = (ci >> 1) & 1
        out = []
        for b in range(2):
            c = "0" if ((ci & 1) == 0 and s == 0) else f"v[{tmp[par][b]}:{tmp[par][b]+15}]"
            out.append(f"v_mfma_f32_32x32x16_bf16 v[{tmp[par][b]}:{tmp[par][b]+15}], v[{fa[st]}:{fa[st]+3}], v[{fb[st][b]}:{fb[st][b]+3}], {c}")
        return out
    def fold(par):
        return [f"v_fma_f32 v{acc[b]+i}, v{tmp[par][b]+i}, v{sc+i}, v{acc[b]+i}" for b in range(2) for i in range(16)]
    def hook(ci, s, last):
        par = (ci >> 1) & 1
        ex = {}
        if (ci & 1) == 0:
            lo, hi = {0: (0, 0), 1: (0, 11), 2: (11, 22), 3: (22, 32)}[s]
            f = fold(par ^ 1)[lo:hi]
            ex = {0: f[:len(f)//2], 1: f[len(f)//2:]}
        else:
            if s == 0:
                ex = {1: [f"s_lshl_b32 s{s_t0}, s{s_kt}, 9", f"v_add_u32 v{vt}, s{s_t0}, v{vsc}"] +
                         [f"ds_read_b128 v[{sc+4*r}:{sc+4*r+3}], v{vt} offset:{32*r}" for r in range(4)] +
                         [f"s_add_u32 s{s_kt}, s{s_kt}, 1", f"s_and_b32 s{s_kt}, s{s_kt}, 7"]}
        return ex
    def pre():
        pass
    for b in range(2):
        for i in range(16): a(f"v_mov_b32 v{tmp[1][b]+i}, 0")
    for i in range(16): a(f"v_mov_b32 v{sc+i}, 0")
    gemm_loop2(a, NC, ring, regs, reads, mfmas, [3, 5], s_cnt, "PV", D=2, per=3, hook=hook, unroll=4,
               first_hook=lambda: stamp(a, 2))
    a("s_waitcnt lgkmcnt(0)")
    for x in fold(1): a(x)
    stamp(a, 3)
    def t_epilogue(acc):
        a(f"""
        v_and_b32 v{vt}, 31, v{v_lane}
        v_mul_u32_u24 v{vst}, 272, v{vt}
        s_lshl_b32 s{s_t0}, s{s_wave}, 6
        v_add_u32 v{vst}, s{s_t0}, v{vst}
        v_lshrrev_b32 v{vt+1}, 5, v{v_lane}
        v_lshl_add_u32 v{vst}, v{vt+1}, 3, v{vst}
        s_barrier
        """)
        for b in range(2):
            for r in range(4):
                x = acc[b] + 4*r
                a(f"v_cvt_pk_bf16_f32 v{tp+2*(r&1)}, v{x}, v{x+1}")
                a(f"v_cvt_pk_bf16_f32 v{tp+2*(r&1)+1}, v{x+2}, v{x+3}")
                a(f"ds_write_b64 v{vst}, v[{tp+2*(r&1)}:{tp+2*(r&1)+1}] offset:{32*b*272 + 8*r*2}")
        a("s_waitcnt lgkmcnt(0)")
        a("s_barrier")
    t_epilogue(acc)
    a("s_branch P3_STORE")
    a.label("P3_PV_LOADER")
    vo, vo2, vt_l = 3, 4, 8
    a(f"s_sub_u32 s{s_wave}, s{s_wave}, 4")
    r_loader_voff(a, vo, vt_l, v_lane, s_wave, s_t0, 2048)
    t64_loader_voff(a, vo2, vt_l, v_lane, 1024)
    a(f"""
    s_lshl_b32 s{s_b0}, s{s_i0}, 7
    s_lshl_b32 s{s_t0}, s{s_wave}, 3
    s_add_u32 s{s_b0}, s{s_b0}, s{s_t0}
    s_lshl_b32 s{s_b0}, s{s_b0}, 11                ; P rows * 2048
    s_lshl_b32 s{s_b1}, s{s_wave}, 14
    s_lshl_b32 s{s_t0}, s{s_i1}, 7
    s_add_u32 s{s_b1}, s{s_b1}, s{s_t0}
    s_lshl_b32 s{s_l0}, s{s_wave}, 10
    s_lshl_b32 s{s_l1}, s{s_wave}, 11
    s_add_u32 s{s_l1}, s{s_l1}, {B_OFF}
    """)
    streams = [
        Stream(sA, [vo]*4, [i*32*2048 for i in range(4)], [A_OFF + i*4096 for i in range(4)], s_b0, 128, s_l0),
        Stream(sB, [vo2]*2, [0, 8*1024], [0, 1024], s_b1, 64*1024, s_l1),
    ]
    stamp(a, 2)
    loader_loop(a, streams, NC, S, STAGE, s_kc, s_slot, s_cnt, s_t0, s_t1, s_t2, lds_base=RING, ahead=3)
    stamp(a, 3)
    a("s_barrier")
    a("s_barrier")
    a("s_branch P3_STORE")

    a.label("P3_LOC")
    A_OFF, B_OFF, STAGE, S, NC = 0, 16384, 24576, 5, 8
    a(f"""
    s_sub_u32 s{s_idx}, s{s_idx}, 16
    s_lshr_b32 s{s_t0}, s{s_idx}, 3
    s_lshl_b32 s{s_i0}, s{s_xcd}, 1
    s_add_u32 s{s_i0}, s{s_i0}, s{s_t0}
    s_and_b32 s{s_i1}, s{s_idx}, 7                 ; ct
    s_lshl_b32 s{s_t0}, s{s_t0}, 2
    s_add_u32 s{s_kc}, s{s_i1}, s{s_t0}
    s_and_b32 s{s_kc}, s{s_kc}, 7
    s_add_u32 s{s_ob}, s{s_i1}, 8
    s_lshl_b32 s{s_ob}, s{s_ob}, 18
    s_lshl_b32 s{s_t1}, s{s_i0}, 7
    s_lshl_b32 s{s_t0}, s{s_t1}, 1
    s_add_u32 s{s_ob}, s{s_ob}, s{s_t0}
    s_sub_u32 s{s_vg}, 2000, s{s_t1}
    s_lshr_b32 s{s_vg}, s{s_vg}, 3
    s_min_u32 s{s_vg}, s{s_vg}, 16
    """)
    if "norot" in abl: a(f"s_mov_b32 s{s_kc}, 0")
    srd(a, sA, 4, 5, 512 * 4096, WS_ZT)
    srd(a, sB, 6, 7, 512 * 1024)
    a(f"s_cmp_ge_u32 s{s_wave}, 4")
    a("s_cbranch_scc1 P3_LOC_LOADER")
    V2 = Alloc(3, 256)
    va = V2(1); vb = V2(2); vt = V2(8, 2)
    fa = [V2(4, 4) for _ in range(4)]
    fb = [[V2(4, 4) for _ in range(2)] for _ in range(4)]
    acc2 = [V2(16, 4) for _ in range(2)]
    tp = V2(4, 4); vst = V2(1)
    t128_frag_addr_blk(a, va, vt, v_lane, RING + A_OFF, s_wave)
    t64_frag_addrs(a, vb, vt, v_lane, RING + B_OFF)
    ring = Ring(a, S, STAGE, s_rs, s_delta, s_neg, s_pos); ring.init()
    for b in range(2):
        for i in range(16): a(f"v_mov_b32 v{acc2[b]+i}, 0")
    def reads2(step, st):
        r = tr2(fa[st], va, 16*step*256, 256)
        for b in range(2): r += tr2(fb[st][b], vb + b, 16*step*128, 128)
        return r
    def mfmas2(st, s, par):
        return [f"v_mfma_f32_32x32x16_bf16 v[{acc2[b]}:{acc2[b]+15}], v[{fa[st]}:{fa[st]+3}], v[{fb[st][b]}:{fb[st][b]+3}], v[{acc2[b]}:{acc2[b]+15}]" for b in range(2)]
    gemm_loop2(a, NC, ring, [va, vb, vb+1], reads2, mfmas2, [4, 6], s_cnt, "L", D=2, per=3, first_hook=lambda: stamp(a, 2))
    stamp(a, 3)
    t_epilogue(acc2)
    a("s_branch P3_STORE")
    a.label("P3_LOC_LOADER")
    a(f"s_sub_u32 s{s_wave}, s{s_wave}, 4")
    t128_loader_voff(a, vo, vt_l, v_lane, 4096)
    t64_loader_voff(a, vo2, vt_l, v_lane, 1024)
    a(f"""
    s_lshl_b32 s{s_b0}, s{s_wave}, 16              ; 16 rows * 4096
    s_lshl_b32 s{s_t0}, s{s_i0}, 8                 ; 128 tokens * 2 B
    s_add_u32 s{s_b0}, s{s_b0}, s{s_t0}
    s_lshl_b32 s{s_b1}, s{s_wave}, 14
    s_lshl_b32 s{s_t0}, s{s_i1}, 7
    s_add_u32 s{s_b1}, s{s_b1}, s{s_t0}
    s_lshl_b32 s{s_l0}, s{s_wave}, 12              ; 16 rows * 256 B
    s_lshl_b32 s{s_l1}, s{s_wave}, 11
    s_add_u32 s{s_l1}, s{s_l1}, {B_OFF}
    """)
    streams = [
        Stream(sA, [vo]*4, [i*4*4096 for i in range(4)], [A_OFF + i*1024 for i in range(4)], s_b0, 64*4096, s_l0),
        Stream(sB, [vo2]*2, [0, 8*1024], [0, 1024], s_b1, 64*1024, s_l1),
    ]
    stamp(a, 2)
    loader_loop(a, streams, NC, S, STAGE, s_kc, s_slot, s_cnt, s_t0, s_t1, s_t2, lds_base=RING, ahead=3)
    stamp(a, 3)
    a("s_barrier")
    a("s_barrier")
    a.label("P3_STORE")
    store_T_tile(a, sO, s_ob, None, s_vg)
    if STAMPS_ON():
        a("s_waitcnt vmcnt(0)")
    stamp(a, 6)
    stamp_flush(a, 58)
    a.label(END)
    a("s_endpgm")
    return a.text(), dict(name=name, vgpr=max(V.hi, V2.hi, 64), sgpr=100, lds=LDS3, grid=256, block=512)


def gen_p3b(name="p3b_kernel"):
    a = Asm('p3b_')
    END = "P3B_END"
    sM, sO, sD = 8, 12, 16
    s_wave, s_xcd, s_idx, s_t0, s_t1, s_t2, s_c, s_b = 36, 37, 38, 42, 43, 44, 45, 46
    v_lane = 2
    prologue(a, END, [(4, 'ws'), (6, 'dw_merge')], s_wave, s_xcd, s_idx, 3)
    stamp_init(a, 4, 5, 3)
    srd(a, sM, 4, 5, 1024 * 4096, WS_MT)
    srd(a, sO, 4, 5, 1024 * 4096, WS_MPT)
    srd(a, sD, 6, 7, 31 * 2048)
    WP = 0
    a(f"""
    s_lshl_b32 s{s_c}, s2, 2                        ; c0 = 4*wg
    s_lshr_b32 s{s_b}, s{s_wave}, 2
    s_and_b32 s{s_t0}, s{s_wave}, 3
    s_add_u32 s{s_t1}, s{s_c}, s{s_t0}              ; channel
    s_lshl_b32 s{s_t1}, s{s_t1}, 12
    s_mul_i32 s{s_t2}, s{s_b}, 2000
    s_add_u32 s47, s{s_t1}, s{s_t2}
    """)
    vB, vG = 3, 4
    a(f"""
    v_and_b32 v5, 15, v{v_lane}
    v_lshrrev_b32 v6, 4, v{v_lane}                  ; g
    v_lshlrev_b32 v7, 4, v5                         ; 16 b
    v_lshl_add_u32 v{vB}, v6, 3, v7
    v_lshl_add_u32 v{vG}, v6, 2, v7                  ; 16b + 4g
    """)
    F = 24
    R = 56
    O = 64
    for grp in range(4):
        for s in range(2):
            a(f"""
            v_add_u32 v8, {256*grp - 16 + 32*s + 4096}, v{vB}
            v_subrev_u32 v8, 4096, v8
            v_cmp_gt_u32 vcc, 1000, v8
            v_lshlrev_b32 v8, 1, v8
            v_cndmask_b32 v8, -1, v8, vcc
            buffer_load_dwordx4 v[{F+8*grp+4*s}:{F+8*grp+4*s+3}], v8, s[{sM}:{sM+3}], s47 offen
            """)
        a(f"""
        v_add_u32 v8, {256*grp}, v{vG}
        v_cmp_gt_u32 vcc, 1000, v8
        v_lshlrev_b32 v8, 1, v8
        v_cndmask_b32 v{O+grp}, -1, v8, vcc
        buffer_load_dwordx2 v[{R+2*grp}:{R+2*grp+1}], v{O+grp}, s[{sM}:{sM+3}], s47 offen
        """)
    a(f"s_lshl_b32 s{s_t2}, s{s_c}, 1")
    build_filter_table(a, sD, s_t2, 4, 2048, WP, 72, s_t0)
    a("s_waitcnt lgkmcnt(0)")
    a("s_barrier")
    vT = 9
    conv_T_addr(a, vT, 10, v_lane, WP)
    a(f"""
    s_and_b32 s{s_t0}, s{s_wave}, 3
    s_mul_i32 s{s_t0}, s{s_t0}, {WP_CH}
    v_add_u32 v{vT}, s{s_t0}, v{vT}
    """)
    for x in conv_T_reads(12, vT, 0) + conv_T_reads(16, vT, 1): a(x)
    D = 88
    for grp in range(4):
        r = R + 2*grp; d = D + 4*grp
        a(f"""
        v_lshlrev_b32 v{d}, 16, v{r}
        v_and_b32 v{d+1}, 0xffff0000, v{r}
        v_lshlrev_b32 v{d+2}, 16, v{r+1}
        v_and_b32 v{d+3}, 0xffff0000, v{r+1}
        """)
    a("s_waitcnt lgkmcnt(0)")
    for s in range(2):
        for grp in range(4):
            d = D + 4*grp
            a(f"v_mfma_f32_16x16x32_bf16 v[{d}:{d+3}], v[{12+4*s}:{12+4*s+3}], v[{F+8*grp+4*s}:{F+8*grp+4*s+3}], v[{d}:{d+3}]")
    for grp in range(4):
        d = D + 4*grp; r = R + 2*grp
        a(f"v_cvt_pk_bf16_f32 v{r}, v{d}, v{d+1}")
        a(f"v_cvt_pk_bf16_f32 v{r+1}, v{d+2}, v{d+3}")
        a(f"buffer_store_dwordx2 v[{r}:{r+1}], v{O+grp}, s[{sO}:{sO+3}], s47 offen")
    if STAMPS_ON():
        a("s_waitcnt vmcnt(0)")
    stamp(a, 6)
    stamp_flush(a, 58)
    a.label(END)
    a("s_endpgm")
    return a.text(), dict(name=name, vgpr=108, sgpr=100, lds=2048, grid=256, block=512)


def gen_p4(name="p4_kernel", abl=(), phase=4):
    a = Asm('p4_')
    END = "P4_END"
    sA, sB, sO, sX = 8, 12, 16, 20
    s_wave, s_i0, s_i1, s_kc, s_slot, s_cnt, s_t0, s_t1, s_t2 = 36, 37, 38, 39, 40, 41, 42, 43, 44
    s_b0, s_b1, s_l0, s_l1 = 45, 46, 48, 49
    s_delta, s_neg, s_pos, s_rs = 52, 56, 57, 53
    s_xcd, s_idx, s_wn, s_wt = 47, 50, 24, 25
    v_lane = 2
    A_OFF, B_OFF, STAGE, S, NC = 0, 8192, 16384, 6, 16
    prologue(a, END, [(4, 'ws'), (6, 'w_merge'), (32, 'x'), (34, 'out')], s_wave, s_xcd, s_idx, 4)
    stamp_init(a, 4, 5, phase)
    a(f"""
    s_lshr_b32 s{s_t0}, s{s_idx}, 3
    s_lshl_b32 s{s_i0}, s{s_xcd}, 2
    s_add_u32 s{s_i0}, s{s_i0}, s{s_t0}
    s_and_b32 s{s_i1}, s{s_idx}, 7                 ; nt
    s_lshl_b32 s{s_t0}, s{s_t0}, 2
    s_lshl_b32 s{s_kc}, s{s_i1}, 1
    s_add_u32 s{s_kc}, s{s_kc}, s{s_t0}
    s_and_b32 s{s_kc}, s{s_kc}, 15
    """)
    if "norot" in abl: a(f"s_mov_b32 s{s_kc}, 0")
    srd(a, sA, 6, 7, 1024 * 1024)
    srd(a, sB, 4, 5, 1024 * 4096, WS_MPT)
    srd(a, sO, 34, 35, 2000 * 1024)
    srd(a, sX, 32, 33, 2000 * 1024)
    a(f"""
    v_lshrrev_b32 v4, 3, v0
    v_and_b32 v5, 7, v0
    v_lshlrev_b32 v5, 4, v5
    v_lshl_add_u32 v70, v4, 10, v5
    s_lshl_b32 s{s_t1}, s{s_i0}, 16              ; tt*64*1024
    s_lshl_b32 s{s_t2}, s{s_i1}, 7
    s_add_u32 s26, s{s_t1}, s{s_t2}
    """)
    a(f"s_cmp_ge_u32 s{s_wave}, 4")
    a("s_cbranch_scc1 P4_LOADER")
    V = Alloc(3, 68)
    va = V(1); vb = V(1); vt = V(8, 2)
    fa = [V(4, 4) for _ in range(4)]
    fb = [V(4, 4) for _ in range(4)]
    acc = V(16, 4)
    vst = V(1)
    a(f"s_and_b32 s{s_wn}, s{s_wave}, 1")
    a(f"s_lshr_b32 s{s_wt}, s{s_wave}, 1")
    t64_frag_addr_blk(a, va, vt, v_lane, A_OFF, s_wn, s_t0)
    t64_frag_addr_blk(a, vb, vt, v_lane, B_OFF, s_wt, s_t0)
    ring = Ring(a, S, STAGE, s_rs, s_delta, s_neg, s_pos); ring.init()
    for i in range(16): a(f"v_mov_b32 v{acc+i}, 0")
    def reads(step, st):
        return tr2(fa[st], va, 16*step*128, 128) + tr2(fb[st], vb, 16*step*128, 128)
    def mfmas(st, s, par):
        return [f"v_mfma_f32_32x32x16_bf16 v[{acc}:{acc+15}], v[{fa[st]}:{fa[st]+3}], v[{fb[st]}:{fb[st]+3}], v[{acc}:{acc+15}]"]
    grid_wait(a, 2, vt, v_lane)
    gemm_loop2(a, NC, ring, [va, vb], reads, mfmas, [4], s_cnt, "M", D=4, per=4, first_hook=lambda: stamp(a, 2))
    stamp(a, 3)
    a(f"""
    v_and_b32 v{vt}, 31, v{v_lane}
    s_lshl_b32 s{s_t0}, s{s_wt}, 5
    v_add_u32 v{vt}, s{s_t0}, v{vt}
    v_mul_u32_u24 v{vst}, 272, v{vt}
    s_lshl_b32 s{s_t0}, s{s_wn}, 7
    v_add_u32 v{vst}, s{s_t0}, v{vst}
    v_lshrrev_b32 v{vt+1}, 5, v{v_lane}
    v_lshl_add_u32 v{vst}, v{vt+1}, 4, v{vst}
    s_barrier
    """)
    for r in range(4):
        a(f"ds_write_b128 v{vst}, v[{acc+4*r}:{acc+4*r+3}] offset:{32*r}")
    a("s_waitcnt lgkmcnt(0)")
    a("s_barrier")
    a("s_branch P4_STORE")
    a.label("P4_LOADER")
    vo, vo2, vt_l = 3, 4, 8
    a(f"s_sub_u32 s{s_wave}, s{s_wave}, 4")
    t64_loader_voff(a, vo, vt_l, v_lane, 1024)
    t64_loader_voff(a, vo2, vt_l, v_lane, 4096)
    a(f"""
    s_lshl_b32 s{s_b0}, s{s_wave}, 14              ; 16 rows * 1024
    s_lshl_b32 s{s_t0}, s{s_i1}, 7
    s_add_u32 s{s_b0}, s{s_b0}, s{s_t0}
    s_lshl_b32 s{s_b1}, s{s_wave}, 16              ; 16 rows * 4096
    s_lshl_b32 s{s_t0}, s{s_i0}, 7                 ; 64 tokens * 2 B
    s_add_u32 s{s_b1}, s{s_b1}, s{s_t0}
    s_lshl_b32 s{s_l0}, s{s_wave}, 11
    s_add_u32 s{s_l1}, s{s_l0}, {B_OFF}
    """)
    streams = [
        Stream(sB, [vo2]*2, [0, 8*4096], [0, 1024], s_b1, 64*4096, s_l1, dep=True),
        Stream(sA, [vo]*2, [0, 8*1024], [0, 1024], s_b0, 64*1024, s_l0),
    ]
    grid_wait(a, 2, 12, v_lane)
    stamp(a, 2)
    loader_loop(a, streams, NC, S, STAGE, s_kc, s_slot, s_cnt, s_t0, s_t1, s_t2, ahead=(2 if 'ah2' in abl else 4))
    stamp(a, 3)
    a("s_barrier")
    a("s_barrier")
    a.label("P4_STORE")
    a(f"""
    buffer_load_dwordx4 v[20:23], v70, s[{sX}:{sX+3}], s26 offen
    v_lshrrev_b32 v4, 3, v0
    v_and_b32 v5, 7, v0
    v_mul_u32_u24 v6, 272, v4
    v_lshl_add_u32 v6, v5, 5, v6
    ds_read_b128 v[8:11], v6
    ds_read_b128 v[12:15], v6 offset:16
    s_waitcnt vmcnt(0) lgkmcnt(0)
    """)
    for i in range(4):
        a(f"""
        v_lshlrev_b32 v24, 16, v{20+i}
        v_and_b32 v25, 0xffff0000, v{20+i}
        v_add_f32 v24, v24, v{8+2*i}
        v_add_f32 v25, v25, v{9+2*i}
        v_cvt_pk_bf16_f32 v{20+i}, v24, v25
        """)
    a(f"buffer_store_dwordx4 v[20:23], v70, s[{sO}:{sO+3}], s26 offen")
    if STAMPS_ON():
        a("s_waitcnt vmcnt(0)")
    stamp(a, 6)
    stamp_flush(a, 58)
    a.label(END)
    if common.PERS: pers_finish(a)
    a("s_endpgm")
    return a.text(), dict(name=name, vgpr=72, sgpr=100, lds=S*STAGE, grid=256, block=512)
```

```python
from common import *
import common, struct
from p2 import conv_T_addr, conv_T_reads, WP_CH
from p3 import prologue
def STAMPS_ON(): return common.STAMPS


def tap_loads(a, sD, s_c0bytes, nch, vt, vdat, nthreads):
    sh = nch.bit_length() - 1
    per = nthreads // nch
    rounds = (31 + per - 1) // per
    for j in range(rounds):
        a(f"""
        v_lshrrev_b32 v{vt}, {sh}, v0
        v_add_u32 v{vt}, {per*j}, v{vt}              ; tap
        v_and_b32 v{vt+1}, {nch-1}, v0                ; channel
        v_lshlrev_b32 v{vt+2}, 11, v{vt}              ; tap*2048
        v_lshl_add_u32 v{vt+2}, v{vt+1}, 1, v{vt+2}
        v_cmp_gt_u32 vcc, 31, v{vt}
        v_cndmask_b32 v{vt+2}, -1, v{vt+2}, vcc
        buffer_load_ushort v{vdat+j}, v{vt+2}, s[{sD}:{sD+3}], s{s_c0bytes} offen
        """)
    return rounds

def tap_writes(a, nch, wp_base, vt, vdat, rounds, nthreads):
    sh = nch.bit_length() - 1
    per = nthreads // nch
    a(f"""
    v_and_b32 v{vt+1}, {nch-1}, v0
    v_mul_u32_u24 v{vt+1}, {WP_CH}, v{vt+1}
    v_lshrrev_b32 v{vt}, {sh}, v0
    v_lshl_add_u32 v{vt+1}, v{vt}, 1, v{vt+1}
    """)
    for j in range(rounds):
        last = (per * (j + 1) > 31)
        if last:
            a(f"""
            v_add_u32 v{vt+2}, {per*j}, v{vt}
            v_cmp_gt_u32 vcc, 31, v{vt+2}
            s_and_saveexec_b64 s[54:55], vcc
            """)
        a(f"ds_write_b16 v{vt+1}, v{vdat+j} offset:{wp_base + 32 + 2*per*j}")
        a(f"ds_write_b16 v{vt+1}, v{vdat+j} offset:{wp_base + 192 + 30 + 2*per*j}")
        if last: a("s_mov_b64 exec, s[54:55]")

def zero_fill(a, base, nbytes, vt, nthreads):
    a(f"""
    v_mov_b32 v{vt}, 0
    v_mov_b32 v{vt+1}, 0
    v_mov_b32 v{vt+2}, 0
    v_mov_b32 v{vt+3}, 0
    """)
    ngran = (nbytes + 15) // 16
    for j in range((ngran + nthreads - 1) // nthreads):
        a(f"""
        v_add_u32 v{vt+5}, {nthreads*j}, v0
        v_lshlrev_b32 v{vt+4}, 4, v{vt+5}
        """)
        if nthreads * (j + 1) > ngran:
            a(f"""
            v_cmp_gt_u32 vcc, {ngran}, v{vt+5}
            s_and_saveexec_b64 s[54:55], vcc
            ds_write_b128 v{vt+4}, v[{vt}:{vt+3}] offset:{base}
            s_mov_b64 exec, s[54:55]
            """)
        else:
            a(f"ds_write_b128 v{vt+4}, v[{vt}:{vt+3}] offset:{base}")

def conv_stage(a, s_w8, nch_per_wave, nblk, raw_base, raw_pitch, wp_base, sO, s_orow, s_tvalid, s_t0, s_t1, v_lane):
    vT, vB, vC, vS, vT2, vB2 = 8, 9, 10, 11, 6, 7
    conv_T_addr(a, vT, 12, v_lane, wp_base)
    a(f"""
    s_mul_i32 s{s_t0}, s{s_w8}, {nch_per_wave*WP_CH}
    v_add_u32 v{vT}, s{s_t0}, v{vT}
    v_lshrrev_b32 v13, 4, v{v_lane}                 ; g
    v_lshlrev_b32 v12, 3, v13                       ; 4g*2 bytes
    v_sub_u32 v{vT2}, v{vT}, v12                     ; 8g -> 4g elements
    v_and_b32 v12, 15, v{v_lane}
    v_min_u32 v14, {nblk-1}, v12
    v_lshlrev_b32 v14, 5, v14                       ; 16*b*2 (clamped)
    v_lshl_add_u32 v{vB}, v13, 4, v14                ; + 8g*2
    s_mul_i32 s{s_t0}, s{s_w8}, {nch_per_wave*raw_pitch}
    s_add_u32 s{s_t0}, s{s_t0}, {raw_base}
    v_add_u32 v{vB}, s{s_t0}, v{vB}
    v_lshl_add_u32 v{vC}, v13, 3, v14                ; (16b + 4g)*2
    v_add_u32 v{vC}, s{s_t0}, v{vC}
    v_lshlrev_b32 v15, 4, v12
    v_lshl_add_u32 v15, v13, 2, v15                  ; 16b + 4g (unclamped)
    v_cmp_gt_u32 vcc, s{s_tvalid}, v15
    v_lshlrev_b32 v15, 1, v15
    v_cndmask_b32 v{vS}, -1, v15, vcc
    s_mul_i32 s{s_t0}, s{s_w8}, {nch_per_wave*4096}
    s_add_u32 s{s_t0}, s{s_t0}, s{s_orow}
    """)
    NG = nch_per_wave // 2
    def regs(slot, c): return 16 + 32*slot + 16*c
    D = 80; VTX = 96
    def issue(g):
        slot = g & 1
        tb0 = VTX + 2*slot; tb1 = tb0 + 1
        a(f"v_add_u32 v{tb0}, {(2*g)*WP_CH}, v{vT}")
        a(f"v_add_u32 v{tb1}, {(2*g)*WP_CH}, v{vT2}")
        for c in range(2):
            ch = 2*g + c; r = regs(slot, c); o = c * (WP_CH // 4)
            a(f"ds_read2_b32 v[{r}:{r+1}], v{tb0} offset0:{o} offset1:{o+1}")
            a(f"ds_read2_b32 v[{r+2}:{r+3}], v{tb0} offset0:{o+2} offset1:{o+3}")
            a(f"ds_read_b128 v[{r+4}:{r+7}], v{vB} offset:{ch*raw_pitch}")
            a(f"ds_read2_b32 v[{r+8}:{r+9}], v{tb1} offset0:{o+16} offset1:{o+17}")
            a(f"ds_read_b64 v[{r+10}:{r+11}], v{vC} offset:{ch*raw_pitch + 64}")
            a(f"ds_read_b64 v[{r+12}:{r+13}], v{vC} offset:{ch*raw_pitch + 32}")
    def process(g, more):
        slot = g & 1
        for c in range(2):
            r = regs(slot, c); d = D + 8*slot + 4*c
            a(f"s_waitcnt lgkmcnt({min(15, (6 if c == 0 else 0) + (12 if more else 0))})")
            a(f"""
            v_lshlrev_b32 v{d}, 16, v{r+12}
            v_and_b32 v{d+1}, 0xffff0000, v{r+12}
            v_lshlrev_b32 v{d+2}, 16, v{r+13}
            v_and_b32 v{d+3}, 0xffff0000, v{r+13}
            """)
            a(f"v_mfma_f32_16x16x32_bf16 v[{d}:{d+3}], v[{r}:{r+3}], v[{r+4}:{r+7}], v[{d}:{d+3}]")
        if g > 0: finish(g - 1)
        for c in range(2):
            r = regs(slot, c); d = D + 8*slot + 4*c
            a(f"v_mfma_f32_16x16x16_bf16 v[{d}:{d+3}], v[{r+8}:{r+9}], v[{r+10}:{r+11}], v[{d}:{d+3}]")
    def finish(g):
        slot = g & 1
        for c in range(2):
            ch = 2*g + c; d = D + 8*slot + 4*c; o = 100 + 4*slot + 2*c
            a(f"v_cvt_pk_bf16_f32 v{o}, v{d}, v{d+1}")
            a(f"v_cvt_pk_bf16_f32 v{o+1}, v{d+2}, v{d+3}")
            a(f"s_add_u32 s{s_t1}, s{s_t0}, {ch*4096}")
            a(f"buffer_store_dwordx2 v[{o}:{o+1}], v{vS}, s[{sO}:{sO+3}], s{s_t1} offen {common.SCF}")
    issue(0)
    for g in range(NG):
        more = g + 1 < NG
        if more:
            a("s_waitcnt lgkmcnt(3)")
            issue(g + 1)
        process(g, more)
    finish(NG - 1)

def gen_p3f(name="p3_kernel", abl=()):
    SC = common.SCF
    a = Asm('p3_')
    END = "P3_END"
    sA, sB, sO, sS, sD = 8, 12, 16, 20, 28
    s_wave, s_i0, s_i1, s_kc, s_slot, s_cnt, s_t0, s_t1, s_t2 = 36, 37, 38, 39, 40, 41, 42, 43, 44
    s_b0, s_b1, s_l0, s_l1 = 45, 46, 48, 49
    s_b, s_delta, s_neg, s_pos, s_rs = 51, 52, 56, 57, 53
    s_xcd, s_idx = 47, 50
    s_kt, s_ob, s_tv, s_c0b = 24, 25, 26, 27
    v_lane = 2
    prologue(a, END, [(4, 'ws'), (6, 'w_mlp_out'), (32, 'dw_merge')], s_wave, s_xcd, s_idx, 2)
    a(f"s_cmp_ge_u32 s{s_idx}, 30")
    a(f"s_cbranch_scc1 {END}")
    stamp_init(a, 4, 5, 2)
    srd(a, sO, 4, 5, 1024 * 4096, WS_MPT)
    srd(a, sD, 32, 33, 31 * 2048)
    a(f"s_lshr_b32 s{s_b}, s{s_xcd}, 2")
    a(f"s_cmp_ge_u32 s{s_idx}, 22")
    a("s_cbranch_scc1 P3_LOC")
    RING = 4096
    A_OFF, B_OFF, STAGE, S, NC = 0, 16384, 24576, 5, 16
    RAW, RP = 0, 272
    WPB = 64 * RP + 2 * RP
    a(f"""
    s_and_b32 s{s_t0}, s{s_xcd}, 3
    s_mul_i32 s{s_t0}, s{s_t0}, 22
    s_add_u32 s{s_t0}, s{s_t0}, s{s_idx}           ; j
    s_lshr_b32 s{s_i0}, s{s_t0}, 3                 ; tt
    s_and_b32 s{s_i1}, s{s_t0}, 7                  ; ct
    s_mov_b32 s{s_kt}, s{s_i1}
    """)
    if "norot" in abl: a(f"s_mov_b32 s{s_kt}, 0")
    a(f"""
    s_lshl_b32 s{s_kc}, s{s_kt}, 1
    s_lshl_b32 s{s_t0}, s{s_b}, 21
    s_add_u32 s{s_t0}, s{s_t0}, {WS_PT - 16*2048}
    s_add_u32 s{sA}, s4, s{s_t0}
    s_addc_u32 s{sA+1}, s5, 0
    s_mov_b32 s{sA+2}, {1016*2048}
    s_mov_b32 s{sA+3}, 0x20000
    s_mul_i32 s{s_t0}, s{s_b}, {1000*1024}
    s_add_u32 s{s_t0}, s{s_t0}, {WS_VP}
    s_add_u32 s{sB}, s4, s{s_t0}
    s_addc_u32 s{sB+1}, s5, 0
    s_mov_b32 s{sB+2}, {1000*1024}
    s_mov_b32 s{sB+3}, 0x20000
    s_mul_i32 s{s_t1}, s{s_i0}, 96
    s_lshl_b32 s{s_ob}, s{s_i1}, 18
    s_mul_i32 s{s_t0}, s{s_b}, 1000
    s_add_u32 s{s_t0}, s{s_t0}, s{s_t1}
    s_lshl_b32 s{s_t0}, s{s_t0}, 1
    s_add_u32 s{s_ob}, s{s_ob}, s{s_t0}
    s_sub_u32 s{s_tv}, 1000, s{s_t1}
    s_min_u32 s{s_tv}, s{s_tv}, 96
    s_lshl_b32 s{s_c0b}, s{s_i1}, 7
    """)
    srd(a, sS, 4, 5, 2*8*2*1024*4, WS_SST)
    a(f"s_cmp_ge_u32 s{s_wave}, 4")
    a("s_cbranch_scc1 P3_PV_LOADER")
    V = Alloc(3, 256)
    va = V(4); vb = V(2); vt = V(8, 2)
    fa = [V(4, 4) for _ in range(4)]
    fb = [[V(4, 4) for _ in range(2)] for _ in range(4)]
    tmp = [[V(16, 4) for _ in range(2)] for _ in range(2)]
    acc = [V(16, 4) for _ in range(2)]
    sc = V(16, 4)
    vsc = V(1); tp = V(4, 4); vst = V(1)
    a(f"s_cmp_ge_u32 s{s_wave}, 2")
    a("s_cbranch_scc1 P3_noscale")
    M = tmp[0][0]; Ls = tmp[0][1]
    grid_wait(a, 1, tmp[1][0], v_lane)
    a(f"""
    s_mul_i32 s{s_t0}, s{s_i0}, 96
    v_add_u32 v{vt}, s{s_t0}, v0
    v_subrev_u32 v{vt}, 16, v{vt}                   ; t
    v_cmp_gt_u32 vcc, 1000, v{vt}
    s_mov_b64 s[98:99], vcc
    v_lshlrev_b32 v{vt}, 2, v{vt}
    v_cndmask_b32 v{vt}, -1, v{vt}, vcc
    s_lshl_b32 s{s_t1}, s{s_b}, 16                 ; b*8*2*1024*4
    """)
    for k in range(8):
        a(f"s_add_u32 s{s_t2}, s{s_t1}, {k*8192}")
        a(f"buffer_load_dword v{M+k}, v{vt}, s[{sS}:{sS+3}], s{s_t2} offen {SC}")
        a(f"s_add_u32 s{s_t2}, s{s_t1}, {k*8192 + 4096}")
        a(f"buffer_load_dword v{Ls+k}, v{vt}, s[{sS}:{sS+3}], s{s_t2} offen {SC}")
    a("s_waitcnt vmcnt(0)")
    a(f"v_max3_f32 v{vt+1}, v{M}, v{M+1}, v{M+2}")
    a(f"v_max3_f32 v{vt+1}, v{M+3}, v{M+4}, v{vt+1}")
    a(f"v_max3_f32 v{vt+1}, v{M+5}, v{M+6}, v{vt+1}")
    a(f"v_max_f32 v{vt+1}, v{M+7}, v{vt+1}")
    for k in range(8): a(f"v_sub_f32 v{M+k}, v{M+k}, v{vt+1}")
    for k in range(8): a(f"v_exp_f32 v{M+k}, v{M+k}")
    a(f"v_mul_f32 v{vt+2}, v{M}, v{Ls}")
    for k in range(1, 8): a(f"v_fma_f32 v{vt+2}, v{M+k}, v{Ls+k}, v{vt+2}")
    a(f"v_rcp_f32 v{vt+2}, v{vt+2}")
    a(f"v_lshlrev_b32 v{vt+3}, 2, v0")
    a(f"v_cndmask_b32 v{vt+2}, 0, v{vt+2}, s[98:99]")
    for k in range(8):
        a(f"v_mul_f32 v{M+k}, v{M+k}, v{vt+2}")
        a(f"ds_write_b32 v{vt+3}, v{M+k} offset:{k*512}")
    a("s_waitcnt lgkmcnt(0)")
    a.label("P3_noscale")
    r_frag_addrs(a, va, vt, v_lane, s_wave, s_t0, RING + A_OFF)
    t64_frag_addrs(a, vb, vt, v_lane, RING + B_OFF)
    ring = Ring(a, S, STAGE, s_rs, s_delta, s_neg, s_pos); ring.init()
    for b in range(2):
        for i in range(16): a(f"v_mov_b32 v{acc[b]+i}, 0")
    a(f"""
    v_lshrrev_b32 v{vsc}, 5, v{v_lane}
    v_lshlrev_b32 v{vsc}, 4, v{vsc}
    s_lshl_b32 s{s_t0}, s{s_wave}, 7
    v_add_u32 v{vsc}, s{s_t0}, v{vsc}
    """)
    def reads(step, st):
        r = [f"ds_read_b128 v[{fa[st]}:{fa[st]+3}], v{va+step}"]
        for b in range(2): r += tr2(fb[st][b], vb + b, 16*step*128, 128)
        return r
    regs = [va+i for i in range(4)] + [vb, vb+1]
    def mfmas(st, s, ci):
        par = (ci >> 1) & 1
        out = []
        for b in range(2):
            c = "0" if ((ci & 1) == 0 and s == 0) else f"v[{tmp[par][b]}:{tmp[par][b]+15}]"
            out.append(f"v_mfma_f32_32x32x16_bf16 v[{tmp[par][b]}:{tmp[par][b]+15}], v[{fa[st]}:{fa[st]+3}], v[{fb[st][b]}:{fb[st][b]+3}], {c}")
        return out
    def fold(par):
        return [f"v_fma_f32 v{acc[b]+i}, v{tmp[par][b]+i}, v{sc+i}, v{acc[b]+i}" for b in range(2) for i in range(16)]
    def hook(ci, s, last):
        par = (ci >> 1) & 1
        ex = {}
        if (ci & 1) == 0:
            lo, hi = {0: (0, 0), 1: (0, 11), 2: (11, 22), 3: (22, 32)}[s]
            f = fold(par ^ 1)[lo:hi]
            ex = {0: f[:len(f)//2], 1: f[len(f)//2:]}
        elif s == 0:
            ex = {1: [f"s_lshl_b32 s{s_t0}, s{s_kt}, 9", f"v_add_u32 v{vt}, s{s_t0}, v{vsc}"] +
                     [f"ds_read_b128 v[{sc+4*r}:{sc+4*r+3}], v{vt} offset:{32*r}" for r in range(4)] +
                     [f"s_add_u32 s{s_kt}, s{s_kt}, 1", f"s_and_b32 s{s_kt}, s{s_kt}, 7"]}
        return ex
    for b in range(2):
        for i in range(16): a(f"v_mov_b32 v{tmp[1][b]+i}, 0")
    for i in range(16): a(f"v_mov_b32 v{sc+i}, 0")
    gemm_loop2(a, NC, ring, regs, reads, mfmas, [3, 5], s_cnt, "PV", D=2, per=3, hook=hook, unroll=4,
               first_hook=lambda: stamp(a, 2))
    a("s_waitcnt lgkmcnt(0)")
    for x in fold(1): a(x)
    stamp(a, 3)
    a(f"""
    v_and_b32 v{vt}, 31, v{v_lane}
    v_mul_u32_u24 v{vst}, {RP}, v{vt}
    s_lshl_b32 s{s_t0}, s{s_wave}, 6
    v_add_u32 v{vst}, s{s_t0}, v{vst}
    v_lshrrev_b32 v{vt+1}, 5, v{v_lane}
    v_lshl_add_u32 v{vst}, v{vt+1}, 3, v{vst}
    s_barrier
    """)
    for b in range(2):
        for r in range(4):
            x = acc[b] + 4*r
            a(f"v_cvt_pk_bf16_f32 v{tp+2*(r&1)}, v{x}, v{x+1}")
            a(f"v_cvt_pk_bf16_f32 v{tp+2*(r&1)+1}, v{x+2}, v{x+3}")
            a(f"ds_write_b64 v{vst}, v[{tp+2*(r&1)}:{tp+2*(r&1)+1}] offset:{RAW + 32*b*RP + 8*r*2}")
    a("s_waitcnt lgkmcnt(0)")
    a("s_barrier")
    stamp(a, 5)
    a("s_barrier")
    a("s_branch P3_PV_CONV")
    a.label("P3_PV_LOADER")
    vo, vo1, vo2, vt_l = 3, 5, 4, 8
    a(f"s_sub_u32 s{s_wave}, s{s_wave}, 4")
    r_loader_voff(a, vo, vt_l, v_lane, s_wave, s_t0, 2048)
    t64_loader_voff(a, vo2, vt_l, v_lane, 1024)
    a(f"""
    v_mov_b32 v{vo1}, v{vo}
    s_cmp_lg_u32 s{s_i0}, 0
    s_cbranch_scc1 P3_pv_v
    s_cmp_ge_u32 s{s_wave}, 2
    s_cbranch_scc1 P3_pv_v
    v_mov_b32 v{vo1}, 0x7ff00000
    P3_pv_v:
    s_mul_i32 s{s_b0}, s{s_i0}, 96
    s_lshl_b32 s{s_t0}, s{s_wave}, 3
    s_add_u32 s{s_b0}, s{s_b0}, s{s_t0}
    s_lshl_b32 s{s_b0}, s{s_b0}, 11
    s_lshl_b32 s{s_b1}, s{s_wave}, 14
    s_lshl_b32 s{s_t0}, s{s_i1}, 7
    s_add_u32 s{s_b1}, s{s_b1}, s{s_t0}
    s_lshl_b32 s{s_l0}, s{s_wave}, 10
    s_lshl_b32 s{s_l1}, s{s_wave}, 11
    s_add_u32 s{s_l1}, s{s_l1}, {B_OFF}
    """)
    streams = [
        Stream(sA, [vo1, vo, vo, vo], [i*32*2048 for i in range(4)], [A_OFF + i*4096 for i in range(4)], s_b0, 128, s_l0, dep=True),
        Stream(sB, [vo2]*2, [0, 8*1024], [0, 1024], s_b1, 64*1024, s_l1, dep=True),
    ]
    grid_wait(a, 1, 16, v_lane)
    stamp(a, 2)
    loader_loop(a, streams, NC, S, STAGE, s_kc, s_slot, s_cnt, s_t0, s_t1, s_t2, lds_base=RING, ahead=3)
    stamp(a, 3)
    def helper_zero(pitch, nrows, rowbytes, wpb, nch):
        a("v_subrev_u32 v0, 256, v0")
        TP = 24
        rounds = tap_loads(a, sD, s_c0b, nch, 16, TP, 256)
        a("s_barrier")
        zero_fill(a, wpb, nch * WP_CH, 8, 256)
        a(f"""
        v_mul_u32_u24 v12, {pitch}, v0
        v_cmp_gt_u32 vcc, {nrows}, v0
        s_and_saveexec_b64 s[54:55], vcc
        ds_write_b128 v12, v[8:11] offset:{rowbytes}
        s_mov_b64 exec, s[54:55]
        v_lshlrev_b32 v12, 4, v0
        v_cmp_gt_u32 vcc, {2*pitch//16}, v0
        s_and_saveexec_b64 s[54:55], vcc
        ds_write_b128 v12, v[8:11] offset:{nrows*pitch}
        s_mov_b64 exec, s[54:55]
        s_waitcnt vmcnt(0) lgkmcnt(0)
        s_barrier
        """)
        tap_writes(a, nch, wpb, 16, TP, rounds, 256)
        a(f"""
        v_add_u32 v0, 256, v0
        s_waitcnt lgkmcnt(0)
        s_barrier
        """)
    helper_zero(RP, 64, 256, WPB, 64)
    a.label("P3_PV_CONV")
    conv_stage(a, 58, 8, 6, RAW, RP, WPB, sO, s_ob, s_tv, s_t0, s_t1, v_lane)
    a("s_branch P3_FIN")

    a.label("P3_LOC")
    A_OFF, B_OFF, STAGE, S, NC = 0, 20480, 36864, 4, 8
    RP2 = 336
    WPB2 = 128 * RP2 + 2 * RP2
    a(f"""
    s_sub_u32 s{s_idx}, s{s_idx}, 22
    s_and_b32 s{s_t0}, s{s_xcd}, 3
    s_lshl_b32 s{s_i0}, s{s_t0}, 1
    s_lshr_b32 s{s_t0}, s{s_idx}, 2
    s_add_u32 s{s_i0}, s{s_i0}, s{s_t0}            ; tt
    s_and_b32 s{s_i1}, s{s_idx}, 3
    s_mov_b32 s{s_kc}, s{s_idx}
    """)
    if "norot" in abl: a(f"s_mov_b32 s{s_kc}, 0")
    a(f"""
    s_lshl_b32 s{s_t1}, s{s_i0}, 7                 ; t_o = 128 tt
    s_add_u32 s{s_ob}, s{s_i1}, 4
    s_lshl_b32 s{s_ob}, s{s_ob}, 19
    s_mul_i32 s{s_t0}, s{s_b}, 1000
    s_add_u32 s{s_t0}, s{s_t0}, s{s_t1}
    s_lshl_b32 s{s_t0}, s{s_t0}, 1
    s_mov_b32 s{s_kt}, s{s_t0}                     ; flat t_o * 2
    s_add_u32 s{s_ob}, s{s_ob}, s{s_t0}
    s_sub_u32 s{s_tv}, 1000, s{s_t1}
    s_min_u32 s{s_tv}, s{s_tv}, 128
    s_lshl_b32 s{s_c0b}, s{s_i1}, 8
    s_add_u32 s{s_c0b}, s{s_c0b}, 1024             ; (512 + 128nt)*2
    """)
    srd(a, sA, 4, 5, 512 * 4096 + 64, WS_ZT - 64)
    srd(a, sB, 6, 7, 512 * 1024)
    a(f"s_cmp_ge_u32 s{s_wave}, 4")
    a("s_cbranch_scc1 P3_LOC_LOADER")
    V2 = Alloc(3, 256)
    va = V2(1); vb = V2(1); vt = V2(8, 2)
    fa = [[V2(4, 4) for _ in range(5)] for _ in range(2)]
    fb = [V2(4, 4) for _ in range(2)]
    acc2 = [V2(16, 4) for _ in range(5)]
    tp = V2(4, 4); vst = V2(1)
    t_frag_common(a, vt, v_lane)
    a(f"""
    v_mul_u32_u24 v{va}, 320, v{vt}
    v_add_u32 v{va}, v{va}, v{vt+2}
    """)
    t128_frag_addr_blk(a, vb, vt, v_lane, B_OFF, s_wave)
    ring = Ring(a, S, STAGE, s_rs, s_delta, s_neg, s_pos); ring.init()
    for b in range(5):
        for i in range(16): a(f"v_mov_b32 v{acc2[b]+i}, 0")
    def reads2(step, st):
        r = tr2(fb[st], vb, 16*step*256, 256)
        for b in range(5): r += tr2(fa[st][b], va, A_OFF + 16*step*320 + 64*b, 320)
        return r
    def mfmas2(st, s, par):
        return [f"v_mfma_f32_32x32x16_bf16 v[{acc2[b]}:{acc2[b]+15}], v[{fa[st][b]}:{fa[st][b]+3}], v[{fb[st]}:{fb[st]+3}], v[{acc2[b]}:{acc2[b]+15}]" for b in range(5)]
    gemm_loop2(a, NC, ring, [va, vb], reads2, mfmas2, [4, 6, 8, 10, 12], s_cnt, "L", D=1, per=4, first_hook=lambda: stamp(a, 2))
    stamp(a, 3)
    a(f"""
    v_and_b32 v{vt}, 31, v{v_lane}
    s_lshl_b32 s{s_t0}, s{s_wave}, 5
    v_add_u32 v{vt}, s{s_t0}, v{vt}
    v_mul_u32_u24 v{vst}, {RP2}, v{vt}
    v_lshrrev_b32 v{vt+1}, 5, v{v_lane}
    v_lshl_add_u32 v{vst}, v{vt+1}, 3, v{vst}
    s_barrier
    """)
    for b in range(5):
        for r in range(4):
            x = acc2[b] + 4*r
            a(f"v_cvt_pk_bf16_f32 v{tp+2*(r&1)}, v{x}, v{x+1}")
            a(f"v_cvt_pk_bf16_f32 v{tp+2*(r&1)+1}, v{x+2}, v{x+3}")
            a(f"ds_write_b64 v{vst}, v[{tp+2*(r&1)}:{tp+2*(r&1)+1}] offset:{(32*b + 8*r)*2}")
    a("s_waitcnt lgkmcnt(0)")
    a("s_barrier")
    stamp(a, 5)
    a("s_barrier")
    a("s_branch P3_LOC_CONV")
    a.label("P3_LOC_LOADER")
    vz, vo2, vt_l = 3, 8, 10
    a(f"s_sub_u32 s{s_wave}, s{s_wave}, 4")
    a(f"s_lshl_b32 s{s_t0}, s{s_i0}, 7")
    for j in range(5):
        a(f"""
        v_add_u32 v{vt_l}, {64*j}, v{v_lane}
        v_mul_u32_u24 v{vt_l+1}, 52429, v{vt_l}
        v_lshrrev_b32 v{vt_l+1}, 20, v{vt_l+1}        ; row = f/20
        v_mul_u32_u24 v{vt_l+2}, 20, v{vt_l+1}
        v_sub_u32 v{vt_l+2}, v{vt_l}, v{vt_l+2}       ; slot
        v_lshlrev_b32 v{vt_l+3}, 3, v{vt_l+2}
        v_add_u32 v{vt_l+3}, s{s_t0}, v{vt_l+3}
        v_subrev_u32 v{vt_l+3}, 16, v{vt_l+3}
        v_cmp_gt_u32 vcc, 1000, v{vt_l+3}
        v_lshlrev_b32 v{vt_l+2}, 4, v{vt_l+2}
        v_lshl_add_u32 v{vz+j}, v{vt_l+1}, 12, v{vt_l+2}
        v_mov_b32 v{vt_l+3}, 0x7ff00000
        v_cndmask_b32 v{vz+j}, v{vt_l+3}, v{vz+j}, vcc
        """)
    t128_loader_voff(a, vo2, vt_l, v_lane, 1024)
    a(f"""
    s_lshl_b32 s{s_b0}, s{s_wave}, 16              ; 16 rows * 4096
    s_add_u32 s{s_b0}, s{s_b0}, s{s_kt}
    s_add_u32 s{s_b0}, s{s_b0}, 32
    s_lshl_b32 s{s_b1}, s{s_wave}, 14
    s_lshl_b32 s{s_t0}, s{s_i1}, 8
    s_add_u32 s{s_b1}, s{s_b1}, s{s_t0}
    s_mul_i32 s{s_l0}, s{s_wave}, 5120
    s_lshl_b32 s{s_l1}, s{s_wave}, 12
    s_add_u32 s{s_l1}, s{s_l1}, {B_OFF}
    """)
    streams = [
        Stream(sA, [vz+j for j in range(5)], [0]*5, [A_OFF + j*1024 for j in range(5)], s_b0, 64*4096, s_l0, dep=True),
        Stream(sB, [vo2]*4, [i*4*1024 for i in range(4)], [i*1024 for i in range(4)], s_b1, 64*1024, s_l1),
    ]
    grid_wait(a, 1, 16, v_lane)
    stamp(a, 2)
    loader_loop(a, streams, NC, S, STAGE, s_kc, s_slot, s_cnt, s_t0, s_t1, s_t2, ahead=2)
    stamp(a, 3)
    helper_zero(RP2, 128, 320, WPB2, 128)
    a.label("P3_LOC_CONV")
    conv_stage(a, 58, 16, 8, 0, RP2, WPB2, sO, s_ob, s_tv, s_t0, s_t1, v_lane)
    a.label("P3_FIN")
    if STAMPS_ON():
        a("s_waitcnt vmcnt(0)")
    stamp(a, 6)
    stamp_flush(a, 58)
    a.label(END)
    if common.PERS: grid_arrive(a, 2)
    else: a("s_endpgm")
    return a.text(), dict(name=name, vgpr=max(V.hi, V2.hi, 116), sgpr=100, lds=max(4096 + 5*24576, 4*36864), grid=256, block=512)
```

```python
import sys
sys.path.insert(0, "gen")
from common import *
import p1, p2, p3, p3f

HEADER = open("standalone__conformer_family_e_branchformer__speech.s.ref").read().split("; Override launch")[0]

PLAIN = False
def assemble(kernels):
    s = HEADER
    for txt, k in kernels:
        if PLAIN and len(kernels) == 1:
            s += f"; @launch grid=({k['grid']},1,1) block=({k['block']},1,1) lds={k['lds']}\n"
        else:
            s += f"; @launch kernel={k['name']} grid=({k['grid']},1,1) block=({k['block']},1,1) lds={k['lds']}\n"
    s += '.amdgcn_target "amdgcn-amd-amdhsa--gfx950"\n.text\n'
    for txt, k in kernels:
        s += f".globl {k['name']}\n.p2align 8\n.type {k['name']},@function\n{k['name']}:\n{txt}"
    s += '.section .rodata,"a"\n'
    for txt, k in kernels:
        v = (k['vgpr'] + 3) // 4 * 4
        s += ".p2align 6\n" + KD.format(name=k['name'], vgpr=v, sgpr=k['sgpr'], acc=v)
    return s

if __name__ == "__main__":
    import common
    if "--stamps" in sys.argv:
        common.STAMPS = True
        sys.argv.remove("--stamps")
    if "--cyc" in sys.argv:
        common.CYC = True
    abl = tuple(x[2:] for x in sys.argv if x.startswith('--'))
    if 'plain' in abl: PLAIN = True
    if 'pers' in abl:
        common.PERS = True
        common.SCF = 'sc1'
        common.AGG = 'noagg' not in abl
    sys.argv = [x for x in sys.argv if not x.startswith('--')]
    if 'unfused' in abl: ks = [p1.gen_p1(abl=abl), p2.gen_p2(abl=abl), p3.gen_p3(abl=abl), p3.gen_p3b(), p3.gen_p4(abl=abl)]
    else: ks = [p1.gen_p1(abl=abl), p2.gen_p2(abl=abl), p3f.gen_p3f(abl=abl), p3.gen_p4(abl=abl, phase=3)]
    if 'pers' in abl:
        pre = Asm('pi_'); pre(f"s_cmp_ge_u32 s2, 256"); pre("s_cbranch_scc1 P4_END_EXIT"); pers_init(pre)
        txt = pre.text() + "".join(t for t, _ in ks) + "P4_END_EXIT:\n  s_endpgm\n"
        k = dict(name="standalone__conformer_family_e_branchformer__speech_kernel", vgpr=max(x['vgpr'] for _, x in ks), sgpr=102,
                 lds=max(x['lds'] for _, x in ks), grid=256, block=512)
        ks = [(txt, k)]
    out = sys.argv[1] if len(sys.argv) > 1 else "cur.s"
    open(out, "w").write(assemble(ks))
    print("wrote", out, [ (k['name'], k['vgpr'], k['lds']) for _, k in ks])
```

```python
from asm import *

KA = dict(x=0, w_qkv=8, w_att_out=16, w_mlp_in=24, dw_csgu=32, w_mlp_out=40, dw_merge=48, w_merge=56, out=64, dbg=72, ws=80)

MB = 1 << 20
WS_QKV = 0
WS_UG  = 6 * MB
WS_GST = 10 * MB
WS_SST = 10 * MB + 256 * 1024
WS_RST = 10 * MB + 512 * 1024
WS_CSP = 10 * MB + 640 * 1024
WS_PT  = 11 * MB
WS_VP  = 15 * MB
WS_ZT  = 17 * MB
WS_MT  = 19 * MB
WS_MPT = 23 * MB
WS_END = 27 * MB

def srd(a, d, base_lo, base_hi, size, off=0):
    if off:
        a(f"s_add_u32 s{d}, s{base_lo}, {off}")
        a(f"s_addc_u32 s{d+1}, s{base_hi}, 0")
    else:
        a(f"s_mov_b32 s{d}, s{base_lo}")
        a(f"s_mov_b32 s{d+1}, s{base_hi}")
    a(f"s_mov_b32 s{d+2}, {size}")
    a(f"s_mov_b32 s{d+3}, 0x20000")

def interleave(a, mfmas, fillers, lead=0):
    f = list(fillers)
    for x in f[:lead]: a(x)
    f = f[lead:]
    n = len(mfmas)
    per = [len(f) // n + (1 if i < len(f) % n else 0) for i in range(n)]
    k = 0
    for i, m in enumerate(mfmas):
        a(m)
        for x in f[k:k + per[i]]: a(x)
        k += per[i]

KD = """.amdhsa_kernel {name}
  .amdhsa_next_free_vgpr {vgpr}
  .amdhsa_next_free_sgpr {sgpr}
  .amdhsa_accum_offset {acc}
  .amdhsa_group_segment_fixed_size 0
  .amdhsa_kernarg_size 88
  .amdhsa_user_sgpr_count 2
  .amdhsa_user_sgpr_kernarg_segment_ptr 1
  .amdhsa_system_sgpr_workgroup_id_x 1
.end_amdhsa_kernel
"""

class Stream:
    def __init__(self, srd, voffs, soff_imm, lds_imm, s_base, inc, s_lds, dep=False):
        self.srd = srd; self.voffs = voffs; self.soff_imm = soff_imm; self.lds_imm = lds_imm
        self.s_base = s_base; self.inc = inc; self.s_lds = s_lds
        self.dep = dep
    @property
    def n(self): return len(self.voffs)

def issue_chunk(a, streams, s_kc, s_slot, s_t0, s_t1, s_t2, flags=""):
    for st in streams:
        a(f"s_mul_i32 s{s_t0}, s{s_kc}, {st.inc}")
        a(f"s_add_u32 s{s_t0}, s{s_t0}, s{st.s_base}")
        a(f"s_add_u32 s{s_t1}, s{s_slot}, s{st.s_lds}")
        for v, so, lo in zip(st.voffs, st.soff_imm, st.lds_imm):
            if lo: a(f"s_add_u32 m0, s{s_t1}, {lo}")
            else:  a(f"s_mov_b32 m0, s{s_t1}")
            if so:
                a(f"s_add_u32 s{s_t2}, s{s_t0}, {so}")
                a(f"buffer_load_dwordx4 v{v}, s[{st.srd}:{st.srd+3}], s{s_t2} offen lds {flags}".rstrip())
            else:
                a(f"buffer_load_dwordx4 v{v}, s[{st.srd}:{st.srd+3}], s{s_t0} offen lds {flags}".rstrip())

def dma_list(streams, s_kc, s_slot, s_t0, s_t1, s_t2, flags=""):
    groups = []
    for st in streams:
        pre = [f"s_mul_i32 s{s_t0}, s{s_kc}, {st.inc}",
               f"s_add_u32 s{s_t0}, s{s_t0}, s{st.s_base}",
               f"s_add_u32 s{s_t1}, s{s_slot}, s{st.s_lds}"]
        for v, so, lo in zip(st.voffs, st.soff_imm, st.lds_imm):
            g = pre; pre = []
            g.append(f"s_add_u32 m0, s{s_t1}, {lo}" if lo else f"s_mov_b32 m0, s{s_t1}")
            if so:
                g.append(f"s_add_u32 s{s_t2}, s{s_t0}, {so}")
                g.append(f"buffer_load_dwordx4 v{v}, s[{st.srd}:{st.srd+3}], s{s_t2} offen {SCF if st.dep else ''} lds")
            else:
                g.append(f"buffer_load_dwordx4 v{v}, s[{st.srd}:{st.srd+3}], s{s_t0} offen {SCF if st.dep else ''} lds")
            groups.append(g)
    return groups

def loader_loop(a, streams, NC, S, stage_bytes, s_kc, s_slot, s_cnt, s_t0, s_t1, s_t2, lds_base=0,
                work=None, work_pre=None, work_post=None, ahead=2, hook=None):
    n = sum(st.n for st in streams)
    assert S >= ahead + 1 and n * ahead <= 63
    def adv():
        a(f"s_add_u32 s{s_kc}, s{s_kc}, 1")
        a(f"s_and_b32 s{s_kc}, s{s_kc}, {NC-1}")
        a(f"s_add_u32 s{s_slot}, s{s_slot}, {stage_bytes}")
        a(f"s_cmp_eq_u32 s{s_slot}, {lds_base + S*stage_bytes}")
        a(f"s_cselect_b32 s{s_slot}, {lds_base}, s{s_slot}")
    def issue(fill):
        gs = dma_list(streams, s_kc, s_slot, s_t0, s_t1, s_t2)
        per = [len(fill) // len(gs) + (1 if i < len(fill) % len(gs) else 0) for i in range(len(gs))]
        k = 0
        for g, p in zip(gs, per):
            for x in g: a(x)
            for x in fill[k:k+p]: a(x)
            k += p
        adv()
    a(f"s_mov_b32 s{s_slot}, {lds_base}")
    for i in range(ahead): issue([])
    if hook: hook()
    a(f"s_waitcnt vmcnt({n*(ahead-1)})")
    a("s_barrier")
    nst = NC - ahead
    L = a.newlabel("LD_st")
    a(f"s_mov_b32 s{s_cnt}, {nst}")
    a.label(L)
    if work_pre: work_pre()
    issue(work() if work else [])
    if work_post: work_post()
    a(f"s_waitcnt vmcnt({n*(ahead-1)})")
    a("s_barrier")
    a(f"s_sub_u32 s{s_cnt}, s{s_cnt}, 1")
    a(f"s_cmp_lg_u32 s{s_cnt}, 0")
    a(f"s_cbranch_scc1 {L}")
    for c_ in range(nst, NC):
        if work_pre: work_pre()
        if work:
            for x in work(): a(x)
        if work_post: work_post()
        if c_ < NC - 1:
            a(f"s_waitcnt vmcnt({n*(NC-2-c_)})")
            a("s_barrier")

STAMPS = False
SCF = ''
CYC = False
ST_BASE = 64
def stamp(a, idx, s_wave=None, sD=60):
    if not STAMPS: return
    b = ST_BASE + 4 * idx
    a(f"s_memrealtime s[{b}:{b+1}]")
    a(f"s_memtime s[{b+2}:{b+3}]")
    a("s_waitcnt lgkmcnt(0)")
def stamp_flush(a, s_wave, n=7, sD=60):
    if not STAMPS: return
    L = a.newlabel("ST")
    a(f"s_and_b32 s{sD-1}, s{s_wave}, 3")
    a(f"s_cmp_lg_u32 s{sD-1}, 0")
    a(f"s_cbranch_scc1 {L}")
    a(f"s_cmp_ge_u32 s{s_wave}, 8")
    a(f"s_cbranch_scc1 {L}")
    a(f"s_lshr_b32 s{sD-1}, s{s_wave}, 2")
    a(f"s_lshl_b32 s{sD-1}, s{sD-1}, 6")
    a(f"s_lshl_b32 s{sD-2}, s2, 7")
    a(f"s_add_u32 s{sD-1}, s{sD-1}, s{sD-2}")
    a("s_mov_b64 exec, 1")
    a(f"v_mov_b32 v2, s{sD-1}")
    for i in range(n):
        b = ST_BASE + 4 * i
        a(f"v_mov_b32 v{4+2*i}, s{b}")
        a(f"v_mov_b32 v{5+2*i}, s{b+2}")
    for i in range(n):
        a(f"buffer_store_dwordx2 v[{4+2*i}:{5+2*i}], v2, s[{sD}:{sD+3}], 0 offen offset:{i*8}")
    a("s_mov_b64 exec, -1")
    a.label(L)
def stamp_zero(a, n=7):
    if not STAMPS: return
    for i in range(n):
        a(f"s_mov_b32 s{ST_BASE+4*i}, 0")
        a(f"s_mov_b32 s{ST_BASE+4*i+2}, 0")
def stamp_init(a, ws_lo, ws_hi, phase, sD=60):
    if not STAMPS: return
    srd(a, sD, ws_lo, ws_hi, 256*128, WS_STAMP + phase * 32768)
WS_STAMP = 32 * MB

def r_loader_voff(a, vd, vt, v_lane, s_w, s_t, pitch):
    a(f"""
    v_lshrrev_b32 v{vt}, 3, v{v_lane}
    v_lshrrev_b32 v{vt+1}, 4, v{v_lane}
    s_and_b32 s{s_t}, s{s_w}, 1
    s_lshl_b32 s{s_t}, s{s_t}, 2
    v_add_u32 v{vt+1}, s{s_t}, v{vt+1}
    v_and_b32 v{vt+2}, 7, v{v_lane}
    v_xor_b32 v{vt+2}, v{vt+2}, v{vt+1}
    v_lshlrev_b32 v{vt+2}, 4, v{vt+2}
    v_mul_u32_u24 v{vt}, {pitch}, v{vt}
    v_add_u32 v{vd}, v{vt}, v{vt+2}
    """)
def t64_loader_voff(a, vd, vt, v_lane, pitch):
    a(f"""
    v_lshrrev_b32 v{vt}, 3, v{v_lane}
    v_bfe_u32 v{vt+1}, v{v_lane}, 4, 1
    v_lshlrev_b32 v{vt+1}, 2, v{vt+1}
    v_and_b32 v{vt+2}, 7, v{v_lane}
    v_xor_b32 v{vt+2}, v{vt+2}, v{vt+1}
    v_lshlrev_b32 v{vt+2}, 4, v{vt+2}
    v_mul_u32_u24 v{vt}, {pitch}, v{vt}
    v_add_u32 v{vd}, v{vt}, v{vt+2}
    """)
def t128_loader_voff(a, vd, vt, v_lane, pitch):
    a(f"""
    v_lshrrev_b32 v{vt}, 4, v{v_lane}
    v_lshlrev_b32 v{vt+1}, 2, v{vt}
    v_and_b32 v{vt+2}, 15, v{v_lane}
    v_xor_b32 v{vt+2}, v{vt+2}, v{vt+1}
    v_lshlrev_b32 v{vt+2}, 4, v{vt+2}
    v_mul_u32_u24 v{vt}, {pitch}, v{vt}
    v_add_u32 v{vd}, v{vt}, v{vt+2}
    """)
def r_frag_addrs(a, vd, vt, v_lane, s_rowblk, s_t, base):
    a(f"""
    v_and_b32 v{vt}, 31, v{v_lane}
    v_lshrrev_b32 v{vt+1}, 5, v{v_lane}
    v_lshrrev_b32 v{vt+2}, 1, v{vt}
    v_and_b32 v{vt+2}, 7, v{vt+2}
    v_lshlrev_b32 v{vt+3}, 7, v{vt}
    """)
    if s_rowblk is not None:
        a(f"s_lshl_b32 s{s_t}, s{s_rowblk}, 12")
        a(f"v_add_u32 v{vt+3}, s{s_t}, v{vt+3}")
    if base: a(f"v_add_u32 v{vt+3}, {base}, v{vt+3}")
    for s in range(4):
        a(f"""
        v_add_u32 v{vt+4}, {2*s}, v{vt+1}
        v_xor_b32 v{vt+4}, v{vt+4}, v{vt+2}
        v_lshl_add_u32 v{vd+s}, v{vt+4}, 4, v{vt+3}
        """)
def t_frag_common(a, vt, v_lane):
    a(f"""
    v_lshrrev_b32 v{vt}, 5, v{v_lane}
    v_lshlrev_b32 v{vt}, 3, v{vt}
    v_bfe_u32 v{vt+1}, v{v_lane}, 2, 2
    v_add_u32 v{vt}, v{vt}, v{vt+1}
    v_bfe_u32 v{vt+2}, v{v_lane}, 4, 1
    v_lshlrev_b32 v{vt+2}, 5, v{vt+2}
    v_and_b32 v{vt+3}, 3, v{v_lane}
    v_lshl_add_u32 v{vt+2}, v{vt+3}, 3, v{vt+2}
    """)
def t64_frag_addrs(a, vd, vt, v_lane, base):
    t_frag_common(a, vt, v_lane)
    a(f"""
    v_lshlrev_b32 v{vt+3}, 7, v{vt}
    v_add_u32 v{vt+3}, v{vt+3}, v{vt+2}
    v_add_u32 v{vt+3}, {base}, v{vt+3}
    v_bfe_u32 v{vt+4}, v{v_lane}, 3, 1
    v_lshlrev_b32 v{vt+4}, 6, v{vt+4}
    v_add_u32 v{vd}, v{vt+3}, v{vt+4}
    v_xor_b32 v{vt+4}, 64, v{vt+4}
    v_add_u32 v{vd+1}, v{vt+3}, v{vt+4}
    """)
def t64_frag_addr_blk(a, vd, vt, v_lane, base, s_blk, s_t):
    t_frag_common(a, vt, v_lane)
    a(f"""
    v_lshlrev_b32 v{vt+3}, 7, v{vt}
    v_add_u32 v{vt+3}, v{vt+3}, v{vt+2}
    v_add_u32 v{vt+3}, {base}, v{vt+3}
    v_bfe_u32 v{vt+4}, v{v_lane}, 3, 1
    v_xor_b32 v{vt+4}, s{s_blk}, v{vt+4}
    v_lshlrev_b32 v{vt+4}, 6, v{vt+4}
    v_add_u32 v{vd}, v{vt+3}, v{vt+4}
    """)
def t128_frag_addr_blk(a, vd, vt, v_lane, base, s_blk):
    t_frag_common(a, vt, v_lane)
    a(f"""
    v_lshlrev_b32 v{vt+3}, 8, v{vt}
    v_add_u32 v{vt+3}, v{vt+3}, v{vt+2}
    v_add_u32 v{vt+3}, {base}, v{vt+3}
    v_bfe_u32 v{vt+4}, v{v_lane}, 2, 2
    v_xor_b32 v{vt+4}, s{s_blk}, v{vt+4}
    v_lshlrev_b32 v{vt+4}, 6, v{vt+4}
    v_add_u32 v{vd}, v{vt+3}, v{vt+4}
    """)
def tr2(dst, vaddr, off, pitch):
    return [f"ds_read_b64_tr_b16 v[{dst}:{dst+1}], v{vaddr} offset:{off}",
            f"ds_read_b64_tr_b16 v[{dst+2}:{dst+3}], v{vaddr} offset:{off + 4*pitch}"]

def counted_step(a, mf, need, nxt, prev_n, per=4, extra=None):
    n = len(mf)
    k = 0; issued = 0
    for i in range(n):
        cnt = (prev_n - need[i]) + issued
        a(f"s_waitcnt lgkmcnt({min(cnt, 15)})")
        a(mf[i])
        g = nxt[k:k+per] if i < n - 1 else nxt[k:]
        for x in g: a(x); issued += 1
        k += per
        if extra and i in extra:
            for x in extra[i]: a(x)

class Ring:
    def __init__(self, a, S, stage, s_rs, s_delta, s_neg, s_pos):
        self.a, self.S, self.stage = a, S, stage
        self.s_rs, self.s_delta, self.s_neg, self.s_pos = s_rs, s_delta, s_neg, s_pos
    def init(self):
        a = self.a
        a(f"s_mov_b32 s{self.s_rs}, 0")
        a(f"s_mov_b32 s{self.s_neg}, {(-(self.S-1)*self.stage) & 0xffffffff}")
        a(f"s_mov_b32 s{self.s_pos}, {self.stage}")
    def bump(self, regs):
        a = self.a
        a(f"s_add_u32 s{self.s_rs}, s{self.s_rs}, {self.stage}")
        a(f"s_cmp_eq_u32 s{self.s_rs}, {self.S*self.stage}")
        a(f"s_cselect_b32 s{self.s_delta}, s{self.s_neg}, s{self.s_pos}")
        a(f"s_cselect_b32 s{self.s_rs}, 0, s{self.s_rs}")
        for r in regs: a(f"v_add_u32 v{r}, s{self.s_delta}, v{r}")

def gemm_mainloop(a, NC, ring, addr_regs, reads, mfmas, need, s_cnt, tag, per=4, chunk_hook=None, first_hook=None):
    nr = len(reads(0, 0))
    def chunk(last, par):
        for s in range(4):
            st = s & 1
            if s == 3 and not last:
                a("s_waitcnt lgkmcnt(0)")
                a("s_barrier")
                ring.bump(addr_regs)
            nxt = [] if (s == 3 and last) else reads((s + 1) & 3, st ^ 1)
            ex = chunk_hook(s, last, par) if chunk_hook else None
            counted_step(a, mfmas(st, s, par), need, nxt, nr, per=per, extra=ex)
    a("s_barrier")
    if first_hook: first_hook()
    for x in reads(0, 0): a(x)
    return chunk

def gemm_loop2(a, NC, ring, addr_regs, reads, mfmas, need, s_cnt, tag, D=2, per=4, hook=None, first_hook=None, unroll=1, pre_loop=None,
               full=False, chunk_pre=None):
    nsets = 2 if D == 1 else 4
    nr = len(reads(0, 0))
    def chunk(ci, last):
        for s in range(4):
            st = s % nsets
            if s == (4 - D) % 4 and not last and (D < 4 or True):
                a("s_barrier")
                ring.bump(addr_regs)
            tgt = s + D
            if last and tgt >= 4: nxt = []
            else: nxt = reads(tgt % 4, tgt % nsets)
            ex = hook(ci, s, last) if hook else None
            mf = mfmas(st, s, ci)
            n = len(mf); k = 0; issued = 0
            for i in range(n):
                later = 0
                for j in range(1, D):
                    if not (last and s + j >= 4): later += nr
                cnt = (nr - need[i]) + later + issued
                a(f"s_waitcnt lgkmcnt({min(cnt, 15)})")
                a(mf[i])
                g = nxt[k:k+per] if i < n - 1 else nxt[k:]
                for x in g: a(x); issued += 1
                k += per
                if ex and i in ex:
                    for x in ex[i]: a(x)
    a("s_barrier")
    if first_hook: first_hook()
    for s in range(D):
        for x in reads(s, s % nsets): a(x)
    if pre_loop: pre_loop()
    if full:
        for ci in range(NC):
            if chunk_pre: chunk_pre(ci)
            chunk(ci, ci == NC - 1)
        return
    nloop = (NC - 1) // unroll
    rem = (NC - 1) - nloop * unroll
    if nloop > 0:
        L = a.newlabel(f"{tag}_loop")
        a(f"s_mov_b32 s{s_cnt}, {nloop}")
        a.label(L)
        for u in range(unroll): chunk(u, False)
        a(f"s_sub_u32 s{s_cnt}, s{s_cnt}, 1")
        a(f"s_cmp_lg_u32 s{s_cnt}, 0")
        a(f"s_cbranch_scc1 {L}")
    for u in range(rem): chunk(u, False)
    chunk(rem % unroll, True)


PERS = False
WS_FLAGS = 30 * MB
WS_EPOCH = 30 * MB + 16384
S_EXP, S_FL = 3, 92

def pers_init(a):
    a(f"s_load_dwordx2 s[96:97], s[0:1], {KA['ws']}")

def pers_init2(a):
    if not PERS: return
    a(f"s_add_u32 s{S_FL}, s96, {WS_FLAGS}")
    a(f"s_addc_u32 s{S_FL+1}, s97, 0")
    a(f"s_mov_b32 s{S_FL+2}, 32768")
    a(f"s_mov_b32 s{S_FL+3}, 0x20000")
    a(f"s_add_u32 s96, s96, {WS_EPOCH}")
    a(f"s_addc_u32 s97, s97, 0")
    a(f"s_load_dword s{S_EXP}, s[96:97], 0")

def pers_init3(a):
    if not PERS: return
    a("s_waitcnt lgkmcnt(0)")
    a(f"s_add_u32 s{S_EXP}, s{S_EXP}, 1")

AGG = True
WS_GO_OFF = 8192
def poll_flags(a, p, v, lane, Ld):
    L = a.newlabel("pf")
    a(f"v_lshlrev_b32 v{v+4}, 4, v{lane}")
    a(f"s_mov_b32 s97, {p*1024}")
    a("s_mov_b32 s96, 0x200000")
    a.label(L)
    a(f"buffer_load_dwordx4 v[{v}:{v+3}], v{v+4}, s[{S_FL}:{S_FL+3}], s97 offen sc1")
    a("s_waitcnt vmcnt(0)")
    for i in range(4): a(f"v_xor_b32 v{v+i}, s{S_EXP}, v{v+i}")
    a(f"v_or_b32 v{v}, v{v}, v{v+1}")
    a(f"v_or_b32 v{v+2}, v{v+2}, v{v+3}")
    a(f"v_or_b32 v{v}, v{v}, v{v+2}")
    a(f"v_cmp_ne_u32 vcc, 0, v{v}")
    a("s_sub_u32 s96, s96, 1")
    a("s_cmp_eq_u32 s96, 0")
    a(f"s_cbranch_scc1 {Ld}")
    a(f"s_cbranch_vccnz {L}")

def grid_arrive(a, p):
    if not PERS: return
    L = a.newlabel("arr"); Lg = a.newlabel("aggd")
    a("s_waitcnt vmcnt(0) lgkmcnt(0)")
    a("s_barrier")
    a("v_lshrrev_b32 v1, 6, v0")
    a("s_nop 0")
    a("v_readfirstlane_b32 s96, v1")
    a("s_cmp_lg_u32 s96, 0")
    a(f"s_cbranch_scc1 {L}")
    a(f"s_lshl_b32 s96, s2, 2")
    a(f"s_add_u32 s96, s96, {p*1024}")
    a(f"v_mov_b32 v1, s{S_EXP}")
    a("v_mov_b32 v2, 0")
    a("s_mov_b64 exec, 1")
    a(f"buffer_store_dword v1, v2, s[{S_FL}:{S_FL+3}], s96 offen sc1")
    a("s_mov_b64 exec, -1")
    if AGG:
        a("s_cmp_lg_u32 s2, 0")
        a(f"s_cbranch_scc1 {L}")
        a("v_and_b32 v9, 63, v0")
        poll_flags(a, p, 4, 9, Lg)
        a.label(Lg)
        a(f"s_mov_b32 s97, {WS_GO_OFF + p*128}")
        a("s_mov_b64 exec, 1")
        a(f"buffer_store_dword v1, v2, s[{S_FL}:{S_FL+3}], s97 offen sc1")
        a("s_mov_b64 exec, -1")
    a.label(L)

def grid_wait(a, p, v, lane):
    if not PERS: return
    Ld = a.newlabel("gwd")
    a("s_cmp_lg_u32 s58, 0")
    a(f"s_cbranch_scc1 {Ld}")
    if AGG:
        L = a.newlabel("gw")
        a(f"v_mov_b32 v{v+1}, 0")
        a(f"s_mov_b32 s97, {WS_GO_OFF + p*128}")
        a("s_mov_b32 s96, 0x200000")
        a.label(L)
        a(f"buffer_load_dword v{v}, v{v+1}, s[{S_FL}:{S_FL+3}], s97 offen sc1")
        a("s_waitcnt vmcnt(0)")
        a(f"v_readfirstlane_b32 s100, v{v}")
        a("s_sub_u32 s96, s96, 1")
        a("s_cmp_eq_u32 s96, 0")
        a(f"s_cbranch_scc1 {Ld}")
        a(f"s_cmp_lg_u32 s100, s{S_EXP}")
        a(f"s_cbranch_scc1 {L}")
    else:
        poll_flags(a, p, v, lane, Ld)
    a.label(Ld)
    a("s_barrier")

def pers_finish(a):
    L = a.newlabel("fin")
    a("s_cmp_lg_u32 s2, 0")
    a(f"s_cbranch_scc1 {L}")
    a("v_cmp_eq_u32 vcc, 0, v0")
    a("s_and_saveexec_b64 s[96:97], vcc")
    a(f"s_cbranch_execz {L}")
    a(f"v_mov_b32 v1, s{S_EXP}")
    a("v_mov_b32 v2, 16384")
    a(f"buffer_store_dword v1, v2, s[{S_FL}:{S_FL+3}], 0 offen sc1")
    a.label(L)
```

```python
from common import *
import common, struct
def STAMPS_ON(): return common.STAMPS
def f2u(x): return struct.unpack("<I", struct.pack("<f", x))[0]

X_OFF, WQ_OFF, WM_OFF, STAGE = 0, 16384, 16384 + 12288, 36864
S1, NC1 = 4, 8
T_RSTD, T_NMR, T_CS, T_CS4 = 0, 512, 1024, 1536
RING = 2048
LDS1 = RING + S1 * STAGE
STG_Q, PQ = RING, 208
STG_M, PM = RING + 128 * 208, 272
STG_P = STG_M + 64 * 272

LOG2E = 1.4426950408889634
kA = -2.0 * 0.7978845608028654 * LOG2E
kB = kA * 0.044715

def gen_p1(name="p1_kernel", abl=()):
    SC = common.SCF
    a = Asm('p1_')
    END = "P1_END"
    sX, sWQ, sWM, sQKV, sUG, sGS = 8, 12, 16, 20, 24, 28
    s_wave, s_rt, s_ct, s_kc, s_slot, s_cnt, s_t0, s_t1, s_t2 = 36, 37, 38, 39, 40, 41, 42, 43, 44
    s_bx, s_bq, s_bm, s_lx, s_lq, s_lm = 45, 46, 47, 48, 49, 50
    s_ones, s_delta, s_neg, s_pos, s_rs = 51, 52, 56, 57, 53
    v_lane = 2
    a(f"""
    s_cmp_ge_u32 s2, 256
    s_cbranch_scc1 {END}
    s_load_dwordx2 s[4:5], s[0:1], {KA['x']}
    s_load_dwordx2 s[6:7], s[0:1], {KA['w_qkv']}
    s_load_dwordx2 s[32:33], s[0:1], {KA['w_mlp_in']}
    s_load_dwordx2 s[34:35], s[0:1], {KA['ws']}
    """)
    stamp_zero(a)
    if STAMPS_ON():
        a("s_memrealtime s[64:65]")
        a("s_memtime s[66:67]")
    a(f"""
    v_lshrrev_b32 v1, 6, v0
    v_and_b32 v2, 63, v0
    v_readfirstlane_b32 s{s_wave}, v1
    s_and_b32 s{s_t0}, s2, 7
    s_lshr_b32 s{s_t1}, s2, 3
    s_lshr_b32 s{s_rt}, s{s_t0}, 1
    s_lshl_b32 s{s_rt}, s{s_rt}, 2
    s_and_b32 s{s_t2}, s{s_t1}, 3
    s_add_u32 s{s_rt}, s{s_rt}, s{s_t2}
    s_and_b32 s{s_ct}, s{s_t0}, 1
    s_lshl_b32 s{s_ct}, s{s_ct}, 3
    s_lshr_b32 s{s_kc}, s{s_t1}, 2
    s_add_u32 s{s_ct}, s{s_ct}, s{s_kc}
    s_lshr_b32 s{s_kc}, s{s_rt}, 1
    s_mov_b32 s58, s{s_wave}
    s_cmp_ge_u32 s{s_wave}, 4
    s_cbranch_scc1 P1_LOADER
    """)
    def out_srds():
        srd(a, sQKV, 34, 35, 2000 * 3072, WS_QKV)
        srd(a, sUG, 34, 35, 1024 * 4096, WS_UG)
        srd(a, sGS, 34, 35, 8 * 2 * 2048 * 4, WS_GST)
        stamp_init(a, 34, 35, 0)
    ring = Ring(a, S1, STAGE, s_rs, s_delta, s_neg, s_pos)

    V = Alloc(3, 256)
    vxa = V(4); vwq = V(1); vwm = V(2)
    vt = V(8, 2)
    fbase = V(48, 4)
    fx = [fbase, fbase + 4]
    fw = [[fbase + 8 + 20*st + 4*b for b in range(5)] for st in range(2)]
    acc = [V(16, 4) for _ in range(5)]
    csa = V(8, 4); vones = V(2, 2)
    xr = V(8, 4)
    ga = V(20, 4)
    sRS, sCP = 8, 12
    s_T = 59 if False else 45
    r_frag_addrs(a, vxa, vt, v_lane, s_wave, s_t0, RING + X_OFF)
    a(f"""
    s_lshl_b32 s{s_t0}, s{s_rt}, 7
    s_lshl_b32 s{s_t1}, s{s_ct}, 3
    s_add_u32 s{s_t0}, s{s_t0}, s{s_t1}
    s_lshl_b32 s{s_t1}, s{s_wave}, 1
    s_add_u32 s46, s{s_t0}, s{s_t1}
    s_lshl_b32 s{s_t1}, s46, 10
    v_lshlrev_b32 v{vt}, 4, v{v_lane}
    s_lshl_b32 s{s_T}, s{s_rt}, 4
    s_add_u32 s{s_T}, s{s_T}, s{s_ct}
    s_waitcnt lgkmcnt(0)
    """)
    srd(a, 16, 4, 5, 2000 * 1024)
    a(f"buffer_load_dwordx4 v[{xr}:{xr+3}], v{vt}, s[16:19], s{s_t1} offen")
    a(f"s_add_u32 s{s_t1}, s{s_t1}, 1024")
    a(f"buffer_load_dwordx4 v[{xr+4}:{xr+7}], v{vt}, s[16:19], s{s_t1} offen")
    srd(a, sRS, 34, 35, 2048 * 8, WS_RST)
    srd(a, sCP, 34, 35, 16 * 16 * 160 * 4, WS_CSP)
    pers_init2(a)
    out_srds()
    t_frag_common(a, vt, v_lane)
    a(f"""
    v_mul_u32_u24 v{vwq}, 192, v{vt}
    v_add_u32 v{vwq}, v{vwq}, v{vt+2}
    v_add_u32 v{vwq}, {RING}, v{vwq}
    """)
    t64_frag_addrs(a, vwm, vt, v_lane, RING)
    ring.init()
    for b in range(5):
        for i in range(16): a(f"v_mov_b32 v{acc[b]+i}, 0")
    for i in range(8): a(f"v_mov_b32 v{csa+i}, 0")
    a(f"v_mov_b32 v{vones}, 0x3f803f80")
    a(f"v_mov_b32 v{vones+1}, 0x3f803f80")
    a(f"s_mov_b32 s{s_ones}, 0x3f803f80")
    R = ga
    for i in range(4): a(f"v_mov_b32 v{R+i}, 0")
    a("s_waitcnt vmcnt(0)")
    for i in range(4):
        a(f"v_dot2_f32_bf16 v{R}, v{xr+i}, s{s_ones}, v{R}")
        a(f"v_dot2_f32_bf16 v{R+1}, v{xr+i}, v{xr+i}, v{R+1}")
        a(f"v_dot2_f32_bf16 v{R+2}, v{xr+4+i}, s{s_ones}, v{R+2}")
        a(f"v_dot2_f32_bf16 v{R+3}, v{xr+4+i}, v{xr+4+i}, v{R+3}")
    a(f"""
    s_nop 2
    v_permlane32_swap_b32 v{R}, v{R+1}
    v_permlane32_swap_b32 v{R+2}, v{R+3}
    v_add_f32 v{R}, v{R}, v{R+1}
    v_add_f32 v{R+2}, v{R+2}, v{R+3}
    s_nop 1
    v_permlane16_swap_b32 v{R}, v{R+2}
    v_add_f32 v{R}, v{R}, v{R+2}
    s_nop 1
    v_add_f32_dpp v{R}, v{R}, v{R} row_ror:8 row_mask:0xf bank_mask:0xf
    s_nop 1
    v_add_f32_dpp v{R}, v{R}, v{R} row_ror:4 row_mask:0xf bank_mask:0xf
    s_nop 1
    v_add_f32_dpp v{R}, v{R}, v{R} row_ror:2 row_mask:0xf bank_mask:0xf
    s_nop 1
    v_add_f32_dpp v{R}, v{R}, v{R} row_ror:1 row_mask:0xf bank_mask:0xf
    v_mov_b32 v{R+1}, v{R}
    s_nop 1
    v_permlane32_swap_b32 v{R}, v{R+1}
    v_mul_f32 v{R}, 0x3b000000, v{R}                ; mean
    v_mul_f32 v{R+1}, 0x3b000000, v{R+1}            ; E[x^2]
    v_fma_f32 v{R+1}, -v{R}, v{R}, v{R+1}
    v_max_f32 v{R+1}, 0, v{R+1}
    v_add_f32 v{R+1}, 0x3727c5ac, v{R+1}
    v_rsq_f32 v{R+2}, v{R+1}
    v_mul_f32 v{R+3}, -1.0, v{R}
    v_bfe_u32 v{R+4}, v{v_lane}, 4, 1
    v_mul_f32 v{R+3}, v{R+3}, v{R+2}
    v_add_u32 v{R+4}, s46, v{R+4}
    v_lshlrev_b32 v{R+4}, 3, v{R+4}
    v_and_b32 v{R+5}, 0x2f, v{v_lane}
    v_cmp_eq_u32 vcc, 0, v{R+5}
    s_and_saveexec_b64 s[54:55], vcc
    buffer_store_dwordx2 v[{R+2}:{R+3}], v{R+4}, s[{sRS}:{sRS+3}], 0 offen sc1
    s_mov_b64 exec, s[54:55]
    """)
    def reads(step, st):
        r = [f"ds_read_b128 v[{fx[st]}:{fx[st]+3}], v{vxa+step}"]
        for b in range(3): r += tr2(fw[st][b], vwq, WQ_OFF + 16*step*192 + 64*b, 192)
        for b in range(2): r += tr2(fw[st][3+b], vwm + b, WM_OFF + 16*step*128, 128)
        return r
    def mfmas(st, s, ci):
        m = []
        if "nomfma" in abl: return ["s_nop 0"] * 5
        for b in range(3):
            m.append(f"v_mfma_f32_32x32x16_bf16 v[{acc[b]}:{acc[b]+15}], v[{fw[st][b]}:{fw[st][b]+3}], v[{fx[st]}:{fx[st]+3}], v[{acc[b]}:{acc[b]+15}]")
        for b in range(3, 5):
            m.append(f"v_mfma_f32_32x32x16_bf16 v[{acc[b]}:{acc[b]+15}], v[{fx[st]}:{fx[st]+3}], v[{fw[st][b]}:{fw[st][b]+3}], v[{acc[b]}:{acc[b]+15}]")
        return m
    T4 = "v_mfma_f32_4x4x4_16b_bf16"
    def colsum(dst, f): return f"{T4} v[{dst}:{dst+3}], v[{vones}:{vones+1}], v[{f}:{f+1}], v[{dst}:{dst+3}]"
    def hook(ci, s, last):
        if ci != 0: return None
        st = s & 1
        L = a.newlabel("slab")
        ex = [f"s_and_b32 s{s_t0}, s{s_rt}, 1", f"s_cmp_lg_u32 s{s_t0}, {s >> 1}", f"s_cbranch_scc1 {L}"]
        for w in range(4):
            Lw = a.newlabel("slabw")
            f = fw[st][w]
            ex += [f"s_cmp_lg_u32 s{s_wave}, {w}", f"s_cbranch_scc1 {Lw}", colsum(csa, f)]
            if w == 0: ex += [colsum(csa + 4, fw[st][4]), "s_nop 0", colsum(csa, f + 2), colsum(csa + 4, fw[st][4] + 2)]
            else: ex += ["s_nop 1", colsum(csa, f + 2)]
            ex += [f"{Lw}:"]
        ex += [f"{L}:"]
        return {4: ex}
    G2 = ga + 8
    def chunk_pre(ci):
        if ci == 1:
            a(f"""
            v_mov_b32 v{csa+1}, v{csa}
            v_mov_b32 v{csa+5}, v{csa+4}
            s_nop 1
            v_permlane32_swap_b32 v{csa}, v{csa+1}
            v_permlane32_swap_b32 v{csa+4}, v{csa+5}
            v_add_f32 v{csa}, v{csa}, v{csa+1}
            v_add_f32 v{csa+4}, v{csa+4}, v{csa+5}
            v_and_b32 v{vt}, 31, v{v_lane}
            s_lshl_b32 s{s_t0}, s{s_wave}, 5
            v_add_u32 v{vt}, s{s_t0}, v{vt}
            v_lshlrev_b32 v{vt}, 2, v{vt}
            s_lshl_b32 s{s_t0}, s{s_ct}, 4
            s_add_u32 s{s_t0}, s{s_t0}, s{s_rt}
            s_mul_i32 s{s_t0}, s{s_t0}, 640
            s_mov_b32 exec_hi, 0
            buffer_store_dword v{csa}, v{vt}, s[{sCP}:{sCP+3}], s{s_t0} offen sc1
            s_cmp_lg_u32 s{s_wave}, 0
            s_cbranch_scc1 P1_pub4
            buffer_store_dword v{csa+4}, v{vt}, s[{sCP}:{sCP+3}], s{s_t0} offen offset:512 sc1
            P1_pub4:
            s_mov_b32 exec_hi, -1
            """)
        if ci == 2:
            a("s_waitcnt vmcnt(0)")
        if ci == 3:
            a(f"""
            s_cmp_lg_u32 s{s_wave}, 0
            s_cbranch_scc1 P1_noflag
            s_lshl_b32 s{s_t0}, s{s_T}, 2
            s_add_u32 s{s_t0}, s{s_t0}, 3072
            s_waitcnt lgkmcnt(0)
            s_add_u32 s{s_t1}, s{S_EXP}, 1
            v_mov_b32 v{ga}, s{s_t1}
            v_mov_b32 v{ga+1}, 0
            s_mov_b64 exec, 1
            buffer_store_dword v{ga}, v{ga+1}, s[{S_FL}:{S_FL+3}], s{s_t0} offen sc1
            s_mov_b64 exec, -1
            P1_noflag:
            """)
        if ci == 5:
            a(f"""
            v_and_b32 v{ga+2}, 15, v{v_lane}
            s_lshl_b32 s{s_t0}, s{s_rt}, 4
            v_add_u32 v{ga+3}, s{s_t0}, v{ga+2}          ; (rt, j)
            v_lshlrev_b32 v{ga+4}, 4, v{ga+2}
            v_add_u32 v{ga+4}, s{s_ct}, v{ga+4}          ; (j, ct)
            v_cmp_gt_u32 vcc, 16, v{v_lane}
            v_cndmask_b32 v{ga+3}, v{ga+4}, v{ga+3}, vcc
            v_lshlrev_b32 v{ga+3}, 2, v{ga+3}
            s_movk_i32 s46, 3072
            buffer_load_dword v{ga+2}, v{ga+3}, s[{S_FL}:{S_FL+3}], s46 offen sc1
            """)
        if ci == 6:
            a(f"""
            s_add_u32 s{s_t1}, s{S_EXP}, 1
            s_mov_b32 s{s_t2}, 0x200000
            P1_chk:
            s_waitcnt vmcnt(0)
            v_cmp_ne_u32 vcc, s{s_t1}, v{ga+2}
            s_sub_u32 s{s_t2}, s{s_t2}, 1
            s_cmp_eq_u32 s{s_t2}, 0
            s_cbranch_scc1 P1_chkd
            s_cbranch_vccz P1_chkd
            buffer_load_dword v{ga+2}, v{ga+3}, s[{S_FL}:{S_FL+3}], s46 offen sc1
            s_branch P1_chk
            P1_chkd:
            v_and_b32 v{ga}, 31, v{v_lane}
            s_lshl_b32 s{s_t0}, s{s_wave}, 5
            v_add_u32 v{ga}, s{s_t0}, v{ga}
            s_lshl_b32 s{s_t1}, s{s_rt}, 7
            v_add_u32 v{ga+1}, s{s_t1}, v{ga}
            v_lshlrev_b32 v{ga+1}, 3, v{ga+1}
            buffer_load_dwordx2 v[{csa+2}:{csa+3}], v{ga+1}, s[{sRS}:{sRS+3}], 0 offen sc1
            v_lshrrev_b32 v{ga+1}, 5, v{v_lane}
            v_mul_u32_u24 v{ga+1}, {8*640}, v{ga+1}
            v_lshl_add_u32 v{ga+1}, v{ga}, 2, v{ga+1}
            s_mul_i32 s{s_t0}, s{s_ct}, {16*640}
            """)
            for j in range(8):
                a(f"s_add_u32 s{s_t1}, s{s_t0}, {j*640}")
                a(f"buffer_load_dword v{ga+4+j}, v{ga+1}, s[{sCP}:{sCP+3}], s{s_t1} offen sc1")
            a(f"""
            v_and_b32 v{ga+2}, 31, v{v_lane}
            v_lshlrev_b32 v{ga+2}, 2, v{ga+2}
            v_lshrrev_b32 v{ga+3}, 5, v{v_lane}
            v_mul_u32_u24 v{ga+3}, {2*640}, v{ga+3}
            v_add_u32 v{ga+2}, v{ga+2}, v{ga+3}
            s_mul_i32 s{s_t1}, s{s_wave}, {4*640}
            s_add_u32 s{s_t1}, s{s_t1}, s{s_t0}
            s_add_u32 s{s_t1}, s{s_t1}, 512
            buffer_load_dword v{ga+12}, v{ga+2}, s[{sCP}:{sCP+3}], s{s_t1} offen sc1
            buffer_load_dword v{ga+13}, v{ga+2}, s[{sCP}:{sCP+3}], s{s_t1} offen offset:640 sc1
            """)
    a("s_waitcnt lgkmcnt(0)")
    gemm_loop2(a, NC1, ring, [vxa, vxa+1, vxa+2, vxa+3, vwq, vwm, vwm+1], reads, mfmas, [3, 5, 7, 9, 11], s_cnt, "P1",
               D=1, per=4, hook=hook, first_hook=lambda: stamp(a, 2), full=True, chunk_pre=chunk_pre)
    stamp(a, 3)
    a("s_waitcnt vmcnt(0)")
    for j in range(1, 8): a(f"v_add_f32 v{ga+4}, v{ga+4}, v{ga+4+j}")
    a(f"""
    v_add_f32 v{ga+12}, v{ga+12}, v{ga+13}
    v_mov_b32 v{ga+5}, v{ga+4}
    v_mov_b32 v{ga+13}, v{ga+12}
    s_nop 1
    v_permlane32_swap_b32 v{ga+4}, v{ga+5}
    v_permlane32_swap_b32 v{ga+12}, v{ga+13}
    v_add_f32 v{ga+4}, v{ga+4}, v{ga+5}
    v_add_f32 v{ga+12}, v{ga+12}, v{ga+13}
    v_lshlrev_b32 v{vt}, 2, v{ga}
    ds_write_b32 v{vt}, v{ga+4} offset:{T_CS}
    ds_write_b32 v{vt}, v{ga+12} offset:{T_CS4}
    ds_write_b32 v{vt}, v{csa+2} offset:{T_RSTD}
    ds_write_b32 v{vt}, v{csa+3} offset:{T_NMR}
    s_waitcnt lgkmcnt(0)
    """)
    a("s_barrier")
    stamp(a, 4)
    e = Alloc(fbase, fbase + 48)
    rs = e(16, 4); nm = e(16, 4); tp = e(4, 4); vcsl = e(2, 2); g2 = e(4, 4)
    t0 = vt; vh16 = vt + 2; vstq = vt + 3; vtk = vt + 4; v_rstd = vxa; v_nmr = vxa + 2
    a(f"""
    v_lshrrev_b32 v{vh16}, 5, v{v_lane}
    v_lshlrev_b32 v{vh16}, 4, v{vh16}            ; h*16
    s_lshl_b32 s{s_t0}, s{s_wave}, 7             ; 32w tokens * 4 B
    v_add_u32 v{vtk}, s{s_t0}, v{vh16}
    v_and_b32 v{t0}, 31, v{v_lane}
    v_lshlrev_b32 v{t0+1}, 2, v{t0}
    ds_read_b32 v{vcsl}, v{t0+1} offset:{T_CS + 96*4}
    ds_read_b32 v{vcsl+1}, v{t0+1} offset:{T_CS4}
    ds_read_b32 v{g2}, v{t0+1} offset:{T_CS4 + 128}
    ds_read_b32 v{g2+1}, v{t0+1} offset:{T_CS4 + 256}
    ds_read_b32 v{g2+2}, v{t0+1} offset:{T_CS4 + 384}
    """)
    for r in range(4):
        a(f"ds_read_b128 v[{rs+4*r}:{rs+4*r+3}], v{vtk} offset:{T_RSTD + 8*r*4}")
        a(f"ds_read_b128 v[{nm+4*r}:{nm+4*r+3}], v{vtk} offset:{T_NMR + 8*r*4}")
    a(f"""
    v_mul_u32_u24 v{vstq}, {PM}, v{t0}
    s_lshl_b32 s{s_t0}, s{s_wave}, 6             ; 32w tokens * 2 B
    v_add_u32 v{vstq}, s{s_t0}, v{vstq}
    v_lshrrev_b32 v{t0+1}, 1, v{vh16}
    v_add_u32 v{vstq}, v{vstq}, v{t0+1}
    s_waitcnt lgkmcnt(0)
    v_add_f32 v{vcsl+1}, v{vcsl+1}, v{g2}
    v_add_f32 v{g2+1}, v{g2+1}, v{g2+2}
    v_add_f32 v{vcsl+1}, v{vcsl+1}, v{g2+1}
    """)
    for b in range(2):
        for r in range(4):
            for p in range(2):
                x = acc[3+b] + 4*r + 2*p; g = g2 + 2*p
                a(f"v_pk_mul_f32 v[{g}:{g+1}], v[{nm+4*r+2*p}:{nm+4*r+2*p+1}], v[{vcsl}:{vcsl+1}] op_sel:[0,{b}] op_sel_hi:[1,{b}]")
                a(f"v_pk_fma_f32 v[{x}:{x+1}], v[{x}:{x+1}], v[{rs+4*r+2*p}:{rs+4*r+2*p+1}], v[{g}:{g+1}]")
            x = acc[3+b] + 4*r
            a(f"v_cvt_pk_bf16_f32 v{tp+2*(r&1)}, v{x}, v{x+1}")
            a(f"v_cvt_pk_bf16_f32 v{tp+2*(r&1)+1}, v{x+2}, v{x+3}")
            a(f"ds_write_b64 v{vstq}, v[{tp+2*(r&1)}:{tp+2*(r&1)+1}] offset:{STG_M + 32*b*PM + 8*r*2}")
    a("s_waitcnt lgkmcnt(0)")
    a("s_barrier")
    csr = rs
    v_rn = csa + 2
    a(f"""
    v_and_b32 v{t0}, 31, v{v_lane}
    s_lshl_b32 s{s_t0}, s{s_wave}, 5
    v_add_u32 v{vstq}, s{s_t0}, v{t0}
    v_mul_u32_u24 v{vstq}, {PQ}, v{vstq}
    v_lshrrev_b32 v{t0}, 1, v{vh16}
    v_add_u32 v{vstq}, v{vstq}, v{t0}
    """)
    bufs = [rs, nm]
    for r in range(4):
        a(f"ds_read_b128 v[{bufs[0]+4*r}:{bufs[0]+4*r+3}], v{vh16} offset:{T_CS + 8*r*4}")
    for b in range(3):
        cur = bufs[b & 1]
        if b < 2:
            for r in range(4):
                a(f"ds_read_b128 v[{bufs[(b+1)&1]+4*r}:{bufs[(b+1)&1]+4*r+3}], v{vh16} offset:{T_CS + (32*(b+1) + 8*r)*4}")
            a("s_waitcnt lgkmcnt(4)")
        else:
            a("s_waitcnt lgkmcnt(0)")
        for r in range(4):
            for p in range(2):
                c = cur + 4*r + 2*p; x = acc[b] + 4*r + 2*p
                a(f"v_pk_mul_f32 v[{c}:{c+1}], v[{c}:{c+1}], v[{v_rn}:{v_rn+1}] op_sel:[0,1] op_sel_hi:[1,1]")
                a(f"v_pk_fma_f32 v[{x}:{x+1}], v[{x}:{x+1}], v[{v_rn}:{v_rn+1}], v[{c}:{c+1}] op_sel_hi:[1,0,1]")
            x = acc[b] + 4*r
            a(f"v_cvt_pk_bf16_f32 v{tp+2*(r&1)}, v{x}, v{x+1}")
            a(f"v_cvt_pk_bf16_f32 v{tp+2*(r&1)+1}, v{x+2}, v{x+3}")
            a(f"ds_write_b64 v{vstq}, v[{tp+2*(r&1)}:{tp+2*(r&1)+1}] offset:{STG_Q + (32*b + 8*r)*2}")
    a("s_waitcnt lgkmcnt(0)")
    stamp(a, 5)
    a("s_barrier")
    a("s_branch P1_STORE")

    def cs_final(l_cs, ng, lt, col_sgpr_list):
        for g in range(ng):
            a(f"""
            v_mov_b32 v{lt+4}, v{l_cs+g}
            s_nop 1
            v_permlane16_swap_b32 v{l_cs+g}, v{lt+4}
            v_add_f32 v{l_cs+g}, v{l_cs+g}, v{lt+4}
            v_mov_b32 v{lt+4}, v{l_cs+g}
            s_nop 1
            v_permlane32_swap_b32 v{l_cs+g}, v{lt+4}
            v_add_f32 v{l_cs+g}, v{l_cs+g}, v{lt+4}
            """)
    def grp_lane(lt):
        a(f"""
        v_lshrrev_b32 v{lt}, 4, v{v_lane}
        v_lshlrev_b32 v{lt}, 2, v{lt}
        v_bfe_u32 v{lt+1}, v{v_lane}, 2, 2
        v_add_u32 v{lt}, v{lt}, v{lt+1}
        v_and_b32 v{lt+1}, 3, v{v_lane}
        v_lshlrev_b32 v{lt+1}, 3, v{lt+1}
        """)

    a.label("P1_LOADER")
    vx, vq, vm = 3, 4, 7
    vt = 8
    a(f"s_sub_u32 s{s_wave}, s{s_wave}, 4")
    r_loader_voff(a, vx, vt, v_lane, s_wave, s_t0, 1024)
    a(f"""
    s_lshl_b32 s{s_bx}, s{s_rt}, 17              ; rt*128*1024
    s_lshl_b32 s{s_t0}, s{s_wave}, 13            ; 8 rows * 1024 * w
    s_add_u32 s{s_bx}, s{s_bx}, s{s_t0}
    s_lshl_b32 s{s_lx}, s{s_wave}, 10
    """)
    t64_loader_voff(a, vm, vt, v_lane, 2048)
    for jj in range(3):
        a(f"""
        v_add_u32 v{vt}, {64*jj}, v{v_lane}
        v_mul_u32_u24 v{vt+1}, 43691, v{vt}
        v_lshrrev_b32 v{vt+1}, 19, v{vt+1}          ; row = f/12
        v_mul_u32_u24 v{vt+2}, 12, v{vt+1}
        v_sub_u32 v{vt+2}, v{vt}, v{vt+2}           ; slot
        v_lshlrev_b32 v{vt+2}, 4, v{vt+2}
        v_mul_u32_u24 v{vt+1}, 3072, v{vt+1}
        v_add_u32 v{vq+jj}, v{vt+1}, v{vt+2}
        """)
    a(f"""
    s_mul_i32 s{s_bq}, s{s_wave}, {16*3072}
    s_mul_i32 s{s_t0}, s{s_ct}, 192
    s_add_u32 s{s_bq}, s{s_bq}, s{s_t0}
    s_mul_i32 s{s_bm}, s{s_wave}, {16*2048}
    s_lshl_b32 s{s_t0}, s{s_ct}, 7
    s_add_u32 s{s_bm}, s{s_bm}, s{s_t0}
    s_mul_i32 s{s_lq}, s{s_wave}, 3072
    s_add_u32 s{s_lq}, s{s_lq}, {WQ_OFF}
    s_lshl_b32 s{s_lm}, s{s_wave}, 11
    s_add_u32 s{s_lm}, s{s_lm}, {WM_OFF}
    s_waitcnt lgkmcnt(0)
    """)
    srd(a, sX, 4, 5, 2000 * 1024)
    srd(a, sWQ, 6, 7, 512 * 3072)
    srd(a, sWM, 32, 33, 512 * 2048)
    streams = [
        Stream(sX, [vx]*4, [i*32*1024 for i in range(4)], [X_OFF + i*4096 for i in range(4)], s_bx, 128, s_lx),
        Stream(sWQ, [vq, vq+1, vq+2], [0, 0, 0], [0, 1024, 2048], s_bq, 64*3072, s_lq),
        Stream(sWM, [vm, vm], [0, 8*2048], [0, 1024], s_bm, 64*2048, s_lm),
    ]
    def hook():
        pers_init2(a)
        out_srds()
    stamp(a, 2)
    loader_loop(a, streams, NC1, S1, STAGE, s_kc, s_slot, s_cnt, s_t0, s_t1, s_t2, lds_base=RING, hook=hook,
                ahead=(3 if 'ah3' in abl else 2))
    stamp(a, 3)

    if "nopf" not in abl:
        a(f"""
        s_load_dwordx2 s[8:9], s[0:1], {KA['w_att_out']}
        s_load_dwordx2 s[12:13], s[0:1], {KA['w_mlp_out']}
        s_load_dwordx2 s[16:17], s[0:1], {KA['w_merge']}
        v_and_b32 v3, 15, v{v_lane}
        s_lshl_b32 s{s_t0}, s2, 4
        v_add_u32 v3, s{s_t0}, v3
        v_lshlrev_b32 v3, 7, v3                      ; line*128
        s_waitcnt lgkmcnt(0)
        s_mov_b32 s10, {512*1024}
        s_mov_b32 s11, 0x20000
        s_mov_b32 s14, {512*1024}
        s_mov_b32 s15, 0x20000
        s_mov_b32 s18, {1024*1024}
        s_mov_b32 s19, 0x20000
        v_cmp_gt_u32 vcc, 16, v{v_lane}
        s_and_saveexec_b64 s[54:55], vcc
        s_cmp_eq_u32 s58, 4
        s_cbranch_scc0 P1_pf9
        buffer_load_dword v127, v3, s[8:11], 0 offen
        s_branch P1_pfd
        P1_pf9:
        s_cmp_eq_u32 s58, 5
        s_cbranch_scc0 P1_pf10
        buffer_load_dword v127, v3, s[12:15], 0 offen
        s_branch P1_pfd
        P1_pf10:
        s_sub_u32 s{s_t1}, s58, 6
        s_lshl_b32 s{s_t1}, s{s_t1}, 19
        buffer_load_dword v127, v3, s[16:19], s{s_t1} offen
        P1_pfd:
        s_mov_b64 exec, s[54:55]
        """)
    a.label("P1_HELP_EPI")
    a("s_barrier")
    a("s_barrier")
    H = 8
    a(f"""
    v_subrev_u32 v3, 256, v0                      ; htid (0..255)
    v_lshrrev_b32 v4, 4, v3                       ; row 0..15
    v_and_b32 v5, 15, v3                          ; slot
    v_lshlrev_b32 v5, 4, v5
    v_mul_u32_u24 v6, {PM}, v4
    v_add_u32 v6, v6, v5
    """)
    for j in range(4):
        a(f"ds_read_b128 v[{H+4*j}:{H+4*j+3}], v6 offset:{STG_M + 16*j*PM}")
    a(f"""
    v_lshl_add_u32 v7, v4, 12, v5
    s_lshl_b32 s{s_t2}, s{s_ct}, 18               ; 64 rows * 4096
    s_lshl_b32 s{s_t0}, s{s_rt}, 8                ; 128 tokens * 2 B
    s_add_u32 s{s_t2}, s{s_t2}, s{s_t0}
    """)
    X = 24
    G = 56
    cA, cB = 88, 89
    a(f"""
    v_mov_b32 v{cA}, {hex(f2u(kA))}
    v_mov_b32 v{cB}, {hex(f2u(kB))}
    """)
    for half in range(2):
        a(f"s_waitcnt lgkmcnt({2 if half == 0 else 0})")
        x0 = X + 16*half; g0 = G + 16*half; h0 = H + 8*half
        for i in range(8):
            a(f"v_lshlrev_b32 v{x0+2*i}, 16, v{h0+i}")
            a(f"v_and_b32 v{x0+2*i+1}, 0xffff0000, v{h0+i}")
        for i in range(16): a(f"v_mul_f32 v{g0+i}, v{x0+i}, v{x0+i}")
        for i in range(16): a(f"v_fma_f32 v{g0+i}, v{g0+i}, v{cB}, v{cA}")
        for i in range(16): a(f"v_mul_f32 v{g0+i}, v{g0+i}, v{x0+i}")
        for i in range(16): a(f"v_exp_f32 v{g0+i}, v{g0+i}")
        for i in range(16): a(f"v_add_f32 v{g0+i}, 1.0, v{g0+i}")
        for i in range(16): a(f"v_rcp_f32 v{g0+i}, v{g0+i}")
        for i in range(16): a(f"v_mul_f32 v{x0+i}, v{x0+i}, v{g0+i}")
        for i in range(8): a(f"v_cvt_pk_bf16_f32 v{h0+i}, v{x0+2*i}, v{x0+2*i+1}")
        for j in range(2):
            jj = 2*half + j
            a(f"s_add_u32 s{s_t1}, s{s_t2}, {16*jj*4096}")
            a(f"buffer_store_dwordx4 v[{H+4*jj}:{H+4*jj+3}], v7, s[{sUG}:{sUG+3}], s{s_t1} offen {SC}")
    a(f"s_cmp_lt_u32 s{s_ct}, 8")
    a("s_cbranch_scc1 P1_nostat")
    for i in range(8):
        a(f"v_mul_f32 v{G+i}, v{X+i}, v{X+i}")
        for j in range(1, 4):
            a(f"v_fma_f32 v{G+i}, v{X+8*j+i}, v{X+8*j+i}, v{G+i}")
        a(f"v_add_f32 v{X+i}, v{X+i}, v{X+8+i}")
        a(f"v_add_f32 v{X+16+i}, v{X+16+i}, v{X+24+i}")
    for i in range(8): a(f"v_add_f32 v{X+i}, v{X+i}, v{X+16+i}")
    for i in range(8): a(f"v_permlane16_swap_b32 v{X+i}, v{G+i}")
    for i in range(8): a(f"v_add_f32 v{X+i}, v{X+i}, v{G+i}")
    for i in range(4): a(f"v_permlane32_swap_b32 v{X+i}, v{X+4+i}")
    for i in range(4): a(f"v_add_f32 v{X+i}, v{X+i}, v{X+4+i}")
    a(f"""
    v_lshlrev_b32 v4, 4, v3                       ; htid*16
    ds_write_b128 v4, v[{X}:{X+3}] offset:{STG_P}
    """)
    a.label("P1_nostat")
    a("s_waitcnt lgkmcnt(0)")
    stamp(a, 5)
    a("s_barrier")

    a.label("P1_STORE")
    d = 8
    a(f"s_mul_i32 s{s_t1}, s{s_rt}, {128*3072}")
    a(f"s_mul_i32 s{s_t2}, s{s_ct}, 192")
    a(f"s_add_u32 s{s_t1}, s{s_t1}, s{s_t2}")
    for i in range(3):
        a(f"""
        v_add_u32 v3, {512*i}, v0
        v_mul_u32_u24 v4, 43691, v3
        v_lshrrev_b32 v4, 19, v4              ; row
        v_mul_u32_u24 v5, 12, v4
        v_sub_u32 v5, v3, v5                  ; slot
        v_lshlrev_b32 v5, 4, v5
        v_mul_u32_u24 v6, {PQ}, v4
        v_add_u32 v6, v6, v5
        ds_read_b128 v[{d+4*i}:{d+4*i+3}], v6 offset:{STG_Q}
        v_mul_u32_u24 v4, 3072, v4
        v_add_u32 v{40+i}, v4, v5
        """)
    a(f"s_cmp_lg_u32 s58, 7")
    a("s_cbranch_scc1 P1_nofin")
    a(f"s_cmp_lt_u32 s{s_ct}, 8")
    a("s_cbranch_scc1 P1_nofin")
    a(f"v_lshlrev_b32 v4, 4, v{v_lane}")
    for w in range(4):
        a(f"ds_read_b128 v[{48+4*w}:{48+4*w+3}], v4 offset:{STG_P + w*1024}")
    a(f"""
    v_and_b32 v5, 15, v{v_lane}
    v_lshlrev_b32 v5, 3, v5                      ; 8*slot
    v_lshrrev_b32 v6, 5, v{v_lane}
    v_lshl_add_u32 v5, v6, 2, v5                  ; + 4*half
    s_lshl_b32 s{s_t0}, s{s_rt}, 7
    v_add_u32 v5, s{s_t0}, v5
    v_lshlrev_b32 v5, 2, v5
    v_bfe_u32 v6, v{v_lane}, 4, 1
    v_lshl_add_u32 v5, v6, 13, v5                 ; stat * 2048*4
    s_sub_u32 s{s_t0}, s{s_ct}, 8
    s_lshl_b32 s{s_t0}, s{s_t0}, 14
    s_waitcnt lgkmcnt(0)
    """)
    for w in range(1, 4):
        for i in range(4): a(f"v_add_f32 v{48+i}, v{48+i}, v{48+4*w+i}")
    a(f"buffer_store_dwordx4 v[48:51], v5, s[{sGS}:{sGS+3}], s{s_t0} offen {SC}")
    a.label("P1_nofin")
    a("s_waitcnt lgkmcnt(0)")
    for i in range(3):
        a(f"buffer_store_dwordx4 v[{d+4*i}:{d+4*i+3}], v{40+i}, s[{sQKV}:{sQKV+3}], s{s_t1} offen {SC}")
    if STAMPS_ON():
        a("s_waitcnt vmcnt(0)")
    stamp(a, 6)
    stamp_flush(a, 58)
    a.label(END)
    if common.PERS:
        pers_init3(a)
        grid_arrive(a, 0)
    else: a("s_endpgm")
    return a.text(), dict(name=name, vgpr=max(V.hi, 96), sgpr=100, lds=LDS1, grid=256, block=512)
```

```python
from common import *
import common, struct
from p2 import conv_T_addr, conv_T_reads, WP_CH
from p3 import prologue
def STAMPS_ON(): return common.STAMPS


def tap_loads(a, sD, s_c0bytes, nch, vt, vdat, nthreads):
    sh = nch.bit_length() - 1
    per = nthreads // nch
    rounds = (31 + per - 1) // per
    for j in range(rounds):
        a(f"""
        v_lshrrev_b32 v{vt}, {sh}, v0
        v_add_u32 v{vt}, {per*j}, v{vt}              ; tap
        v_and_b32 v{vt+1}, {nch-1}, v0                ; channel
        v_lshlrev_b32 v{vt+2}, 11, v{vt}              ; tap*2048
        v_lshl_add_u32 v{vt+2}, v{vt+1}, 1, v{vt+2}
        v_cmp_gt_u32 vcc, 31, v{vt}
        v_cndmask_b32 v{vt+2}, -1, v{vt+2}, vcc
        buffer_load_ushort v{vdat+j}, v{vt+2}, s[{sD}:{sD+3}], s{s_c0bytes} offen
        """)
    return rounds

def tap_writes(a, nch, wp_base, vt, vdat, rounds, nthreads):
    sh = nch.bit_length() - 1
    per = nthreads // nch
    a(f"""
    v_and_b32 v{vt+1}, {nch-1}, v0
    v_mul_u32_u24 v{vt+1}, {WP_CH}, v{vt+1}
    v_lshrrev_b32 v{vt}, {sh}, v0
    v_lshl_add_u32 v{vt+1}, v{vt}, 1, v{vt+1}
    """)
    for j in range(rounds):
        last = (per * (j + 1) > 31)
        if last:
            a(f"""
            v_add_u32 v{vt+2}, {per*j}, v{vt}
            v_cmp_gt_u32 vcc, 31, v{vt+2}
            s_and_saveexec_b64 s[54:55], vcc
            """)
        a(f"ds_write_b16 v{vt+1}, v{vdat+j} offset:{wp_base + 32 + 2*per*j}")
        a(f"ds_write_b16 v{vt+1}, v{vdat+j} offset:{wp_base + 192 + 30 + 2*per*j}")
        if last: a("s_mov_b64 exec, s[54:55]")

def zero_fill(a, base, nbytes, vt, nthreads):
    a(f"""
    v_mov_b32 v{vt}, 0
    v_mov_b32 v{vt+1}, 0
    v_mov_b32 v{vt+2}, 0
    v_mov_b32 v{vt+3}, 0
    """)
    ngran = (nbytes + 15) // 16
    for j in range((ngran + nthreads - 1) // nthreads):
        a(f"""
        v_add_u32 v{vt+5}, {nthreads*j}, v0
        v_lshlrev_b32 v{vt+4}, 4, v{vt+5}
        """)
        if nthreads * (j + 1) > ngran:
            a(f"""
            v_cmp_gt_u32 vcc, {ngran}, v{vt+5}
            s_and_saveexec_b64 s[54:55], vcc
            ds_write_b128 v{vt+4}, v[{vt}:{vt+3}] offset:{base}
            s_mov_b64 exec, s[54:55]
            """)
        else:
            a(f"ds_write_b128 v{vt+4}, v[{vt}:{vt+3}] offset:{base}")

def conv_stage(a, s_w8, nch_per_wave, nblk, raw_base, raw_pitch, wp_base, sO, s_orow, s_tvalid, s_t0, s_t1, v_lane):
    vT, vB, vC, vS, vT2, vB2 = 8, 9, 10, 11, 6, 7
    conv_T_addr(a, vT, 12, v_lane, wp_base)
    a(f"""
    s_mul_i32 s{s_t0}, s{s_w8}, {nch_per_wave*WP_CH}
    v_add_u32 v{vT}, s{s_t0}, v{vT}
    v_lshrrev_b32 v13, 4, v{v_lane}                 ; g
    v_lshlrev_b32 v12, 3, v13                       ; 4g*2 bytes
    v_sub_u32 v{vT2}, v{vT}, v12                     ; 8g -> 4g elements
    v_and_b32 v12, 15, v{v_lane}
    v_min_u32 v14, {nblk-1}, v12
    v_lshlrev_b32 v14, 5, v14                       ; 16*b*2 (clamped)
    v_lshl_add_u32 v{vB}, v13, 4, v14                ; + 8g*2
    s_mul_i32 s{s_t0}, s{s_w8}, {nch_per_wave*raw_pitch}
    s_add_u32 s{s_t0}, s{s_t0}, {raw_base}
    v_add_u32 v{vB}, s{s_t0}, v{vB}
    v_lshl_add_u32 v{vC}, v13, 3, v14                ; (16b + 4g)*2
    v_add_u32 v{vC}, s{s_t0}, v{vC}
    v_lshlrev_b32 v15, 4, v12
    v_lshl_add_u32 v15, v13, 2, v15                  ; 16b + 4g (unclamped)
    v_cmp_gt_u32 vcc, s{s_tvalid}, v15
    v_lshlrev_b32 v15, 1, v15
    v_cndmask_b32 v{vS}, -1, v15, vcc
    s_mul_i32 s{s_t0}, s{s_w8}, {nch_per_wave*4096}
    s_add_u32 s{s_t0}, s{s_t0}, s{s_orow}
    """)
    NG = nch_per_wave // 2
    def regs(slot, c): return 16 + 32*slot + 16*c
    D = 80; VTX = 96
    def issue(g):
        slot = g & 1
        tb0 = VTX + 2*slot; tb1 = tb0 + 1
        a(f"v_add_u32 v{tb0}, {(2*g)*WP_CH}, v{vT}")
        a(f"v_add_u32 v{tb1}, {(2*g)*WP_CH}, v{vT2}")
        for c in range(2):
            ch = 2*g + c; r = regs(slot, c); o = c * (WP_CH // 4)
            a(f"ds_read2_b32 v[{r}:{r+1}], v{tb0} offset0:{o} offset1:{o+1}")
            a(f"ds_read2_b32 v[{r+2}:{r+3}], v{tb0} offset0:{o+2} offset1:{o+3}")
            a(f"ds_read_b128 v[{r+4}:{r+7}], v{vB} offset:{ch*raw_pitch}")
            a(f"ds_read2_b32 v[{r+8}:{r+9}], v{tb1} offset0:{o+16} offset1:{o+17}")
            a(f"ds_read_b64 v[{r+10}:{r+11}], v{vC} offset:{ch*raw_pitch + 64}")
            a(f"ds_read_b64 v[{r+12}:{r+13}], v{vC} offset:{ch*raw_pitch + 32}")
    def process(g, more):
        slot = g & 1
        for c in range(2):
            r = regs(slot, c); d = D + 8*slot + 4*c
            a(f"s_waitcnt lgkmcnt({min(15, (6 if c == 0 else 0) + (12 if more else 0))})")
            a(f"""
            v_lshlrev_b32 v{d}, 16, v{r+12}
            v_and_b32 v{d+1}, 0xffff0000, v{r+12}
            v_lshlrev_b32 v{d+2}, 16, v{r+13}
            v_and_b32 v{d+3}, 0xffff0000, v{r+13}
            """)
            a(f"v_mfma_f32_16x16x32_bf16 v[{d}:{d+3}], v[{r}:{r+3}], v[{r+4}:{r+7}], v[{d}:{d+3}]")
        if g > 0: finish(g - 1)
        for c in range(2):
            r = regs(slot, c); d = D + 8*slot + 4*c
            a(f"v_mfma_f32_16x16x16_bf16 v[{d}:{d+3}], v[{r+8}:{r+9}], v[{r+10}:{r+11}], v[{d}:{d+3}]")
    def finish(g):
        slot = g & 1
        for c in range(2):
            ch = 2*g + c; d = D + 8*slot + 4*c; o = 100 + 4*slot + 2*c
            a(f"v_cvt_pk_bf16_f32 v{o}, v{d}, v{d+1}")
            a(f"v_cvt_pk_bf16_f32 v{o+1}, v{d+2}, v{d+3}")
            a(f"s_add_u32 s{s_t1}, s{s_t0}, {ch*4096}")
            a(f"buffer_store_dwordx2 v[{o}:{o+1}], v{vS}, s[{sO}:{sO+3}], s{s_t1} offen {common.SCF}")
    issue(0)
    for g in range(NG):
        more = g + 1 < NG
        if more:
            a("s_waitcnt lgkmcnt(3)")
            issue(g + 1)
        process(g, more)
    finish(NG - 1)

def gen_p3f(name="p3_kernel", abl=()):
    SC = common.SCF
    a = Asm('p3_')
    END = "P3_END"
    sA, sB, sO, sS, sD = 8, 12, 16, 20, 28
    s_wave, s_i0, s_i1, s_kc, s_slot, s_cnt, s_t0, s_t1, s_t2 = 36, 37, 38, 39, 40, 41, 42, 43, 44
    s_b0, s_b1, s_l0, s_l1 = 45, 46, 48, 49
    s_b, s_delta, s_neg, s_pos, s_rs = 51, 52, 56, 57, 53
    s_xcd, s_idx = 47, 50
    s_kt, s_ob, s_tv, s_c0b = 24, 25, 26, 27
    v_lane = 2
    prologue(a, END, [(4, 'ws'), (6, 'w_mlp_out'), (32, 'dw_merge')], s_wave, s_xcd, s_idx, 2)
    a(f"s_cmp_ge_u32 s{s_idx}, 30")
    a(f"s_cbranch_scc1 {END}")
    stamp_init(a, 4, 5, 2)
    srd(a, sO, 4, 5, 1024 * 4096, WS_MPT)
    srd(a, sD, 32, 33, 31 * 2048)
    a(f"s_lshr_b32 s{s_b}, s{s_xcd}, 2")
    a(f"s_cmp_ge_u32 s{s_idx}, 22")
    a("s_cbranch_scc1 P3_LOC")
    RING = 4096
    A_OFF, B_OFF, STAGE, S, NC = 0, 16384, 24576, 5, 16
    RAW, RP = 0, 272
    WPB = 64 * RP + 2 * RP
    a(f"""
    s_and_b32 s{s_t0}, s{s_xcd}, 3
    s_mul_i32 s{s_t0}, s{s_t0}, 22
    s_add_u32 s{s_t0}, s{s_t0}, s{s_idx}           ; j
    s_lshr_b32 s{s_i0}, s{s_t0}, 3                 ; tt
    s_and_b32 s{s_i1}, s{s_t0}, 7                  ; ct
    s_mov_b32 s{s_kt}, s{s_i1}
    """)
    if "norot" in abl: a(f"s_mov_b32 s{s_kt}, 0")
    a(f"""
    s_lshl_b32 s{s_kc}, s{s_kt}, 1
    s_lshl_b32 s{s_t0}, s{s_b}, 21
    s_add_u32 s{s_t0}, s{s_t0}, {WS_PT - 16*2048}
    s_add_u32 s{sA}, s4, s{s_t0}
    s_addc_u32 s{sA+1}, s5, 0
    s_mov_b32 s{sA+2}, {1016*2048}
    s_mov_b32 s{sA+3}, 0x20000
    s_mul_i32 s{s_t0}, s{s_b}, {1000*1024}
    s_add_u32 s{s_t0}, s{s_t0}, {WS_VP}
    s_add_u32 s{sB}, s4, s{s_t0}
    s_addc_u32 s{sB+1}, s5, 0
    s_mov_b32 s{sB+2}, {1000*1024}
    s_mov_b32 s{sB+3}, 0x20000
    s_mul_i32 s{s_t1}, s{s_i0}, 96
    s_lshl_b32 s{s_ob}, s{s_i1}, 18
    s_mul_i32 s{s_t0}, s{s_b}, 1000
    s_add_u32 s{s_t0}, s{s_t0}, s{s_t1}
    s_lshl_b32 s{s_t0}, s{s_t0}, 1
    s_add_u32 s{s_ob}, s{s_ob}, s{s_t0}
    s_sub_u32 s{s_tv}, 1000, s{s_t1}
    s_min_u32 s{s_tv}, s{s_tv}, 96
    s_lshl_b32 s{s_c0b}, s{s_i1}, 7
    """)
    srd(a, sS, 4, 5, 2*8*2*1024*4, WS_SST)
    a(f"s_cmp_ge_u32 s{s_wave}, 4")
    a("s_cbranch_scc1 P3_PV_LOADER")
    V = Alloc(3, 256)
    va = V(4); vb = V(2); vt = V(8, 2)
    fa = [V(4, 4) for _ in range(4)]
    fb = [[V(4, 4) for _ in range(2)] for _ in range(4)]
    tmp = [[V(16, 4) for _ in range(2)] for _ in range(2)]
    acc = [V(16, 4) for _ in range(2)]
    sc = V(16, 4)
    vsc = V(1); tp = V(4, 4); vst = V(1)
    r_frag_addrs(a, va, vt, v_lane, s_wave, s_t0, RING + A_OFF)
    t64_frag_addrs(a, vb, vt, v_lane, RING + B_OFF)
    for b in range(2):
        for i in range(16): a(f"v_mov_b32 v{acc[b]+i}, 0")
    grid_wait(a, 1, tmp[1][0], v_lane)
    a(f"s_cmp_ge_u32 s{s_wave}, 2")
    a("s_cbranch_scc1 P3_noscale")
    M = tmp[0][0]; Ls = tmp[0][1]
    a(f"""
    s_mul_i32 s{s_t0}, s{s_i0}, 96
    v_add_u32 v{vt}, s{s_t0}, v0
    v_subrev_u32 v{vt}, 16, v{vt}                   ; t
    v_cmp_gt_u32 vcc, 1000, v{vt}
    s_mov_b64 s[98:99], vcc
    v_lshlrev_b32 v{vt}, 2, v{vt}
    v_cndmask_b32 v{vt}, -1, v{vt}, vcc
    s_lshl_b32 s{s_t1}, s{s_b}, 16                 ; b*8*2*1024*4
    """)
    for k in range(8):
        a(f"s_add_u32 s{s_t2}, s{s_t1}, {k*8192}")
        a(f"buffer_load_dword v{M+k}, v{vt}, s[{sS}:{sS+3}], s{s_t2} offen {SC}")
        a(f"s_add_u32 s{s_t2}, s{s_t1}, {k*8192 + 4096}")
        a(f"buffer_load_dword v{Ls+k}, v{vt}, s[{sS}:{sS+3}], s{s_t2} offen {SC}")
    a("s_waitcnt vmcnt(0)")
    a(f"v_max3_f32 v{vt+1}, v{M}, v{M+1}, v{M+2}")
    a(f"v_max3_f32 v{vt+1}, v{M+3}, v{M+4}, v{vt+1}")
    a(f"v_max3_f32 v{vt+1}, v{M+5}, v{M+6}, v{vt+1}")
    a(f"v_max_f32 v{vt+1}, v{M+7}, v{vt+1}")
    for k in range(8): a(f"v_sub_f32 v{M+k}, v{M+k}, v{vt+1}")
    for k in range(8): a(f"v_exp_f32 v{M+k}, v{M+k}")
    a(f"v_mul_f32 v{vt+2}, v{M}, v{Ls}")
    for k in range(1, 8): a(f"v_fma_f32 v{vt+2}, v{M+k}, v{Ls+k}, v{vt+2}")
    a(f"v_rcp_f32 v{vt+2}, v{vt+2}")
    a(f"v_lshlrev_b32 v{vt+3}, 2, v0")
    a(f"v_cndmask_b32 v{vt+2}, 0, v{vt+2}, s[98:99]")
    for k in range(8):
        a(f"v_mul_f32 v{M+k}, v{M+k}, v{vt+2}")
        a(f"ds_write_b32 v{vt+3}, v{M+k} offset:{k*512}")
    a("s_waitcnt lgkmcnt(0)")
    a.label("P3_noscale")
    ring = Ring(a, S, STAGE, s_rs, s_delta, s_neg, s_pos); ring.init()
    a(f"""
    v_lshrrev_b32 v{vsc}, 5, v{v_lane}
    v_lshlrev_b32 v{vsc}, 4, v{vsc}
    s_lshl_b32 s{s_t0}, s{s_wave}, 7
    v_add_u32 v{vsc}, s{s_t0}, v{vsc}
    """)
    def reads(step, st):
        r = [f"ds_read_b128 v[{fa[st]}:{fa[st]+3}], v{va+step}"]
        for b in range(2): r += tr2(fb[st][b], vb + b, 16*step*128, 128)
        return r
    regs = [va+i for i in range(4)] + [vb, vb+1]
    def mfmas(st, s, ci):
        par = (ci >> 1) & 1
        out = []
        for b in range(2):
            c = "0" if ((ci & 1) == 0 and s == 0) else f"v[{tmp[par][b]}:{tmp[par][b]+15}]"
            out.append(f"v_mfma_f32_32x32x16_bf16 v[{tmp[par][b]}:{tmp[par][b]+15}], v[{fa[st]}:{fa[st]+3}], v[{fb[st][b]}:{fb[st][b]+3}], {c}")
        return out
    def fold(par):
        return [f"v_fma_f32 v{acc[b]+i}, v{tmp[par][b]+i}, v{sc+i}, v{acc[b]+i}" for b in range(2) for i in range(16)]
    def hook(ci, s, last):
        par = (ci >> 1) & 1
        ex = {}
        if (ci & 1) == 0:
            lo, hi = {0: (0, 0), 1: (0, 11), 2: (11, 22), 3: (22, 32)}[s]
            f = fold(par ^ 1)[lo:hi]
            ex = {0: f[:len(f)//2], 1: f[len(f)//2:]}
        elif s == 0:
            ex = {1: [f"s_lshl_b32 s{s_t0}, s{s_kt}, 9", f"v_add_u32 v{vt}, s{s_t0}, v{vsc}"] +
                     [f"ds_read_b128 v[{sc+4*r}:{sc+4*r+3}], v{vt} offset:{32*r}" for r in range(4)] +
                     [f"s_add_u32 s{s_kt}, s{s_kt}, 1", f"s_and_b32 s{s_kt}, s{s_kt}, 7"]}
        return ex
    for b in range(2):
        for i in range(16): a(f"v_mov_b32 v{tmp[1][b]+i}, 0")
    for i in range(16): a(f"v_mov_b32 v{sc+i}, 0")
    gemm_loop2(a, NC, ring, regs, reads, mfmas, [3, 5], s_cnt, "PV", D=2, per=3, hook=hook, unroll=4,
               first_hook=lambda: stamp(a, 2))
    a("s_waitcnt lgkmcnt(0)")
    for x in fold(1): a(x)
    stamp(a, 3)
    a(f"""
    v_and_b32 v{vt}, 31, v{v_lane}
    v_mul_u32_u24 v{vst}, {RP}, v{vt}
    s_lshl_b32 s{s_t0}, s{s_wave}, 6
    v_add_u32 v{vst}, s{s_t0}, v{vst}
    v_lshrrev_b32 v{vt+1}, 5, v{v_lane}
    v_lshl_add_u32 v{vst}, v{vt+1}, 3, v{vst}
    s_barrier
    """)
    for b in range(2):
        for r in range(4):
            x = acc[b] + 4*r
            a(f"v_cvt_pk_bf16_f32 v{tp+2*(r&1)}, v{x}, v{x+1}")
            a(f"v_cvt_pk_bf16_f32 v{tp+2*(r&1)+1}, v{x+2}, v{x+3}")
            a(f"ds_write_b64 v{vst}, v[{tp+2*(r&1)}:{tp+2*(r&1)+1}] offset:{RAW + 32*b*RP + 8*r*2}")
    a("s_waitcnt lgkmcnt(0)")
    a("s_barrier")
    stamp(a, 5)
    a("s_barrier")
    a("s_branch P3_PV_CONV")
    a.label("P3_PV_LOADER")
    vo, vo1, vo2, vt_l = 3, 5, 4, 8
    a(f"s_sub_u32 s{s_wave}, s{s_wave}, 4")
    r_loader_voff(a, vo, vt_l, v_lane, s_wave, s_t0, 2048)
    t64_loader_voff(a, vo2, vt_l, v_lane, 1024)
    a(f"""
    v_mov_b32 v{vo1}, v{vo}
    s_cmp_lg_u32 s{s_i0}, 0
    s_cbranch_scc1 P3_pv_v
    s_cmp_ge_u32 s{s_wave}, 2
    s_cbranch_scc1 P3_pv_v
    v_mov_b32 v{vo1}, 0x7ff00000
    P3_pv_v:
    s_mul_i32 s{s_b0}, s{s_i0}, 96
    s_lshl_b32 s{s_t0}, s{s_wave}, 3
    s_add_u32 s{s_b0}, s{s_b0}, s{s_t0}
    s_lshl_b32 s{s_b0}, s{s_b0}, 11
    s_lshl_b32 s{s_b1}, s{s_wave}, 14
    s_lshl_b32 s{s_t0}, s{s_i1}, 7
    s_add_u32 s{s_b1}, s{s_b1}, s{s_t0}
    s_lshl_b32 s{s_l0}, s{s_wave}, 10
    s_lshl_b32 s{s_l1}, s{s_wave}, 11
    s_add_u32 s{s_l1}, s{s_l1}, {B_OFF}
    """)
    streams = [
        Stream(sA, [vo1, vo, vo, vo], [i*32*2048 for i in range(4)], [A_OFF + i*4096 for i in range(4)], s_b0, 128, s_l0, dep=True),
        Stream(sB, [vo2]*2, [0, 8*1024], [0, 1024], s_b1, 64*1024, s_l1, dep=True),
    ]
    grid_wait(a, 1, 16, v_lane)
    stamp(a, 2)
    loader_loop(a, streams, NC, S, STAGE, s_kc, s_slot, s_cnt, s_t0, s_t1, s_t2, lds_base=RING, ahead=3)
    stamp(a, 3)
    def helper_zero(pitch, nrows, rowbytes, wpb, nch):
        a("v_subrev_u32 v0, 256, v0")
        TP = 24
        rounds = tap_loads(a, sD, s_c0b, nch, 16, TP, 256)
        a("s_barrier")
        zero_fill(a, wpb, nch * WP_CH, 8, 256)
        a(f"""
        v_mul_u32_u24 v12, {pitch}, v0
        v_cmp_gt_u32 vcc, {nrows}, v0
        s_and_saveexec_b64 s[54:55], vcc
        ds_write_b128 v12, v[8:11] offset:{rowbytes}
        s_mov_b64 exec, s[54:55]
        v_lshlrev_b32 v12, 4, v0
        v_cmp_gt_u32 vcc, {2*pitch//16}, v0
        s_and_saveexec_b64 s[54:55], vcc
        ds_write_b128 v12, v[8:11] offset:{nrows*pitch}
        s_mov_b64 exec, s[54:55]
        s_waitcnt vmcnt(0) lgkmcnt(0)
        s_barrier
        """)
        tap_writes(a, nch, wpb, 16, TP, rounds, 256)
        a(f"""
        v_add_u32 v0, 256, v0
        s_waitcnt lgkmcnt(0)
        s_barrier
        """)
    helper_zero(RP, 64, 256, WPB, 64)
    a.label("P3_PV_CONV")
    conv_stage(a, 58, 8, 6, RAW, RP, WPB, sO, s_ob, s_tv, s_t0, s_t1, v_lane)
    a("s_branch P3_FIN")

    a.label("P3_LOC")
    A_OFF, B_OFF, STAGE, S, NC = 0, 20480, 36864, 4, 8
    RP2 = 336
    WPB2 = 128 * RP2 + 2 * RP2
    a(f"""
    s_sub_u32 s{s_idx}, s{s_idx}, 22
    s_and_b32 s{s_t0}, s{s_xcd}, 3
    s_lshl_b32 s{s_i0}, s{s_t0}, 1
    s_lshr_b32 s{s_t0}, s{s_idx}, 2
    s_add_u32 s{s_i0}, s{s_i0}, s{s_t0}            ; tt
    s_and_b32 s{s_i1}, s{s_idx}, 3
    s_mov_b32 s{s_kc}, s{s_idx}
    """)
    if "norot" in abl: a(f"s_mov_b32 s{s_kc}, 0")
    a(f"""
    s_lshl_b32 s{s_t1}, s{s_i0}, 7                 ; t_o = 128 tt
    s_add_u32 s{s_ob}, s{s_i1}, 4
    s_lshl_b32 s{s_ob}, s{s_ob}, 19
    s_mul_i32 s{s_t0}, s{s_b}, 1000
    s_add_u32 s{s_t0}, s{s_t0}, s{s_t1}
    s_lshl_b32 s{s_t0}, s{s_t0}, 1
    s_mov_b32 s{s_kt}, s{s_t0}                     ; flat t_o * 2
    s_add_u32 s{s_ob}, s{s_ob}, s{s_t0}
    s_sub_u32 s{s_tv}, 1000, s{s_t1}
    s_min_u32 s{s_tv}, s{s_tv}, 128
    s_lshl_b32 s{s_c0b}, s{s_i1}, 8
    s_add_u32 s{s_c0b}, s{s_c0b}, 1024             ; (512 + 128nt)*2
    """)
    srd(a, sA, 4, 5, 512 * 4096 + 64, WS_ZT - 64)
    srd(a, sB, 6, 7, 512 * 1024)
    a(f"s_cmp_ge_u32 s{s_wave}, 4")
    a("s_cbranch_scc1 P3_LOC_LOADER")
    V2 = Alloc(3, 256)
    va = V2(1); vb = V2(1); vt = V2(8, 2)
    fa = [[V2(4, 4) for _ in range(5)] for _ in range(2)]
    fb = [V2(4, 4) for _ in range(2)]
    acc2 = [V2(16, 4) for _ in range(5)]
    tp = V2(4, 4); vst = V2(1)
    t_frag_common(a, vt, v_lane)
    a(f"""
    v_mul_u32_u24 v{va}, 320, v{vt}
    v_add_u32 v{va}, v{va}, v{vt+2}
    """)
    t128_frag_addr_blk(a, vb, vt, v_lane, B_OFF, s_wave)
    ring = Ring(a, S, STAGE, s_rs, s_delta, s_neg, s_pos); ring.init()
    for b in range(5):
        for i in range(16): a(f"v_mov_b32 v{acc2[b]+i}, 0")
    def reads2(step, st):
        r = tr2(fb[st], vb, 16*step*256, 256)
        for b in range(5): r += tr2(fa[st][b], va, A_OFF + 16*step*320 + 64*b, 320)
        return r
    def mfmas2(st, s, par):
        return [f"v_mfma_f32_32x32x16_bf16 v[{acc2[b]}:{acc2[b]+15}], v[{fa[st][b]}:{fa[st][b]+3}], v[{fb[st]}:{fb[st]+3}], v[{acc2[b]}:{acc2[b]+15}]" for b in range(5)]
    grid_wait(a, 1, vt, v_lane)
    gemm_loop2(a, NC, ring, [va, vb], reads2, mfmas2, [4, 6, 8, 10, 12], s_cnt, "L", D=1, per=4, first_hook=lambda: stamp(a, 2))
    stamp(a, 3)
    a(f"""
    v_and_b32 v{vt}, 31, v{v_lane}
    s_lshl_b32 s{s_t0}, s{s_wave}, 5
    v_add_u32 v{vt}, s{s_t0}, v{vt}
    v_mul_u32_u24 v{vst}, {RP2}, v{vt}
    v_lshrrev_b32 v{vt+1}, 5, v{v_lane}
    v_lshl_add_u32 v{vst}, v{vt+1}, 3, v{vst}
    s_barrier
    """)
    for b in range(5):
        for r in range(4):
            x = acc2[b] + 4*r
            a(f"v_cvt_pk_bf16_f32 v{tp+2*(r&1)}, v{x}, v{x+1}")
            a(f"v_cvt_pk_bf16_f32 v{tp+2*(r&1)+1}, v{x+2}, v{x+3}")
            a(f"ds_write_b64 v{vst}, v[{tp+2*(r&1)}:{tp+2*(r&1)+1}] offset:{(32*b + 8*r)*2}")
    a("s_waitcnt lgkmcnt(0)")
    a("s_barrier")
    stamp(a, 5)
    a("s_barrier")
    a("s_branch P3_LOC_CONV")
    a.label("P3_LOC_LOADER")
    vz, vo2, vt_l = 3, 8, 10
    a(f"s_sub_u32 s{s_wave}, s{s_wave}, 4")
    a(f"s_lshl_b32 s{s_t0}, s{s_i0}, 7")
    for j in range(5):
        a(f"""
        v_add_u32 v{vt_l}, {64*j}, v{v_lane}
        v_mul_u32_u24 v{vt_l+1}, 52429, v{vt_l}
        v_lshrrev_b32 v{vt_l+1}, 20, v{vt_l+1}        ; row = f/20
        v_mul_u32_u24 v{vt_l+2}, 20, v{vt_l+1}
        v_sub_u32 v{vt_l+2}, v{vt_l}, v{vt_l+2}       ; slot
        v_lshlrev_b32 v{vt_l+3}, 3, v{vt_l+2}
        v_add_u32 v{vt_l+3}, s{s_t0}, v{vt_l+3}
        v_subrev_u32 v{vt_l+3}, 16, v{vt_l+3}
        v_cmp_gt_u32 vcc, 1000, v{vt_l+3}
        v_lshlrev_b32 v{vt_l+2}, 4, v{vt_l+2}
        v_lshl_add_u32 v{vz+j}, v{vt_l+1}, 12, v{vt_l+2}
        v_mov_b32 v{vt_l+3}, 0x7ff00000
        v_cndmask_b32 v{vz+j}, v{vt_l+3}, v{vz+j}, vcc
        """)
    t128_loader_voff(a, vo2, vt_l, v_lane, 1024)
    a(f"""
    s_lshl_b32 s{s_b0}, s{s_wave}, 16              ; 16 rows * 4096
    s_add_u32 s{s_b0}, s{s_b0}, s{s_kt}
    s_add_u32 s{s_b0}, s{s_b0}, 32
    s_lshl_b32 s{s_b1}, s{s_wave}, 14
    s_lshl_b32 s{s_t0}, s{s_i1}, 8
    s_add_u32 s{s_b1}, s{s_b1}, s{s_t0}
    s_mul_i32 s{s_l0}, s{s_wave}, 5120
    s_lshl_b32 s{s_l1}, s{s_wave}, 12
    s_add_u32 s{s_l1}, s{s_l1}, {B_OFF}
    """)
    streams = [
        Stream(sA, [vz+j for j in range(5)], [0]*5, [A_OFF + j*1024 for j in range(5)], s_b0, 64*4096, s_l0, dep=True),
        Stream(sB, [vo2]*4, [i*4*1024 for i in range(4)], [i*1024 for i in range(4)], s_b1, 64*1024, s_l1),
    ]
    grid_wait(a, 1, 16, v_lane)
    stamp(a, 2)
    loader_loop(a, streams, NC, S, STAGE, s_kc, s_slot, s_cnt, s_t0, s_t1, s_t2, ahead=2)
    stamp(a, 3)
    helper_zero(RP2, 128, 320, WPB2, 128)
    a.label("P3_LOC_CONV")
    conv_stage(a, 58, 16, 8, 0, RP2, WPB2, sO, s_ob, s_tv, s_t0, s_t1, v_lane)
    a.label("P3_FIN")
    if STAMPS_ON():
        a("s_waitcnt vmcnt(0)")
    stamp(a, 6)
    stamp_flush(a, 58)
    a.label(END)
    if common.PERS: grid_arrive(a, 2)
    else: a("s_endpgm")
    return a.text(), dict(name=name, vgpr=max(V.hi, V2.hi, 116), sgpr=100, lds=max(4096 + 5*24576, 4*36864), grid=256, block=512)
```

```python
from common import *
import common, struct
def STAMPS_ON(): return common.STAMPS
def f2u(x): return struct.unpack("<I", struct.pack("<f", x))[0]

X_OFF, WQ_OFF, WM_OFF, STAGE = 0, 16384, 16384 + 12288, 36864
S1, NC1 = 4, 8
T_RSTD, T_NMR, T_CS, T_CS4 = 0, 512, 1024, 1536
RING = 2048
LDS1 = RING + S1 * STAGE
STG_Q, PQ = RING, 208
STG_M, PM = RING + 128 * 208, 272
STG_P = STG_M + 64 * 272

LOG2E = 1.4426950408889634
kA = -2.0 * 0.7978845608028654 * LOG2E
kB = kA * 0.044715

def gen_p1(name="p1_kernel", abl=()):
    SC = common.SCF
    a = Asm('p1_')
    END = "P1_END"
    sX, sWQ, sWM, sQKV, sUG, sGS = 8, 12, 16, 20, 24, 28
    s_wave, s_rt, s_ct, s_kc, s_slot, s_cnt, s_t0, s_t1, s_t2 = 36, 37, 38, 39, 40, 41, 42, 43, 44
    s_bx, s_bq, s_bm, s_lx, s_lq, s_lm = 45, 46, 47, 48, 49, 50
    s_ones, s_delta, s_neg, s_pos, s_rs = 51, 52, 56, 57, 53
    v_lane = 2
    a(f"""
    s_cmp_ge_u32 s2, 256
    s_cbranch_scc1 {END}
    s_load_dwordx2 s[4:5], s[0:1], {KA['x']}
    s_load_dwordx2 s[6:7], s[0:1], {KA['w_qkv']}
    s_load_dwordx2 s[32:33], s[0:1], {KA['w_mlp_in']}
    s_load_dwordx2 s[34:35], s[0:1], {KA['ws']}
    """)
    stamp_zero(a)
    if STAMPS_ON():
        a("s_memrealtime s[64:65]")
        a("s_memtime s[66:67]")
    a(f"""
    v_lshrrev_b32 v1, 6, v0
    v_and_b32 v2, 63, v0
    v_readfirstlane_b32 s{s_wave}, v1
    s_and_b32 s{s_t0}, s2, 7
    s_lshr_b32 s{s_t1}, s2, 3
    s_lshr_b32 s{s_rt}, s{s_t0}, 1
    s_lshl_b32 s{s_rt}, s{s_rt}, 2
    s_and_b32 s{s_t2}, s{s_t1}, 3
    s_add_u32 s{s_rt}, s{s_rt}, s{s_t2}
    s_and_b32 s{s_ct}, s{s_t0}, 1
    s_lshl_b32 s{s_ct}, s{s_ct}, 3
    s_lshr_b32 s{s_kc}, s{s_t1}, 2
    s_add_u32 s{s_ct}, s{s_ct}, s{s_kc}
    s_lshr_b32 s{s_kc}, s{s_rt}, 1
    s_mov_b32 s58, s{s_wave}
    s_cmp_ge_u32 s{s_wave}, 4
    s_cbranch_scc1 P1_LOADER
    """)
    def out_srds():
        srd(a, sQKV, 34, 35, 2000 * 3072, WS_QKV)
        srd(a, sUG, 34, 35, 1024 * 4096, WS_UG)
        srd(a, sGS, 34, 35, 8 * 2 * 2048 * 4, WS_GST)
        stamp_init(a, 34, 35, 0)
    ring = Ring(a, S1, STAGE, s_rs, s_delta, s_neg, s_pos)

    V = Alloc(3, 256)
    vxa = V(4); vwq = V(1); vwm = V(2)
    vt = V(8, 2)
    fbase = V(48, 4)
    fx = [fbase, fbase + 4]
    fw = [[fbase + 8 + 20*st + 4*b for b in range(5)] for st in range(2)]
    acc = [V(16, 4) for _ in range(5)]
    csa = V(8, 4); vones = V(2, 2)
    xr = V(8, 4)
    ga = V(20, 4)
    sRS, sCP = 8, 12
    s_T = 59 if False else 45
    r_frag_addrs(a, vxa, vt, v_lane, s_wave, s_t0, RING + X_OFF)
    a(f"""
    s_lshl_b32 s{s_t0}, s{s_rt}, 7
    s_lshl_b32 s{s_t1}, s{s_ct}, 3
    s_add_u32 s{s_t0}, s{s_t0}, s{s_t1}
    s_lshl_b32 s{s_t1}, s{s_wave}, 1
    s_add_u32 s46, s{s_t0}, s{s_t1}
    s_lshl_b32 s{s_t1}, s46, 10
    v_lshlrev_b32 v{vt}, 4, v{v_lane}
    s_lshl_b32 s{s_T}, s{s_rt}, 4
    s_add_u32 s{s_T}, s{s_T}, s{s_ct}
    s_waitcnt lgkmcnt(0)
    """)
    srd(a, 16, 4, 5, 2000 * 1024)
    a(f"buffer_load_dwordx4 v[{xr}:{xr+3}], v{vt}, s[16:19], s{s_t1} offen")
    a(f"s_add_u32 s{s_t1}, s{s_t1}, 1024")
    a(f"buffer_load_dwordx4 v[{xr+4}:{xr+7}], v{vt}, s[16:19], s{s_t1} offen")
    srd(a, sRS, 34, 35, 2048 * 8, WS_RST)
    srd(a, sCP, 34, 35, 16 * 16 * 160 * 4, WS_CSP)
    pers_init2(a)
    out_srds()
    t_frag_common(a, vt, v_lane)
    a(f"""
    v_mul_u32_u24 v{vwq}, 192, v{vt}
    v_add_u32 v{vwq}, v{vwq}, v{vt+2}
    v_add_u32 v{vwq}, {RING}, v{vwq}
    """)
    t64_frag_addrs(a, vwm, vt, v_lane, RING)
    ring.init()
    for b in range(5):
        for i in range(16): a(f"v_mov_b32 v{acc[b]+i}, 0")
    for i in range(8): a(f"v_mov_b32 v{csa+i}, 0")
    a(f"v_mov_b32 v{vones}, 0x3f803f80")
    a(f"v_mov_b32 v{vones+1}, 0x3f803f80")
    a(f"s_mov_b32 s{s_ones}, 0x3f803f80")
    R = ga
    for i in range(4): a(f"v_mov_b32 v{R+i}, 0")
    a("s_waitcnt vmcnt(0)")
    for i in range(4):
        a(f"v_dot2_f32_bf16 v{R}, v{xr+i}, s{s_ones}, v{R}")
        a(f"v_dot2_f32_bf16 v{R+1}, v{xr+i}, v{xr+i}, v{R+1}")
        a(f"v_dot2_f32_bf16 v{R+2}, v{xr+4+i}, s{s_ones}, v{R+2}")
        a(f"v_dot2_f32_bf16 v{R+3}, v{xr+4+i}, v{xr+4+i}, v{R+3}")
    a(f"""
    s_nop 2
    v_permlane32_swap_b32 v{R}, v{R+1}
    v_permlane32_swap_b32 v{R+2}, v{R+3}
    v_add_f32 v{R}, v{R}, v{R+1}
    v_add_f32 v{R+2}, v{R+2}, v{R+3}
    s_nop 1
    v_permlane16_swap_b32 v{R}, v{R+2}
    v_add_f32 v{R}, v{R}, v{R+2}
    s_nop 1
    v_add_f32_dpp v{R}, v{R}, v{R} row_ror:8 row_mask:0xf bank_mask:0xf
    s_nop 1
    v_add_f32_dpp v{R}, v{R}, v{R} row_ror:4 row_mask:0xf bank_mask:0xf
    s_nop 1
    v_add_f32_dpp v{R}, v{R}, v{R} row_ror:2 row_mask:0xf bank_mask:0xf
    s_nop 1
    v_add_f32_dpp v{R}, v{R}, v{R} row_ror:1 row_mask:0xf bank_mask:0xf
    v_mov_b32 v{R+1}, v{R}
    s_nop 1
    v_permlane32_swap_b32 v{R}, v{R+1}
    v_mul_f32 v{R}, 0x3b000000, v{R}                ; mean
    v_mul_f32 v{R+1}, 0x3b000000, v{R+1}            ; E[x^2]
    v_fma_f32 v{R+1}, -v{R}, v{R}, v{R+1}
    v_max_f32 v{R+1}, 0, v{R+1}
    v_add_f32 v{R+1}, 0x3727c5ac, v{R+1}
    v_rsq_f32 v{R+2}, v{R+1}
    v_mul_f32 v{R+3}, -1.0, v{R}
    v_bfe_u32 v{R+4}, v{v_lane}, 4, 1
    v_mul_f32 v{R+3}, v{R+3}, v{R+2}
    v_add_u32 v{R+4}, s46, v{R+4}
    v_lshlrev_b32 v{R+4}, 3, v{R+4}
    v_and_b32 v{R+5}, 0x2f, v{v_lane}
    v_cmp_eq_u32 vcc, 0, v{R+5}
    s_and_saveexec_b64 s[54:55], vcc
    buffer_store_dwordx2 v[{R+2}:{R+3}], v{R+4}, s[{sRS}:{sRS+3}], 0 offen sc1
    s_mov_b64 exec, s[54:55]
    """)
    def reads(step, st):
        r = [f"ds_read_b128 v[{fx[st]}:{fx[st]+3}], v{vxa+step}"]
        for b in range(3): r += tr2(fw[st][b], vwq, WQ_OFF + 16*step*192 + 64*b, 192)
        for b in range(2): r += tr2(fw[st][3+b], vwm + b, WM_OFF + 16*step*128, 128)
        return r
    def mfmas(st, s, ci):
        m = []
        if "nomfma" in abl: return ["s_nop 0"] * 5
        for b in range(3):
            m.append(f"v_mfma_f32_32x32x16_bf16 v[{acc[b]}:{acc[b]+15}], v[{fw[st][b]}:{fw[st][b]+3}], v[{fx[st]}:{fx[st]+3}], v[{acc[b]}:{acc[b]+15}]")
        for b in range(3, 5):
            m.append(f"v_mfma_f32_32x32x16_bf16 v[{acc[b]}:{acc[b]+15}], v[{fx[st]}:{fx[st]+3}], v[{fw[st][b]}:{fw[st][b]+3}], v[{acc[b]}:{acc[b]+15}]")
        return m
    T4 = "v_mfma_f32_4x4x4_16b_bf16"
    def colsum(dst, f): return f"{T4} v[{dst}:{dst+3}], v[{vones}:{vones+1}], v[{f}:{f+1}], v[{dst}:{dst+3}]"
    def hook(ci, s, last):
        if ci != 0: return None
        st = s & 1
        L = a.newlabel("slab")
        ex = [f"s_and_b32 s{s_t0}, s{s_rt}, 1", f"s_cmp_lg_u32 s{s_t0}, {s >> 1}", f"s_cbranch_scc1 {L}"]
        for w in range(4):
            Lw = a.newlabel("slabw")
            f = fw[st][w]
            ex += [f"s_cmp_lg_u32 s{s_wave}, {w}", f"s_cbranch_scc1 {Lw}", colsum(csa, f)]
            if w == 0: ex += [colsum(csa + 4, fw[st][4]), "s_nop 0", colsum(csa, f + 2), colsum(csa + 4, fw[st][4] + 2)]
            else: ex += ["s_nop 1", colsum(csa, f + 2)]
            ex += [f"{Lw}:"]
        ex += [f"{L}:"]
        return {4: ex}
    G2 = ga + 8
    def chunk_pre(ci):
        if ci == 1:
            a(f"""
            v_mov_b32 v{csa+1}, v{csa}
            v_mov_b32 v{csa+5}, v{csa+4}
            s_nop 1
            v_permlane32_swap_b32 v{csa}, v{csa+1}
            v_permlane32_swap_b32 v{csa+4}, v{csa+5}
            v_add_f32 v{csa}, v{csa}, v{csa+1}
            v_add_f32 v{csa+4}, v{csa+4}, v{csa+5}
            v_and_b32 v{vt}, 31, v{v_lane}
            s_lshl_b32 s{s_t0}, s{s_wave}, 5
            v_add_u32 v{vt}, s{s_t0}, v{vt}
            v_lshlrev_b32 v{vt}, 2, v{vt}
            s_lshl_b32 s{s_t0}, s{s_ct}, 4
            s_add_u32 s{s_t0}, s{s_t0}, s{s_rt}
            s_mul_i32 s{s_t0}, s{s_t0}, 640
            s_mov_b32 exec_hi, 0
            buffer_store_dword v{csa}, v{vt}, s[{sCP}:{sCP+3}], s{s_t0} offen sc1
            s_cmp_lg_u32 s{s_wave}, 0
            s_cbranch_scc1 P1_pub4
            buffer_store_dword v{csa+4}, v{vt}, s[{sCP}:{sCP+3}], s{s_t0} offen offset:512 sc1
            P1_pub4:
            s_mov_b32 exec_hi, -1
            """)
        if ci == 2:
            a("s_waitcnt vmcnt(0)")
        if ci == 3:
            a(f"""
            s_cmp_lg_u32 s{s_wave}, 0
            s_cbranch_scc1 P1_noflag
            s_lshl_b32 s{s_t0}, s{s_T}, 2
            s_add_u32 s{s_t0}, s{s_t0}, 3072
            s_waitcnt lgkmcnt(0)
            s_add_u32 s{s_t1}, s{S_EXP}, 1
            v_mov_b32 v{ga}, s{s_t1}
            v_mov_b32 v{ga+1}, 0
            s_mov_b64 exec, 1
            buffer_store_dword v{ga}, v{ga+1}, s[{S_FL}:{S_FL+3}], s{s_t0} offen sc1
            s_mov_b64 exec, -1
            P1_noflag:
            """)
        if ci == 5:
            a(f"""
            v_and_b32 v{ga+2}, 15, v{v_lane}
            s_lshl_b32 s{s_t0}, s{s_rt}, 4
            v_add_u32 v{ga+3}, s{s_t0}, v{ga+2}          ; (rt, j)
            v_lshlrev_b32 v{ga+4}, 4, v{ga+2}
            v_add_u32 v{ga+4}, s{s_ct}, v{ga+4}          ; (j, ct)
            v_cmp_gt_u32 vcc, 16, v{v_lane}
            v_cndmask_b32 v{ga+3}, v{ga+4}, v{ga+3}, vcc
            v_lshlrev_b32 v{ga+3}, 2, v{ga+3}
            s_movk_i32 s46, 3072
            buffer_load_dword v{ga+2}, v{ga+3}, s[{S_FL}:{S_FL+3}], s46 offen sc1
            """)
        if ci == 6:
            a(f"""
            s_add_u32 s{s_t1}, s{S_EXP}, 1
            s_mov_b32 s{s_t2}, 0x200000
            P1_chk:
            s_waitcnt vmcnt(0)
            v_cmp_ne_u32 vcc, s{s_t1}, v{ga+2}
            s_sub_u32 s{s_t2}, s{s_t2}, 1
            s_cmp_eq_u32 s{s_t2}, 0
            s_cbranch_scc1 P1_chkd
            s_cbranch_vccz P1_chkd
            buffer_load_dword v{ga+2}, v{ga+3}, s[{S_FL}:{S_FL+3}], s46 offen sc1
            s_branch P1_chk
            P1_chkd:
            v_and_b32 v{ga}, 31, v{v_lane}
            s_lshl_b32 s{s_t0}, s{s_wave}, 5
            v_add_u32 v{ga}, s{s_t0}, v{ga}
            s_lshl_b32 s{s_t1}, s{s_rt}, 7
            v_add_u32 v{ga+1}, s{s_t1}, v{ga}
            v_lshlrev_b32 v{ga+1}, 3, v{ga+1}
            buffer_load_dwordx2 v[{csa+2}:{csa+3}], v{ga+1}, s[{sRS}:{sRS+3}], 0 offen sc1
            v_lshrrev_b32 v{ga+1}, 5, v{v_lane}
            v_mul_u32_u24 v{ga+1}, {8*640}, v{ga+1}
            v_lshl_add_u32 v{ga+1}, v{ga}, 2, v{ga+1}
            s_mul_i32 s{s_t0}, s{s_ct}, {16*640}
            """)
            for j in range(8):
                a(f"s_add_u32 s{s_t1}, s{s_t0}, {j*640}")
                a(f"buffer_load_dword v{ga+4+j}, v{ga+1}, s[{sCP}:{sCP+3}], s{s_t1} offen sc1")
            a(f"""
            v_and_b32 v{ga+2}, 31, v{v_lane}
            v_lshlrev_b32 v{ga+2}, 2, v{ga+2}
            v_lshrrev_b32 v{ga+3}, 5, v{v_lane}
            v_mul_u32_u24 v{ga+3}, {2*640}, v{ga+3}
            v_add_u32 v{ga+2}, v{ga+2}, v{ga+3}
            s_mul_i32 s{s_t1}, s{s_wave}, {4*640}
            s_add_u32 s{s_t1}, s{s_t1}, s{s_t0}
            s_add_u32 s{s_t1}, s{s_t1}, 512
            buffer_load_dword v{ga+12}, v{ga+2}, s[{sCP}:{sCP+3}], s{s_t1} offen sc1
            buffer_load_dword v{ga+13}, v{ga+2}, s[{sCP}:{sCP+3}], s{s_t1} offen offset:640 sc1
            """)
    a("s_waitcnt lgkmcnt(0)")
    gemm_loop2(a, NC1, ring, [vxa, vxa+1, vxa+2, vxa+3, vwq, vwm, vwm+1], reads, mfmas, [3, 5, 7, 9, 11], s_cnt, "P1",
               D=1, per=4, hook=hook, first_hook=lambda: stamp(a, 2), full=True, chunk_pre=chunk_pre)
    stamp(a, 3)
    a("s_waitcnt vmcnt(0)")
    for j in range(1, 8): a(f"v_add_f32 v{ga+4}, v{ga+4}, v{ga+4+j}")
    a(f"""
    v_add_f32 v{ga+12}, v{ga+12}, v{ga+13}
    v_mov_b32 v{ga+5}, v{ga+4}
    v_mov_b32 v{ga+13}, v{ga+12}
    s_nop 1
    v_permlane32_swap_b32 v{ga+4}, v{ga+5}
    v_permlane32_swap_b32 v{ga+12}, v{ga+13}
    v_add_f32 v{ga+4}, v{ga+4}, v{ga+5}
    v_add_f32 v{ga+12}, v{ga+12}, v{ga+13}
    v_lshlrev_b32 v{vt}, 2, v{ga}
    ds_write_b32 v{vt}, v{ga+4} offset:{T_CS}
    ds_write_b32 v{vt}, v{ga+12} offset:{T_CS4}
    ds_write_b32 v{vt}, v{csa+2} offset:{T_RSTD}
    ds_write_b32 v{vt}, v{csa+3} offset:{T_NMR}
    s_waitcnt lgkmcnt(0)
    """)
    a("s_barrier")
    stamp(a, 4)
    e = Alloc(fbase, fbase + 48)
    rs = e(16, 4); nm = e(16, 4); tp = e(4, 4); vcsl = e(2, 2); g2 = e(4, 4)
    t0 = vt; vh16 = vt + 2; vstq = vt + 3; vtk = vt + 4
    v_rn = csa + 2
    a(f"""
    v_lshrrev_b32 v{vh16}, 5, v{v_lane}
    v_lshlrev_b32 v{vh16}, 4, v{vh16}            ; h*16
    v_and_b32 v{t0}, 31, v{v_lane}
    s_lshl_b32 s{s_t0}, s{s_wave}, 5
    v_add_u32 v{vstq}, s{s_t0}, v{t0}
    v_mul_u32_u24 v{vstq}, {PQ}, v{vstq}
    v_lshrrev_b32 v{t0}, 1, v{vh16}
    v_add_u32 v{vstq}, v{vstq}, v{t0}
    """)
    bufs = [rs, nm]
    for r in range(4):
        a(f"ds_read_b128 v[{bufs[0]+4*r}:{bufs[0]+4*r+3}], v{vh16} offset:{T_CS + 8*r*4}")
    for b in range(3):
        cur = bufs[b & 1]
        if b < 2:
            for r in range(4):
                a(f"ds_read_b128 v[{bufs[(b+1)&1]+4*r}:{bufs[(b+1)&1]+4*r+3}], v{vh16} offset:{T_CS + (32*(b+1) + 8*r)*4}")
            a("s_waitcnt lgkmcnt(4)")
        else:
            a("s_waitcnt lgkmcnt(0)")
        for r in range(4):
            for p in range(2):
                c = cur + 4*r + 2*p; x = acc[b] + 4*r + 2*p
                a(f"v_pk_mul_f32 v[{c}:{c+1}], v[{c}:{c+1}], v[{v_rn}:{v_rn+1}] op_sel:[0,1] op_sel_hi:[1,1]")
                a(f"v_pk_fma_f32 v[{x}:{x+1}], v[{x}:{x+1}], v[{v_rn}:{v_rn+1}], v[{c}:{c+1}] op_sel_hi:[1,0,1]")
            x = acc[b] + 4*r
            a(f"v_cvt_pk_bf16_f32 v{tp+2*(r&1)}, v{x}, v{x+1}")
            a(f"v_cvt_pk_bf16_f32 v{tp+2*(r&1)+1}, v{x+2}, v{x+3}")
            a(f"ds_write_b64 v{vstq}, v[{tp+2*(r&1)}:{tp+2*(r&1)+1}] offset:{STG_Q + (32*b + 8*r)*2}")
    a(f"""
    s_lshl_b32 s{s_t0}, s{s_wave}, 7             ; 32w tokens * 4 B
    v_add_u32 v{vtk}, s{s_t0}, v{vh16}
    v_and_b32 v{t0}, 31, v{v_lane}
    v_lshlrev_b32 v{t0+1}, 2, v{t0}
    s_waitcnt lgkmcnt(0)
    s_barrier
    """)
    a(f"""
    ds_read_b32 v{vcsl}, v{t0+1} offset:{T_CS + 96*4}
    ds_read_b32 v{vcsl+1}, v{t0+1} offset:{T_CS4}
    ds_read_b32 v{g2}, v{t0+1} offset:{T_CS4 + 128}
    ds_read_b32 v{g2+1}, v{t0+1} offset:{T_CS4 + 256}
    ds_read_b32 v{g2+2}, v{t0+1} offset:{T_CS4 + 384}
    """)
    for r in range(4):
        a(f"ds_read_b128 v[{rs+4*r}:{rs+4*r+3}], v{vtk} offset:{T_RSTD + 8*r*4}")
        a(f"ds_read_b128 v[{nm+4*r}:{nm+4*r+3}], v{vtk} offset:{T_NMR + 8*r*4}")
    a(f"""
    v_mul_u32_u24 v{vstq}, {PM}, v{t0}
    s_lshl_b32 s{s_t0}, s{s_wave}, 6             ; 32w tokens * 2 B
    v_add_u32 v{vstq}, s{s_t0}, v{vstq}
    v_lshrrev_b32 v{t0+1}, 1, v{vh16}
    v_add_u32 v{vstq}, v{vstq}, v{t0+1}
    s_waitcnt lgkmcnt(0)
    v_add_f32 v{vcsl+1}, v{vcsl+1}, v{g2}
    v_add_f32 v{g2+1}, v{g2+1}, v{g2+2}
    v_add_f32 v{vcsl+1}, v{vcsl+1}, v{g2+1}
    """)
    for b in range(2):
        for r in range(4):
            for p in range(2):
                x = acc[3+b] + 4*r + 2*p; g = g2 + 2*p
                a(f"v_pk_mul_f32 v[{g}:{g+1}], v[{nm+4*r+2*p}:{nm+4*r+2*p+1}], v[{vcsl}:{vcsl+1}] op_sel:[0,{b}] op_sel_hi:[1,{b}]")
                a(f"v_pk_fma_f32 v[{x}:{x+1}], v[{x}:{x+1}], v[{rs+4*r+2*p}:{rs+4*r+2*p+1}], v[{g}:{g+1}]")
            x = acc[3+b] + 4*r
            a(f"v_cvt_pk_bf16_f32 v{tp+2*(r&1)}, v{x}, v{x+1}")
            a(f"v_cvt_pk_bf16_f32 v{tp+2*(r&1)+1}, v{x+2}, v{x+3}")
            a(f"ds_write_b64 v{vstq}, v[{tp+2*(r&1)}:{tp+2*(r&1)+1}] offset:{STG_M + 32*b*PM + 8*r*2}")
    a("s_waitcnt lgkmcnt(0)")
    stamp(a, 5)
    a("s_barrier")
    a("s_branch P1_GELU")

    def cs_final(l_cs, ng, lt, col_sgpr_list):
        for g in range(ng):
            a(f"""
            v_mov_b32 v{lt+4}, v{l_cs+g}
            s_nop 1
            v_permlane16_swap_b32 v{l_cs+g}, v{lt+4}
            v_add_f32 v{l_cs+g}, v{l_cs+g}, v{lt+4}
            v_mov_b32 v{lt+4}, v{l_cs+g}
            s_nop 1
            v_permlane32_swap_b32 v{l_cs+g}, v{lt+4}
            v_add_f32 v{l_cs+g}, v{l_cs+g}, v{lt+4}
            """)
    def grp_lane(lt):
        a(f"""
        v_lshrrev_b32 v{lt}, 4, v{v_lane}
        v_lshlrev_b32 v{lt}, 2, v{lt}
        v_bfe_u32 v{lt+1}, v{v_lane}, 2, 2
        v_add_u32 v{lt}, v{lt}, v{lt+1}
        v_and_b32 v{lt+1}, 3, v{v_lane}
        v_lshlrev_b32 v{lt+1}, 3, v{lt+1}
        """)

    a.label("P1_LOADER")
    vx, vq, vm = 3, 4, 7
    vt = 8
    a(f"s_sub_u32 s{s_wave}, s{s_wave}, 4")
    r_loader_voff(a, vx, vt, v_lane, s_wave, s_t0, 1024)
    a(f"""
    s_lshl_b32 s{s_bx}, s{s_rt}, 17              ; rt*128*1024
    s_lshl_b32 s{s_t0}, s{s_wave}, 13            ; 8 rows * 1024 * w
    s_add_u32 s{s_bx}, s{s_bx}, s{s_t0}
    s_lshl_b32 s{s_lx}, s{s_wave}, 10
    """)
    t64_loader_voff(a, vm, vt, v_lane, 2048)
    for jj in range(3):
        a(f"""
        v_add_u32 v{vt}, {64*jj}, v{v_lane}
        v_mul_u32_u24 v{vt+1}, 43691, v{vt}
        v_lshrrev_b32 v{vt+1}, 19, v{vt+1}          ; row = f/12
        v_mul_u32_u24 v{vt+2}, 12, v{vt+1}
        v_sub_u32 v{vt+2}, v{vt}, v{vt+2}           ; slot
        v_lshlrev_b32 v{vt+2}, 4, v{vt+2}
        v_mul_u32_u24 v{vt+1}, 3072, v{vt+1}
        v_add_u32 v{vq+jj}, v{vt+1}, v{vt+2}
        """)
    a(f"""
    s_mul_i32 s{s_bq}, s{s_wave}, {16*3072}
    s_mul_i32 s{s_t0}, s{s_ct}, 192
    s_add_u32 s{s_bq}, s{s_bq}, s{s_t0}
    s_mul_i32 s{s_bm}, s{s_wave}, {16*2048}
    s_lshl_b32 s{s_t0}, s{s_ct}, 7
    s_add_u32 s{s_bm}, s{s_bm}, s{s_t0}
    s_mul_i32 s{s_lq}, s{s_wave}, 3072
    s_add_u32 s{s_lq}, s{s_lq}, {WQ_OFF}
    s_lshl_b32 s{s_lm}, s{s_wave}, 11
    s_add_u32 s{s_lm}, s{s_lm}, {WM_OFF}
    s_waitcnt lgkmcnt(0)
    """)
    srd(a, sX, 4, 5, 2000 * 1024)
    srd(a, sWQ, 6, 7, 512 * 3072)
    srd(a, sWM, 32, 33, 512 * 2048)
    streams = [
        Stream(sX, [vx]*4, [i*32*1024 for i in range(4)], [X_OFF + i*4096 for i in range(4)], s_bx, 128, s_lx),
        Stream(sWQ, [vq, vq+1, vq+2], [0, 0, 0], [0, 1024, 2048], s_bq, 64*3072, s_lq),
        Stream(sWM, [vm, vm], [0, 8*2048], [0, 1024], s_bm, 64*2048, s_lm),
    ]
    def hook():
        pers_init2(a)
        out_srds()
    stamp(a, 2)
    loader_loop(a, streams, NC1, S1, STAGE, s_kc, s_slot, s_cnt, s_t0, s_t1, s_t2, lds_base=RING, hook=hook,
                ahead=(3 if 'ah3' in abl else 2))
    stamp(a, 3)

    if "nopf" not in abl:
        a(f"""
        s_load_dwordx2 s[8:9], s[0:1], {KA['w_att_out']}
        s_load_dwordx2 s[12:13], s[0:1], {KA['w_mlp_out']}
        s_load_dwordx2 s[16:17], s[0:1], {KA['w_merge']}
        v_and_b32 v3, 15, v{v_lane}
        s_lshl_b32 s{s_t0}, s2, 4
        v_add_u32 v3, s{s_t0}, v3
        v_lshlrev_b32 v3, 7, v3                      ; line*128
        s_waitcnt lgkmcnt(0)
        s_mov_b32 s10, {512*1024}
        s_mov_b32 s11, 0x20000
        s_mov_b32 s14, {512*1024}
        s_mov_b32 s15, 0x20000
        s_mov_b32 s18, {1024*1024}
        s_mov_b32 s19, 0x20000
        v_cmp_gt_u32 vcc, 16, v{v_lane}
        s_and_saveexec_b64 s[54:55], vcc
        s_cmp_eq_u32 s58, 4
        s_cbranch_scc0 P1_pf9
        buffer_load_dword v127, v3, s[8:11], 0 offen
        s_branch P1_pfd
        P1_pf9:
        s_cmp_eq_u32 s58, 5
        s_cbranch_scc0 P1_pf10
        buffer_load_dword v127, v3, s[12:15], 0 offen
        s_branch P1_pfd
        P1_pf10:
        s_sub_u32 s{s_t1}, s58, 6
        s_lshl_b32 s{s_t1}, s{s_t1}, 19
        buffer_load_dword v127, v3, s[16:19], s{s_t1} offen
        P1_pfd:
        s_mov_b64 exec, s[54:55]
        """)
    a("s_barrier")
    a(f"s_mul_i32 s{s_t1}, s{s_rt}, {128*3072}")
    a(f"s_mul_i32 s{s_t2}, s{s_ct}, 192")
    a(f"s_add_u32 s{s_t1}, s{s_t1}, s{s_t2}")
    d = 8
    for i in range(6):
        a(f"""
        v_add_u32 v3, {(256*i - 256) & 0xffffffff}, v0
        v_mul_u32_u24 v4, 43691, v3
        v_lshrrev_b32 v4, 19, v4              ; row
        v_mul_u32_u24 v5, 12, v4
        v_sub_u32 v5, v3, v5                  ; slot
        v_lshlrev_b32 v5, 4, v5
        v_mul_u32_u24 v6, {PQ}, v4
        v_add_u32 v{32+i}, v6, v5
        v_mul_u32_u24 v4, 3072, v4
        v_add_u32 v{40+i}, v4, v5
        """)
    a("s_barrier")
    for i in range(6):
        a(f"ds_read_b128 v[{d+4*i}:{d+4*i+3}], v{32+i} offset:{STG_Q}")
    for i in range(6):
        a(f"s_waitcnt lgkmcnt({5-i})")
        a(f"buffer_store_dwordx4 v[{d+4*i}:{d+4*i+3}], v{40+i}, s[{sQKV}:{sQKV+3}], s{s_t1} offen {SC}")
    a("s_barrier")

    a.label("P1_GELU")
    H = 48
    a(f"""
    v_lshrrev_b32 v4, 4, v0                       ; row 0..31
    v_and_b32 v5, 15, v0                          ; slot
    v_lshlrev_b32 v5, 4, v5
    v_mul_u32_u24 v6, {PM}, v4
    v_add_u32 v6, v6, v5
    ds_read_b128 v[{H}:{H+3}], v6 offset:{STG_M}
    ds_read_b128 v[{H+4}:{H+7}], v6 offset:{STG_M + 32*PM}
    v_lshl_add_u32 v7, v4, 12, v5
    s_lshl_b32 s{s_t2}, s{s_ct}, 18               ; 64 rows * 4096
    s_lshl_b32 s{s_t0}, s{s_rt}, 8                ; 128 tokens * 2 B
    s_add_u32 s{s_t2}, s{s_t2}, s{s_t0}
    """)
    X = 56; G = 72; cA, cB = 88, 89
    a(f"""
    v_mov_b32 v{cA}, {hex(f2u(kA))}
    v_mov_b32 v{cB}, {hex(f2u(kB))}
    s_waitcnt lgkmcnt(0)
    """)
    for i in range(8):
        a(f"v_lshlrev_b32 v{X+2*i}, 16, v{H+i}")
        a(f"v_and_b32 v{X+2*i+1}, 0xffff0000, v{H+i}")
    for i in range(16): a(f"v_mul_f32 v{G+i}, v{X+i}, v{X+i}")
    for i in range(16): a(f"v_fma_f32 v{G+i}, v{G+i}, v{cB}, v{cA}")
    for i in range(16): a(f"v_mul_f32 v{G+i}, v{G+i}, v{X+i}")
    for i in range(16): a(f"v_exp_f32 v{G+i}, v{G+i}")
    for i in range(16): a(f"v_add_f32 v{G+i}, 1.0, v{G+i}")
    for i in range(16): a(f"v_rcp_f32 v{G+i}, v{G+i}")
    for i in range(16): a(f"v_mul_f32 v{X+i}, v{X+i}, v{G+i}")
    for i in range(8): a(f"v_cvt_pk_bf16_f32 v{H+i}, v{X+2*i}, v{X+2*i+1}")
    a(f"buffer_store_dwordx4 v[{H}:{H+3}], v7, s[{sUG}:{sUG+3}], s{s_t2} offen {SC}")
    a(f"s_add_u32 s{s_t1}, s{s_t2}, {32*4096}")
    a(f"buffer_store_dwordx4 v[{H+4}:{H+7}], v7, s[{sUG}:{sUG+3}], s{s_t1} offen {SC}")
    a(f"s_cmp_lt_u32 s{s_ct}, 8")
    a("s_cbranch_scc1 P1_nostat")
    for i in range(8):
        a(f"v_mul_f32 v{G+i}, v{X+i}, v{X+i}")
        a(f"v_fma_f32 v{G+i}, v{X+8+i}, v{X+8+i}, v{G+i}")
        a(f"v_add_f32 v{X+i}, v{X+i}, v{X+8+i}")
    for i in range(8): a(f"v_permlane16_swap_b32 v{X+i}, v{G+i}")
    for i in range(8): a(f"v_add_f32 v{X+i}, v{X+i}, v{G+i}")
    for i in range(4): a(f"v_permlane32_swap_b32 v{X+i}, v{X+4+i}")
    for i in range(4): a(f"v_add_f32 v{X+i}, v{X+i}, v{X+4+i}")
    a(f"""
    v_lshlrev_b32 v4, 4, v0                       ; tid*16
    ds_write_b128 v4, v[{X}:{X+3}] offset:{STG_P}
    s_waitcnt lgkmcnt(0)
    s_barrier
    s_cmp_lg_u32 s58, 7
    s_cbranch_scc1 P1_nostat
    v_lshlrev_b32 v4, 4, v{v_lane}
    """)
    for w in range(8):
        a(f"ds_read_b128 v[{8+4*w}:{8+4*w+3}], v4 offset:{STG_P + w*1024}")
    a(f"""
    v_and_b32 v5, 15, v{v_lane}
    v_lshlrev_b32 v5, 3, v5                      ; 8*slot
    v_lshrrev_b32 v6, 5, v{v_lane}
    v_lshl_add_u32 v5, v6, 2, v5                  ; + 4*half
    s_lshl_b32 s{s_t0}, s{s_rt}, 7
    v_add_u32 v5, s{s_t0}, v5
    v_lshlrev_b32 v5, 2, v5
    v_bfe_u32 v6, v{v_lane}, 4, 1
    v_lshl_add_u32 v5, v6, 13, v5                 ; stat * 2048*4
    s_sub_u32 s{s_t0}, s{s_ct}, 8
    s_lshl_b32 s{s_t0}, s{s_t0}, 14
    s_waitcnt lgkmcnt(0)
    """)
    for w in range(1, 8):
        for i in range(4): a(f"v_add_f32 v{8+i}, v{8+i}, v{8+4*w+i}")
    a(f"buffer_store_dwordx4 v[8:11], v5, s[{sGS}:{sGS+3}], s{s_t0} offen {SC}")
    a.label("P1_nostat")
    if STAMPS_ON():
        a("s_waitcnt vmcnt(0)")
    stamp(a, 6)
    stamp_flush(a, 58)
    a.label(END)
    if common.PERS:
        pers_init3(a)
        grid_arrive(a, 0)
    else: a("s_endpgm")
    return a.text(), dict(name=name, vgpr=max(V.hi, 96), sgpr=100, lds=LDS1, grid=256, block=512)
```

```python
from common import *
import common, struct
from p2 import conv_T_addr, build_filter_table, conv_T_reads, WP_CH
def STAMPS_ON(): return common.STAMPS
def f2u(x): return struct.unpack("<I", struct.pack("<f", x))[0]

LDS3 = 4096 + 5 * 24576

def prologue(a, END, ptrs, s_wave, s_xcd, s_idx, phase):
    a(f"s_cmp_ge_u32 s2, 256")
    a(f"s_cbranch_scc1 {END}")
    for reg, nm in ptrs:
        a(f"s_load_dwordx2 s[{reg}:{reg+1}], s[0:1], {KA[nm]}")
    stamp_zero(a)
    if STAMPS_ON():
        a("s_memrealtime s[64:65]")
        a("s_memtime s[66:67]")
    a(f"""
    v_lshrrev_b32 v1, 6, v0
    v_and_b32 v2, 63, v0
    v_readfirstlane_b32 s{s_wave}, v1
    s_and_b32 s{s_xcd}, s2, 7
    s_lshr_b32 s{s_idx}, s2, 3
    s_mov_b32 s58, s{s_wave}
    s_waitcnt lgkmcnt(0)
    """)

def store_T_tile(a, sO, s_rowbase, s_tbase_bytes, s_valid_gran, stg_pitch=272):
    for i in range(2):
        a(f"""
        v_add_u32 v3, {512*i}, v0
        v_lshrrev_b32 v4, 4, v3
        v_and_b32 v5, 15, v3
        v_cmp_gt_u32 vcc, s{s_valid_gran}, v5
        v_lshlrev_b32 v5, 4, v5
        v_mul_u32_u24 v6, {stg_pitch}, v4
        v_add_u32 v6, v6, v5
        ds_read_b128 v[{8+4*i}:{8+4*i+3}], v6
        v_lshl_add_u32 v{40+i}, v4, 12, v5
        v_cndmask_b32 v{40+i}, -1, v{40+i}, vcc
        """)
    a("s_waitcnt lgkmcnt(0)")
    for i in range(2):
        a(f"buffer_store_dwordx4 v[{8+4*i}:{8+4*i+3}], v{40+i}, s[{sO}:{sO+3}], s{s_rowbase} offen")

def gen_p3(name="p3_kernel", abl=()):
    a = Asm('p3_')
    END = "P3_END"
    sA, sB, sO, sS = 8, 12, 16, 20
    s_wave, s_i0, s_i1, s_kc, s_slot, s_cnt, s_t0, s_t1, s_t2 = 36, 37, 38, 39, 40, 41, 42, 43, 44
    s_b0, s_b1, s_l0, s_l1 = 45, 46, 48, 49
    s_b, s_delta, s_neg, s_pos, s_rs = 51, 52, 56, 57, 53
    s_xcd, s_idx = 47, 50
    s_kt, s_ob, s_vg = 24, 25, 26
    v_lane = 2
    RING = 4096
    prologue(a, END, [(4, 'ws'), (6, 'w_mlp_out')], s_wave, s_xcd, s_idx, 2)
    stamp_init(a, 4, 5, 2)
    srd(a, sO, 4, 5, 1024 * 4096, WS_MT)
    a(f"s_cmp_ge_u32 s{s_idx}, 16")
    a("s_cbranch_scc1 P3_LOC")
    A_OFF, B_OFF, STAGE, S, NC = 0, 16384, 24576, 5, 16
    a(f"""
    s_lshr_b32 s{s_b}, s{s_xcd}, 2
    s_and_b32 s{s_i0}, s{s_xcd}, 3
    s_lshl_b32 s{s_i0}, s{s_i0}, 1
    s_lshr_b32 s{s_t0}, s{s_idx}, 3
    s_add_u32 s{s_i0}, s{s_i0}, s{s_t0}            ; tt
    s_and_b32 s{s_i1}, s{s_idx}, 7                 ; ct
    s_lshl_b32 s{s_t0}, s{s_t0}, 2
    s_add_u32 s{s_kt}, s{s_i1}, s{s_t0}
    s_and_b32 s{s_kt}, s{s_kt}, 7
    s_lshl_b32 s{s_kc}, s{s_kt}, 1
    s_lshl_b32 s{s_t0}, s{s_b}, 21
    s_add_u32 s{s_t0}, s{s_t0}, {WS_PT}
    s_add_u32 s{sA}, s4, s{s_t0}
    s_addc_u32 s{sA+1}, s5, 0
    s_mov_b32 s{sA+2}, {1000*2048}
    s_mov_b32 s{sA+3}, 0x20000
    s_mul_i32 s{s_t0}, s{s_b}, {1000*1024}
    s_add_u32 s{s_t0}, s{s_t0}, {WS_VP}
    s_add_u32 s{sB}, s4, s{s_t0}
    s_addc_u32 s{sB+1}, s5, 0
    s_mov_b32 s{sB+2}, {1000*1024}
    s_mov_b32 s{sB+3}, 0x20000
    s_lshl_b32 s{s_ob}, s{s_i1}, 18
    s_mul_i32 s{s_t0}, s{s_b}, 1000
    s_lshl_b32 s{s_t1}, s{s_i0}, 7
    s_add_u32 s{s_t0}, s{s_t0}, s{s_t1}
    s_lshl_b32 s{s_t0}, s{s_t0}, 1
    s_add_u32 s{s_ob}, s{s_ob}, s{s_t0}
    s_sub_u32 s{s_vg}, 1000, s{s_t1}
    s_lshr_b32 s{s_vg}, s{s_vg}, 3
    s_min_u32 s{s_vg}, s{s_vg}, 16
    """)
    if "norot" in abl:
        a(f"s_mov_b32 s{s_kc}, 0")
        a(f"s_mov_b32 s{s_kt}, 0")
    srd(a, sS, 4, 5, 2*8*2*1024*4, WS_SST)
    a(f"s_cmp_ge_u32 s{s_wave}, 4")
    a("s_cbranch_scc1 P3_PV_LOADER")
    V = Alloc(3, 256)
    va = V(4); vb = V(2); vt = V(8, 2)
    fa = [V(4, 4) for _ in range(4)]
    fb = [[V(4, 4) for _ in range(2)] for _ in range(4)]
    tmp = [[V(16, 4) for _ in range(2)] for _ in range(2)]
    acc = [V(16, 4) for _ in range(2)]
    sc = V(16, 4)
    vsc = V(1); tp = V(4, 4); vst = V(1)
    a(f"s_cmp_ge_u32 s{s_wave}, 2")
    a("s_cbranch_scc1 P3_noscale")
    M = tmp[0][0]; Ls = tmp[0][1]
    a(f"""
    s_lshl_b32 s{s_t0}, s{s_i0}, 7
    v_add_u32 v{vt}, s{s_t0}, v0
    v_lshlrev_b32 v{vt}, 2, v{vt}
    s_lshl_b32 s{s_t1}, s{s_b}, 16                 ; b*8*2*1024*4
    """)
    for k in range(8):
        a(f"s_add_u32 s{s_t2}, s{s_t1}, {k*8192}")
        a(f"buffer_load_dword v{M+k}, v{vt}, s[{sS}:{sS+3}], s{s_t2} offen")
        a(f"s_add_u32 s{s_t2}, s{s_t1}, {k*8192 + 4096}")
        a(f"buffer_load_dword v{Ls+k}, v{vt}, s[{sS}:{sS+3}], s{s_t2} offen")
    a("s_waitcnt vmcnt(0)")
    a(f"v_max3_f32 v{vt+1}, v{M}, v{M+1}, v{M+2}")
    a(f"v_max3_f32 v{vt+1}, v{M+3}, v{M+4}, v{vt+1}")
    a(f"v_max3_f32 v{vt+1}, v{M+5}, v{M+6}, v{vt+1}")
    a(f"v_max_f32 v{vt+1}, v{M+7}, v{vt+1}")
    for k in range(8): a(f"v_sub_f32 v{M+k}, v{M+k}, v{vt+1}")
    for k in range(8): a(f"v_exp_f32 v{M+k}, v{M+k}")
    a(f"v_mul_f32 v{vt+2}, v{M}, v{Ls}")
    for k in range(1, 8): a(f"v_fma_f32 v{vt+2}, v{M+k}, v{Ls+k}, v{vt+2}")
    a(f"v_rcp_f32 v{vt+2}, v{vt+2}")
    a(f"v_lshlrev_b32 v{vt+3}, 2, v0")
    for k in range(8):
        a(f"v_mul_f32 v{M+k}, v{M+k}, v{vt+2}")
        a(f"ds_write_b32 v{vt+3}, v{M+k} offset:{k*512}")
    a("s_waitcnt lgkmcnt(0)")
    a.label("P3_noscale")
    r_frag_addrs(a, va, vt, v_lane, s_wave, s_t0, RING + A_OFF)
    t64_frag_addrs(a, vb, vt, v_lane, RING + B_OFF)
    ring = Ring(a, S, STAGE, s_rs, s_delta, s_neg, s_pos); ring.init()
    for b in range(2):
        for i in range(16): a(f"v_mov_b32 v{acc[b]+i}, 0")
    a(f"""
    v_lshrrev_b32 v{vsc}, 5, v{v_lane}
    v_lshlrev_b32 v{vsc}, 4, v{vsc}
    s_lshl_b32 s{s_t0}, s{s_wave}, 7
    v_add_u32 v{vsc}, s{s_t0}, v{vsc}
    """)
    def reads(step, st):
        r = [f"ds_read_b128 v[{fa[st]}:{fa[st]+3}], v{va+step}"]
        for b in range(2): r += tr2(fb[st][b], vb + b, 16*step*128, 128)
        return r
    regs = [va+i for i in range(4)] + [vb, vb+1]
    def mfmas(st, s, ci):
        par = (ci >> 1) & 1
        out = []
        for b in range(2):
            c = "0" if ((ci & 1) == 0 and s == 0) else f"v[{tmp[par][b]}:{tmp[par][b]+15}]"
            out.append(f"v_mfma_f32_32x32x16_bf16 v[{tmp[par][b]}:{tmp[par][b]+15}], v[{fa[st]}:{fa[st]+3}], v[{fb[st][b]}:{fb[st][b]+3}], {c}")
        return out
    def fold(par):
        return [f"v_fma_f32 v{acc[b]+i}, v{tmp[par][b]+i}, v{sc+i}, v{acc[b]+i}" for b in range(2) for i in range(16)]
    def hook(ci, s, last):
        par = (ci >> 1) & 1
        ex = {}
        if (ci & 1) == 0:
            lo, hi = {0: (0, 0), 1: (0, 11), 2: (11, 22), 3: (22, 32)}[s]
            f = fold(par ^ 1)[lo:hi]
            ex = {0: f[:len(f)//2], 1: f[len(f)//2:]}
        else:
            if s == 0:
                ex = {1: [f"s_lshl_b32 s{s_t0}, s{s_kt}, 9", f"v_add_u32 v{vt}, s{s_t0}, v{vsc}"] +
                         [f"ds_read_b128 v[{sc+4*r}:{sc+4*r+3}], v{vt} offset:{32*r}" for r in range(4)] +
                         [f"s_add_u32 s{s_kt}, s{s_kt}, 1", f"s_and_b32 s{s_kt}, s{s_kt}, 7"]}
        return ex
    def pre():
        pass
    for b in range(2):
        for i in range(16): a(f"v_mov_b32 v{tmp[1][b]+i}, 0")
    for i in range(16): a(f"v_mov_b32 v{sc+i}, 0")
    gemm_loop2(a, NC, ring, regs, reads, mfmas, [3, 5], s_cnt, "PV", D=2, per=3, hook=hook, unroll=4,
               first_hook=lambda: stamp(a, 2))
    a("s_waitcnt lgkmcnt(0)")
    for x in fold(1): a(x)
    stamp(a, 3)
    def t_epilogue(acc):
        a(f"""
        v_and_b32 v{vt}, 31, v{v_lane}
        v_mul_u32_u24 v{vst}, 272, v{vt}
        s_lshl_b32 s{s_t0}, s{s_wave}, 6
        v_add_u32 v{vst}, s{s_t0}, v{vst}
        v_lshrrev_b32 v{vt+1}, 5, v{v_lane}
        v_lshl_add_u32 v{vst}, v{vt+1}, 3, v{vst}
        s_barrier
        """)
        for b in range(2):
            for r in range(4):
                x = acc[b] + 4*r
                a(f"v_cvt_pk_bf16_f32 v{tp+2*(r&1)}, v{x}, v{x+1}")
                a(f"v_cvt_pk_bf16_f32 v{tp+2*(r&1)+1}, v{x+2}, v{x+3}")
                a(f"ds_write_b64 v{vst}, v[{tp+2*(r&1)}:{tp+2*(r&1)+1}] offset:{32*b*272 + 8*r*2}")
        a("s_waitcnt lgkmcnt(0)")
        a("s_barrier")
    t_epilogue(acc)
    a("s_branch P3_STORE")
    a.label("P3_PV_LOADER")
    vo, vo2, vt_l = 3, 4, 8
    a(f"s_sub_u32 s{s_wave}, s{s_wave}, 4")
    r_loader_voff(a, vo, vt_l, v_lane, s_wave, s_t0, 2048)
    t64_loader_voff(a, vo2, vt_l, v_lane, 1024)
    a(f"""
    s_lshl_b32 s{s_b0}, s{s_i0}, 7
    s_lshl_b32 s{s_t0}, s{s_wave}, 3
    s_add_u32 s{s_b0}, s{s_b0}, s{s_t0}
    s_lshl_b32 s{s_b0}, s{s_b0}, 11                ; P rows * 2048
    s_lshl_b32 s{s_b1}, s{s_wave}, 14
    s_lshl_b32 s{s_t0}, s{s_i1}, 7
    s_add_u32 s{s_b1}, s{s_b1}, s{s_t0}
    s_lshl_b32 s{s_l0}, s{s_wave}, 10
    s_lshl_b32 s{s_l1}, s{s_wave}, 11
    s_add_u32 s{s_l1}, s{s_l1}, {B_OFF}
    """)
    streams = [
        Stream(sA, [vo]*4, [i*32*2048 for i in range(4)], [A_OFF + i*4096 for i in range(4)], s_b0, 128, s_l0),
        Stream(sB, [vo2]*2, [0, 8*1024], [0, 1024], s_b1, 64*1024, s_l1),
    ]
    stamp(a, 2)
    loader_loop(a, streams, NC, S, STAGE, s_kc, s_slot, s_cnt, s_t0, s_t1, s_t2, lds_base=RING, ahead=3)
    stamp(a, 3)
    a("s_barrier")
    a("s_barrier")
    a("s_branch P3_STORE")

    a.label("P3_LOC")
    A_OFF, B_OFF, STAGE, S, NC = 0, 16384, 24576, 5, 8
    a(f"""
    s_sub_u32 s{s_idx}, s{s_idx}, 16
    s_lshr_b32 s{s_t0}, s{s_idx}, 3
    s_lshl_b32 s{s_i0}, s{s_xcd}, 1
    s_add_u32 s{s_i0}, s{s_i0}, s{s_t0}
    s_and_b32 s{s_i1}, s{s_idx}, 7                 ; ct
    s_lshl_b32 s{s_t0}, s{s_t0}, 2
    s_add_u32 s{s_kc}, s{s_i1}, s{s_t0}
    s_and_b32 s{s_kc}, s{s_kc}, 7
    s_add_u32 s{s_ob}, s{s_i1}, 8
    s_lshl_b32 s{s_ob}, s{s_ob}, 18
    s_lshl_b32 s{s_t1}, s{s_i0}, 7
    s_lshl_b32 s{s_t0}, s{s_t1}, 1
    s_add_u32 s{s_ob}, s{s_ob}, s{s_t0}
    s_sub_u32 s{s_vg}, 2000, s{s_t1}
    s_lshr_b32 s{s_vg}, s{s_vg}, 3
    s_min_u32 s{s_vg}, s{s_vg}, 16
    """)
    if "norot" in abl: a(f"s_mov_b32 s{s_kc}, 0")
    srd(a, sA, 4, 5, 512 * 4096, WS_ZT)
    srd(a, sB, 6, 7, 512 * 1024)
    a(f"s_cmp_ge_u32 s{s_wave}, 4")
    a("s_cbranch_scc1 P3_LOC_LOADER")
    V2 = Alloc(3, 256)
    va = V2(1); vb = V2(2); vt = V2(8, 2)
    fa = [V2(4, 4) for _ in range(4)]
    fb = [[V2(4, 4) for _ in range(2)] for _ in range(4)]
    acc2 = [V2(16, 4) for _ in range(2)]
    tp = V2(4, 4); vst = V2(1)
    t128_frag_addr_blk(a, va, vt, v_lane, RING + A_OFF, s_wave)
    t64_frag_addrs(a, vb, vt, v_lane, RING + B_OFF)
    ring = Ring(a, S, STAGE, s_rs, s_delta, s_neg, s_pos); ring.init()
    for b in range(2):
        for i in range(16): a(f"v_mov_b32 v{acc2[b]+i}, 0")
    def reads2(step, st):
        r = tr2(fa[st], va, 16*step*256, 256)
        for b in range(2): r += tr2(fb[st][b], vb + b, 16*step*128, 128)
        return r
    def mfmas2(st, s, par):
        return [f"v_mfma_f32_32x32x16_bf16 v[{acc2[b]}:{acc2[b]+15}], v[{fa[st]}:{fa[st]+3}], v[{fb[st][b]}:{fb[st][b]+3}], v[{acc2[b]}:{acc2[b]+15}]" for b in range(2)]
    gemm_loop2(a, NC, ring, [va, vb, vb+1], reads2, mfmas2, [4, 6], s_cnt, "L", D=2, per=3, first_hook=lambda: stamp(a, 2))
    stamp(a, 3)
    t_epilogue(acc2)
    a("s_branch P3_STORE")
    a.label("P3_LOC_LOADER")
    a(f"s_sub_u32 s{s_wave}, s{s_wave}, 4")
    t128_loader_voff(a, vo, vt_l, v_lane, 4096)
    t64_loader_voff(a, vo2, vt_l, v_lane, 1024)
    a(f"""
    s_lshl_b32 s{s_b0}, s{s_wave}, 16              ; 16 rows * 4096
    s_lshl_b32 s{s_t0}, s{s_i0}, 8                 ; 128 tokens * 2 B
    s_add_u32 s{s_b0}, s{s_b0}, s{s_t0}
    s_lshl_b32 s{s_b1}, s{s_wave}, 14
    s_lshl_b32 s{s_t0}, s{s_i1}, 7
    s_add_u32 s{s_b1}, s{s_b1}, s{s_t0}
    s_lshl_b32 s{s_l0}, s{s_wave}, 12              ; 16 rows * 256 B
    s_lshl_b32 s{s_l1}, s{s_wave}, 11
    s_add_u32 s{s_l1}, s{s_l1}, {B_OFF}
    """)
    streams = [
        Stream(sA, [vo]*4, [i*4*4096 for i in range(4)], [A_OFF + i*1024 for i in range(4)], s_b0, 64*4096, s_l0),
        Stream(sB, [vo2]*2, [0, 8*1024], [0, 1024], s_b1, 64*1024, s_l1),
    ]
    stamp(a, 2)
    loader_loop(a, streams, NC, S, STAGE, s_kc, s_slot, s_cnt, s_t0, s_t1, s_t2, lds_base=RING, ahead=3)
    stamp(a, 3)
    a("s_barrier")
    a("s_barrier")
    a.label("P3_STORE")
    store_T_tile(a, sO, s_ob, None, s_vg)
    if STAMPS_ON():
        a("s_waitcnt vmcnt(0)")
    stamp(a, 6)
    stamp_flush(a, 58)
    a.label(END)
    a("s_endpgm")
    return a.text(), dict(name=name, vgpr=max(V.hi, V2.hi, 64), sgpr=100, lds=LDS3, grid=256, block=512)


def gen_p3b(name="p3b_kernel"):
    a = Asm('p3b_')
    END = "P3B_END"
    sM, sO, sD = 8, 12, 16
    s_wave, s_xcd, s_idx, s_t0, s_t1, s_t2, s_c, s_b = 36, 37, 38, 42, 43, 44, 45, 46
    v_lane = 2
    prologue(a, END, [(4, 'ws'), (6, 'dw_merge')], s_wave, s_xcd, s_idx, 3)
    stamp_init(a, 4, 5, 3)
    srd(a, sM, 4, 5, 1024 * 4096, WS_MT)
    srd(a, sO, 4, 5, 1024 * 4096, WS_MPT)
    srd(a, sD, 6, 7, 31 * 2048)
    WP = 0
    a(f"""
    s_lshl_b32 s{s_c}, s2, 2                        ; c0 = 4*wg
    s_lshr_b32 s{s_b}, s{s_wave}, 2
    s_and_b32 s{s_t0}, s{s_wave}, 3
    s_add_u32 s{s_t1}, s{s_c}, s{s_t0}              ; channel
    s_lshl_b32 s{s_t1}, s{s_t1}, 12
    s_mul_i32 s{s_t2}, s{s_b}, 2000
    s_add_u32 s47, s{s_t1}, s{s_t2}
    """)
    vB, vG = 3, 4
    a(f"""
    v_and_b32 v5, 15, v{v_lane}
    v_lshrrev_b32 v6, 4, v{v_lane}                  ; g
    v_lshlrev_b32 v7, 4, v5                         ; 16 b
    v_lshl_add_u32 v{vB}, v6, 3, v7
    v_lshl_add_u32 v{vG}, v6, 2, v7                  ; 16b + 4g
    """)
    F = 24
    R = 56
    O = 64
    for grp in range(4):
        for s in range(2):
            a(f"""
            v_add_u32 v8, {256*grp - 16 + 32*s + 4096}, v{vB}
            v_subrev_u32 v8, 4096, v8
            v_cmp_gt_u32 vcc, 1000, v8
            v_lshlrev_b32 v8, 1, v8
            v_cndmask_b32 v8, -1, v8, vcc
            buffer_load_dwordx4 v[{F+8*grp+4*s}:{F+8*grp+4*s+3}], v8, s[{sM}:{sM+3}], s47 offen
            """)
        a(f"""
        v_add_u32 v8, {256*grp}, v{vG}
        v_cmp_gt_u32 vcc, 1000, v8
        v_lshlrev_b32 v8, 1, v8
        v_cndmask_b32 v{O+grp}, -1, v8, vcc
        buffer_load_dwordx2 v[{R+2*grp}:{R+2*grp+1}], v{O+grp}, s[{sM}:{sM+3}], s47 offen
        """)
    a(f"s_lshl_b32 s{s_t2}, s{s_c}, 1")
    build_filter_table(a, sD, s_t2, 4, 2048, WP, 72, s_t0)
    a("s_waitcnt lgkmcnt(0)")
    a("s_barrier")
    vT = 9
    conv_T_addr(a, vT, 10, v_lane, WP)
    a(f"""
    s_and_b32 s{s_t0}, s{s_wave}, 3
    s_mul_i32 s{s_t0}, s{s_t0}, {WP_CH}
    v_add_u32 v{vT}, s{s_t0}, v{vT}
    """)
    for x in conv_T_reads(12, vT, 0) + conv_T_reads(16, vT, 1): a(x)
    D = 88
    for grp in range(4):
        r = R + 2*grp; d = D + 4*grp
        a(f"""
        v_lshlrev_b32 v{d}, 16, v{r}
        v_and_b32 v{d+1}, 0xffff0000, v{r}
        v_lshlrev_b32 v{d+2}, 16, v{r+1}
        v_and_b32 v{d+3}, 0xffff0000, v{r+1}
        """)
    a("s_waitcnt lgkmcnt(0)")
    for s in range(2):
        for grp in range(4):
            d = D + 4*grp
            a(f"v_mfma_f32_16x16x32_bf16 v[{d}:{d+3}], v[{12+4*s}:{12+4*s+3}], v[{F+8*grp+4*s}:{F+8*grp+4*s+3}], v[{d}:{d+3}]")
    for grp in range(4):
        d = D + 4*grp; r = R + 2*grp
        a(f"v_cvt_pk_bf16_f32 v{r}, v{d}, v{d+1}")
        a(f"v_cvt_pk_bf16_f32 v{r+1}, v{d+2}, v{d+3}")
        a(f"buffer_store_dwordx2 v[{r}:{r+1}], v{O+grp}, s[{sO}:{sO+3}], s47 offen")
    if STAMPS_ON():
        a("s_waitcnt vmcnt(0)")
    stamp(a, 6)
    stamp_flush(a, 58)
    a.label(END)
    a("s_endpgm")
    return a.text(), dict(name=name, vgpr=108, sgpr=100, lds=2048, grid=256, block=512)


def gen_p4(name="p4_kernel", abl=(), phase=4):
    a = Asm('p4_')
    END = "P4_END"
    sA, sB, sO, sX = 8, 12, 16, 20
    s_wave, s_i0, s_i1, s_kc, s_slot, s_cnt, s_t0, s_t1, s_t2 = 36, 37, 38, 39, 40, 41, 42, 43, 44
    s_b0, s_b1, s_l0, s_l1 = 45, 46, 48, 49
    s_delta, s_neg, s_pos, s_rs = 52, 56, 57, 53
    s_xcd, s_idx, s_wn, s_wt = 47, 50, 24, 25
    v_lane = 2
    A_OFF, B_OFF, STAGE, S, NC = 0, 98304, 8192, 8, 16
    NRES = 12
    prologue(a, END, [(4, 'ws'), (6, 'w_merge'), (32, 'x'), (34, 'out')], s_wave, s_xcd, s_idx, 4)
    stamp_init(a, 4, 5, phase)
    a(f"""
    s_lshr_b32 s{s_t0}, s{s_idx}, 3
    s_lshl_b32 s{s_i0}, s{s_xcd}, 2
    s_add_u32 s{s_i0}, s{s_i0}, s{s_t0}
    s_and_b32 s{s_i1}, s{s_idx}, 7                 ; nt
    s_lshl_b32 s{s_t0}, s{s_t0}, 2
    s_lshl_b32 s{s_kc}, s{s_i1}, 1
    s_add_u32 s{s_kc}, s{s_kc}, s{s_t0}
    s_and_b32 s{s_kc}, s{s_kc}, 15
    """)
    if "norot" in abl: a(f"s_mov_b32 s{s_kc}, 0")
    srd(a, sA, 6, 7, 1024 * 1024)
    srd(a, sB, 4, 5, 1024 * 4096, WS_MPT)
    srd(a, sO, 34, 35, 2000 * 1024)
    srd(a, sX, 32, 33, 2000 * 1024)
    a(f"""
    v_lshrrev_b32 v4, 3, v0
    v_and_b32 v5, 7, v0
    v_lshlrev_b32 v5, 4, v5
    v_lshl_add_u32 v70, v4, 10, v5
    s_lshl_b32 s{s_t1}, s{s_i0}, 16              ; tt*64*1024
    s_lshl_b32 s{s_t2}, s{s_i1}, 7
    s_add_u32 s26, s{s_t1}, s{s_t2}
    """)
    a(f"s_cmp_ge_u32 s{s_wave}, 4")
    a("s_cbranch_scc1 P4_LOADER")
    V = Alloc(3, 68)
    va = V(1); vb = V(1); vt = V(8, 2)
    fa = [V(4, 4) for _ in range(4)]
    fb = [V(4, 4) for _ in range(4)]
    acc = V(16, 4)
    vst = V(1)
    a(f"s_and_b32 s{s_wn}, s{s_wave}, 1")
    a(f"s_lshr_b32 s{s_wt}, s{s_wave}, 1")
    t64_frag_addr_blk(a, va, vt, v_lane, A_OFF, s_wn, s_t0)
    t64_frag_addr_blk(a, vb, vt, v_lane, B_OFF, s_wt, s_t0)
    class Ring2(Ring):
        nb = 0
        def bump(self, regs):
            Ring.bump(self, regs)
            self.nb += 1
            d = 8192 if self.nb != NRES else -(NRES - 1) * 8192
            a(f"v_add_u32 v{va}, {d & 0xffffffff}, v{va}")
    ring = Ring2(a, S, STAGE, s_rs, s_delta, s_neg, s_pos); ring.init()
    for i in range(16): a(f"v_mov_b32 v{acc+i}, 0")
    def reads(step, st):
        return tr2(fa[st], va, 16*step*128, 128) + tr2(fb[st], vb, 16*step*128, 128)
    def mfmas(st, s, par):
        return [f"v_mfma_f32_32x32x16_bf16 v[{acc}:{acc+15}], v[{fa[st]}:{fa[st]+3}], v[{fb[st]}:{fb[st]+3}], v[{acc}:{acc+15}]"]
    grid_wait(a, 2, vt, v_lane)
    gemm_loop2(a, NC, ring, [vb], reads, mfmas, [4], s_cnt, "M", D=4, per=4, first_hook=lambda: stamp(a, 2), full=True)
    stamp(a, 3)
    a(f"""
    v_and_b32 v{vt}, 31, v{v_lane}
    s_lshl_b32 s{s_t0}, s{s_wt}, 5
    v_add_u32 v{vt}, s{s_t0}, v{vt}
    v_mul_u32_u24 v{vst}, 272, v{vt}
    s_lshl_b32 s{s_t0}, s{s_wn}, 7
    v_add_u32 v{vst}, s{s_t0}, v{vst}
    v_lshrrev_b32 v{vt+1}, 5, v{v_lane}
    v_lshl_add_u32 v{vst}, v{vt+1}, 4, v{vst}
    s_barrier
    """)
    for r in range(4):
        a(f"ds_write_b128 v{vst}, v[{acc+4*r}:{acc+4*r+3}] offset:{32*r}")
    a("s_waitcnt lgkmcnt(0)")
    a("s_barrier")
    a("s_branch P4_STORE")
    a.label("P4_LOADER")
    vo, vo2, vt_l = 3, 4, 8
    a(f"s_sub_u32 s{s_wave}, s{s_wave}, 4")
    t64_loader_voff(a, vo, vt_l, v_lane, 1024)
    t64_loader_voff(a, vo2, vt_l, v_lane, 4096)
    a(f"""
    s_lshl_b32 s{s_b0}, s{s_wave}, 14              ; 16 rows * 1024
    s_lshl_b32 s{s_t0}, s{s_i1}, 7
    s_add_u32 s{s_b0}, s{s_b0}, s{s_t0}
    s_lshl_b32 s{s_b1}, s{s_wave}, 16              ; 16 rows * 4096
    s_lshl_b32 s{s_t0}, s{s_i0}, 7                 ; 64 tokens * 2 B
    s_add_u32 s{s_b1}, s{s_b1}, s{s_t0}
    s_lshl_b32 s{s_l0}, s{s_wave}, 11
    s_mov_b32 s{s_l1}, s{s_l0}
    """)
    issued = []
    def issueW(kc):
        for j in range(2):
            a(f"s_add_u32 m0, s{s_l0}, {A_OFF + (kc % NRES)*8192 + j*1024}")
            a(f"s_add_u32 s{s_t2}, s{s_b0}, {kc*64*1024 + j*8*1024}")
            a(f"buffer_load_dwordx4 v{vo}, s[{sA}:{sA+3}], s{s_t2} offen lds")
            issued.append(("W", kc))
    def issueA(c):
        for j in range(2):
            a(f"s_add_u32 m0, s{s_l0}, {B_OFF + (c % S)*8192 + j*1024}")
            a(f"s_add_u32 s{s_t2}, s{s_b1}, {c*64*4096 + j*8*4096}")
            a(f"buffer_load_dwordx4 v{vo2}, s[{sB}:{sB+3}], s{s_t2} offen {common.SCF} lds")
            issued.append(("A", c))
    def wait_for(tag):
        last = max(i for i, t in enumerate(issued) if t == tag)
        a(f"s_waitcnt vmcnt({len(issued) - 1 - last})")
    for kc in range(NRES): issueW(kc)
    grid_wait(a, 2, 12, v_lane)
    stamp(a, 2)
    AH = 6
    for c in range(AH): issueA(c)
    wait_for(("A", 0))
    a("s_barrier")
    for c in range(NC - 1):
        if c + AH < NC: issueA(c + AH)
        if 2 <= c < 2 + (NC - NRES): issueW(NRES + c - 2)
        wait_for(("A", c + 1))
        a("s_barrier")
    stamp(a, 3)
    a("s_barrier")
    a("s_barrier")
    a.label("P4_STORE")
    a(f"""
    buffer_load_dwordx4 v[20:23], v70, s[{sX}:{sX+3}], s26 offen
    v_lshrrev_b32 v4, 3, v0
    v_and_b32 v5, 7, v0
    v_mul_u32_u24 v6, 272, v4
    v_lshl_add_u32 v6, v5, 5, v6
    ds_read_b128 v[8:11], v6
    ds_read_b128 v[12:15], v6 offset:16
    s_waitcnt vmcnt(0) lgkmcnt(0)
    """)
    for i in range(4):
        a(f"""
        v_lshlrev_b32 v24, 16, v{20+i}
        v_and_b32 v25, 0xffff0000, v{20+i}
        v_add_f32 v24, v24, v{8+2*i}
        v_add_f32 v25, v25, v{9+2*i}
        v_cvt_pk_bf16_f32 v{20+i}, v24, v25
        """)
    a(f"buffer_store_dwordx4 v[20:23], v70, s[{sO}:{sO+3}], s26 offen")
    if STAMPS_ON():
        a("s_waitcnt vmcnt(0)")
    stamp(a, 6)
    stamp_flush(a, 58)
    a.label(END)
    if common.PERS: pers_finish(a)
    a("s_endpgm")
    return a.text(), dict(name=name, vgpr=72, sgpr=100, lds=163840, grid=256, block=512)
```

```python
from asm import *

KA = dict(x=0, w_qkv=8, w_att_out=16, w_mlp_in=24, dw_csgu=32, w_mlp_out=40, dw_merge=48, w_merge=56, out=64, dbg=72, ws=80)

MB = 1 << 20
WS_QKV = 0
WS_UG  = 6 * MB
WS_GST = 10 * MB
WS_SST = 10 * MB + 256 * 1024
WS_RST = 10 * MB + 512 * 1024
WS_CSP = 10 * MB + 640 * 1024
WS_PT  = 11 * MB
WS_VP  = 15 * MB
WS_ZT  = 17 * MB
WS_MT  = 19 * MB
WS_MPT = 23 * MB
WS_END = 27 * MB

def srd(a, d, base_lo, base_hi, size, off=0):
    if off:
        a(f"s_add_u32 s{d}, s{base_lo}, {off}")
        a(f"s_addc_u32 s{d+1}, s{base_hi}, 0")
    else:
        a(f"s_mov_b32 s{d}, s{base_lo}")
        a(f"s_mov_b32 s{d+1}, s{base_hi}")
    a(f"s_mov_b32 s{d+2}, {size}")
    a(f"s_mov_b32 s{d+3}, 0x20000")

def interleave(a, mfmas, fillers, lead=0):
    f = list(fillers)
    for x in f[:lead]: a(x)
    f = f[lead:]
    n = len(mfmas)
    per = [len(f) // n + (1 if i < len(f) % n else 0) for i in range(n)]
    k = 0
    for i, m in enumerate(mfmas):
        a(m)
        for x in f[k:k + per[i]]: a(x)
        k += per[i]

KD = """.amdhsa_kernel {name}
  .amdhsa_next_free_vgpr {vgpr}
  .amdhsa_next_free_sgpr {sgpr}
  .amdhsa_accum_offset {acc}
  .amdhsa_group_segment_fixed_size 0
  .amdhsa_kernarg_size 88
  .amdhsa_user_sgpr_count 2
  .amdhsa_user_sgpr_kernarg_segment_ptr 1
  .amdhsa_system_sgpr_workgroup_id_x 1
.end_amdhsa_kernel
"""

class Stream:
    def __init__(self, srd, voffs, soff_imm, lds_imm, s_base, inc, s_lds, dep=False):
        self.srd = srd; self.voffs = voffs; self.soff_imm = soff_imm; self.lds_imm = lds_imm
        self.s_base = s_base; self.inc = inc; self.s_lds = s_lds
        self.dep = dep
    @property
    def n(self): return len(self.voffs)

def issue_chunk(a, streams, s_kc, s_slot, s_t0, s_t1, s_t2, flags=""):
    for st in streams:
        a(f"s_mul_i32 s{s_t0}, s{s_kc}, {st.inc}")
        a(f"s_add_u32 s{s_t0}, s{s_t0}, s{st.s_base}")
        a(f"s_add_u32 s{s_t1}, s{s_slot}, s{st.s_lds}")
        for v, so, lo in zip(st.voffs, st.soff_imm, st.lds_imm):
            if lo: a(f"s_add_u32 m0, s{s_t1}, {lo}")
            else:  a(f"s_mov_b32 m0, s{s_t1}")
            if so:
                a(f"s_add_u32 s{s_t2}, s{s_t0}, {so}")
                a(f"buffer_load_dwordx4 v{v}, s[{st.srd}:{st.srd+3}], s{s_t2} offen lds {flags}".rstrip())
            else:
                a(f"buffer_load_dwordx4 v{v}, s[{st.srd}:{st.srd+3}], s{s_t0} offen lds {flags}".rstrip())

def dma_list(streams, s_kc, s_slot, s_t0, s_t1, s_t2, flags=""):
    groups = []
    for st in streams:
        pre = [f"s_mul_i32 s{s_t0}, s{s_kc}, {st.inc}",
               f"s_add_u32 s{s_t0}, s{s_t0}, s{st.s_base}",
               f"s_add_u32 s{s_t1}, s{s_slot}, s{st.s_lds}"]
        for v, so, lo in zip(st.voffs, st.soff_imm, st.lds_imm):
            g = pre; pre = []
            g.append(f"s_add_u32 m0, s{s_t1}, {lo}" if lo else f"s_mov_b32 m0, s{s_t1}")
            if so:
                g.append(f"s_add_u32 s{s_t2}, s{s_t0}, {so}")
                g.append(f"buffer_load_dwordx4 v{v}, s[{st.srd}:{st.srd+3}], s{s_t2} offen {SCF if st.dep else ''} lds")
            else:
                g.append(f"buffer_load_dwordx4 v{v}, s[{st.srd}:{st.srd+3}], s{s_t0} offen {SCF if st.dep else ''} lds")
            groups.append(g)
    return groups

def loader_loop(a, streams, NC, S, stage_bytes, s_kc, s_slot, s_cnt, s_t0, s_t1, s_t2, lds_base=0,
                work=None, work_pre=None, work_post=None, ahead=2, hook=None):
    n = sum(st.n for st in streams)
    assert S >= ahead + 1 and n * ahead <= 63
    def adv():
        a(f"s_add_u32 s{s_kc}, s{s_kc}, 1")
        a(f"s_and_b32 s{s_kc}, s{s_kc}, {NC-1}")
        a(f"s_add_u32 s{s_slot}, s{s_slot}, {stage_bytes}")
        a(f"s_cmp_eq_u32 s{s_slot}, {lds_base + S*stage_bytes}")
        a(f"s_cselect_b32 s{s_slot}, {lds_base}, s{s_slot}")
    def issue(fill):
        gs = dma_list(streams, s_kc, s_slot, s_t0, s_t1, s_t2)
        per = [len(fill) // len(gs) + (1 if i < len(fill) % len(gs) else 0) for i in range(len(gs))]
        k = 0
        for g, p in zip(gs, per):
            for x in g: a(x)
            for x in fill[k:k+p]: a(x)
            k += p
        adv()
    a(f"s_mov_b32 s{s_slot}, {lds_base}")
    for i in range(ahead): issue([])
    if hook: hook()
    a(f"s_waitcnt vmcnt({n*(ahead-1)})")
    a("s_barrier")
    nst = NC - ahead
    L = a.newlabel("LD_st")
    a(f"s_mov_b32 s{s_cnt}, {nst}")
    a.label(L)
    if work_pre: work_pre()
    issue(work() if work else [])
    if work_post: work_post()
    a(f"s_waitcnt vmcnt({n*(ahead-1)})")
    a("s_barrier")
    a(f"s_sub_u32 s{s_cnt}, s{s_cnt}, 1")
    a(f"s_cmp_lg_u32 s{s_cnt}, 0")
    a(f"s_cbranch_scc1 {L}")
    for c_ in range(nst, NC):
        if work_pre: work_pre()
        if work:
            for x in work(): a(x)
        if work_post: work_post()
        if c_ < NC - 1:
            a(f"s_waitcnt vmcnt({n*(NC-2-c_)})")
            a("s_barrier")

STAMPS = False
SCF = ''
CYC = False
ST_BASE = 64
def stamp(a, idx, s_wave=None, sD=60):
    if not STAMPS: return
    b = ST_BASE + 4 * idx
    a(f"s_memrealtime s[{b}:{b+1}]")
    a(f"s_memtime s[{b+2}:{b+3}]")
    a("s_waitcnt lgkmcnt(0)")
def stamp_flush(a, s_wave, n=7, sD=60):
    if not STAMPS: return
    L = a.newlabel("ST")
    a(f"s_and_b32 s{sD-1}, s{s_wave}, 3")
    a(f"s_cmp_lg_u32 s{sD-1}, 0")
    a(f"s_cbranch_scc1 {L}")
    a(f"s_cmp_ge_u32 s{s_wave}, 8")
    a(f"s_cbranch_scc1 {L}")
    a(f"s_lshr_b32 s{sD-1}, s{s_wave}, 2")
    a(f"s_lshl_b32 s{sD-1}, s{sD-1}, 6")
    a(f"s_lshl_b32 s{sD-2}, s2, 7")
    a(f"s_add_u32 s{sD-1}, s{sD-1}, s{sD-2}")
    a("s_mov_b64 exec, 1")
    a(f"v_mov_b32 v2, s{sD-1}")
    for i in range(n):
        b = ST_BASE + 4 * i
        a(f"v_mov_b32 v{4+2*i}, s{b}")
        a(f"v_mov_b32 v{5+2*i}, s{b+2}")
    for i in range(n):
        a(f"buffer_store_dwordx2 v[{4+2*i}:{5+2*i}], v2, s[{sD}:{sD+3}], 0 offen offset:{i*8}")
    a("s_mov_b64 exec, -1")
    a.label(L)
def stamp_zero(a, n=7):
    if not STAMPS: return
    for i in range(n):
        a(f"s_mov_b32 s{ST_BASE+4*i}, 0")
        a(f"s_mov_b32 s{ST_BASE+4*i+2}, 0")
def stamp_init(a, ws_lo, ws_hi, phase, sD=60):
    if not STAMPS: return
    srd(a, sD, ws_lo, ws_hi, 256*128, WS_STAMP + phase * 32768)
WS_STAMP = 32 * MB

def r_loader_voff(a, vd, vt, v_lane, s_w, s_t, pitch):
    a(f"""
    v_lshrrev_b32 v{vt}, 3, v{v_lane}
    v_lshrrev_b32 v{vt+1}, 4, v{v_lane}
    s_and_b32 s{s_t}, s{s_w}, 1
    s_lshl_b32 s{s_t}, s{s_t}, 2
    v_add_u32 v{vt+1}, s{s_t}, v{vt+1}
    v_and_b32 v{vt+2}, 7, v{v_lane}
    v_xor_b32 v{vt+2}, v{vt+2}, v{vt+1}
    v_lshlrev_b32 v{vt+2}, 4, v{vt+2}
    v_mul_u32_u24 v{vt}, {pitch}, v{vt}
    v_add_u32 v{vd}, v{vt}, v{vt+2}
    """)
def t64_loader_voff(a, vd, vt, v_lane, pitch):
    a(f"""
    v_lshrrev_b32 v{vt}, 3, v{v_lane}
    v_bfe_u32 v{vt+1}, v{v_lane}, 4, 1
    v_lshlrev_b32 v{vt+1}, 2, v{vt+1}
    v_and_b32 v{vt+2}, 7, v{v_lane}
    v_xor_b32 v{vt+2}, v{vt+2}, v{vt+1}
    v_lshlrev_b32 v{vt+2}, 4, v{vt+2}
    v_mul_u32_u24 v{vt}, {pitch}, v{vt}
    v_add_u32 v{vd}, v{vt}, v{vt+2}
    """)
def t128_loader_voff(a, vd, vt, v_lane, pitch):
    a(f"""
    v_lshrrev_b32 v{vt}, 4, v{v_lane}
    v_lshlrev_b32 v{vt+1}, 2, v{vt}
    v_and_b32 v{vt+2}, 15, v{v_lane}
    v_xor_b32 v{vt+2}, v{vt+2}, v{vt+1}
    v_lshlrev_b32 v{vt+2}, 4, v{vt+2}
    v_mul_u32_u24 v{vt}, {pitch}, v{vt}
    v_add_u32 v{vd}, v{vt}, v{vt+2}
    """)
def r_frag_addrs(a, vd, vt, v_lane, s_rowblk, s_t, base):
    a(f"""
    v_and_b32 v{vt}, 31, v{v_lane}
    v_lshrrev_b32 v{vt+1}, 5, v{v_lane}
    v_lshrrev_b32 v{vt+2}, 1, v{vt}
    v_and_b32 v{vt+2}, 7, v{vt+2}
    v_lshlrev_b32 v{vt+3}, 7, v{vt}
    """)
    if s_rowblk is not None:
        a(f"s_lshl_b32 s{s_t}, s{s_rowblk}, 12")
        a(f"v_add_u32 v{vt+3}, s{s_t}, v{vt+3}")
    if base: a(f"v_add_u32 v{vt+3}, {base}, v{vt+3}")
    for s in range(4):
        a(f"""
        v_add_u32 v{vt+4}, {2*s}, v{vt+1}
        v_xor_b32 v{vt+4}, v{vt+4}, v{vt+2}
        v_lshl_add_u32 v{vd+s}, v{vt+4}, 4, v{vt+3}
        """)
def t_frag_common(a, vt, v_lane):
    a(f"""
    v_lshrrev_b32 v{vt}, 5, v{v_lane}
    v_lshlrev_b32 v{vt}, 3, v{vt}
    v_bfe_u32 v{vt+1}, v{v_lane}, 2, 2
    v_add_u32 v{vt}, v{vt}, v{vt+1}
    v_bfe_u32 v{vt+2}, v{v_lane}, 4, 1
    v_lshlrev_b32 v{vt+2}, 5, v{vt+2}
    v_and_b32 v{vt+3}, 3, v{v_lane}
    v_lshl_add_u32 v{vt+2}, v{vt+3}, 3, v{vt+2}
    """)
def t64_frag_addrs(a, vd, vt, v_lane, base):
    t_frag_common(a, vt, v_lane)
    a(f"""
    v_lshlrev_b32 v{vt+3}, 7, v{vt}
    v_add_u32 v{vt+3}, v{vt+3}, v{vt+2}
    v_add_u32 v{vt+3}, {base}, v{vt+3}
    v_bfe_u32 v{vt+4}, v{v_lane}, 3, 1
    v_lshlrev_b32 v{vt+4}, 6, v{vt+4}
    v_add_u32 v{vd}, v{vt+3}, v{vt+4}
    v_xor_b32 v{vt+4}, 64, v{vt+4}
    v_add_u32 v{vd+1}, v{vt+3}, v{vt+4}
    """)
def t64_frag_addr_blk(a, vd, vt, v_lane, base, s_blk, s_t):
    t_frag_common(a, vt, v_lane)
    a(f"""
    v_lshlrev_b32 v{vt+3}, 7, v{vt}
    v_add_u32 v{vt+3}, v{vt+3}, v{vt+2}
    v_add_u32 v{vt+3}, {base}, v{vt+3}
    v_bfe_u32 v{vt+4}, v{v_lane}, 3, 1
    v_xor_b32 v{vt+4}, s{s_blk}, v{vt+4}
    v_lshlrev_b32 v{vt+4}, 6, v{vt+4}
    v_add_u32 v{vd}, v{vt+3}, v{vt+4}
    """)
def t128_frag_addr_blk(a, vd, vt, v_lane, base, s_blk):
    t_frag_common(a, vt, v_lane)
    a(f"""
    v_lshlrev_b32 v{vt+3}, 8, v{vt}
    v_add_u32 v{vt+3}, v{vt+3}, v{vt+2}
    v_add_u32 v{vt+3}, {base}, v{vt+3}
    v_bfe_u32 v{vt+4}, v{v_lane}, 2, 2
    v_xor_b32 v{vt+4}, s{s_blk}, v{vt+4}
    v_lshlrev_b32 v{vt+4}, 6, v{vt+4}
    v_add_u32 v{vd}, v{vt+3}, v{vt+4}
    """)
def tr2(dst, vaddr, off, pitch):
    return [f"ds_read_b64_tr_b16 v[{dst}:{dst+1}], v{vaddr} offset:{off}",
            f"ds_read_b64_tr_b16 v[{dst+2}:{dst+3}], v{vaddr} offset:{off + 4*pitch}"]

def counted_step(a, mf, need, nxt, prev_n, per=4, extra=None):
    n = len(mf)
    k = 0; issued = 0
    for i in range(n):
        cnt = (prev_n - need[i]) + issued
        a(f"s_waitcnt lgkmcnt({min(cnt, 15)})")
        a(mf[i])
        g = nxt[k:k+per] if i < n - 1 else nxt[k:]
        for x in g: a(x); issued += 1
        k += per
        if extra and i in extra:
            for x in extra[i]: a(x)

class Ring:
    def __init__(self, a, S, stage, s_rs, s_delta, s_neg, s_pos):
        self.a, self.S, self.stage = a, S, stage
        self.s_rs, self.s_delta, self.s_neg, self.s_pos = s_rs, s_delta, s_neg, s_pos
    def init(self):
        a = self.a
        a(f"s_mov_b32 s{self.s_rs}, 0")
        a(f"s_mov_b32 s{self.s_neg}, {(-(self.S-1)*self.stage) & 0xffffffff}")
        a(f"s_mov_b32 s{self.s_pos}, {self.stage}")
    def bump(self, regs):
        a = self.a
        a(f"s_add_u32 s{self.s_rs}, s{self.s_rs}, {self.stage}")
        a(f"s_cmp_eq_u32 s{self.s_rs}, {self.S*self.stage}")
        a(f"s_cselect_b32 s{self.s_delta}, s{self.s_neg}, s{self.s_pos}")
        a(f"s_cselect_b32 s{self.s_rs}, 0, s{self.s_rs}")
        for r in regs: a(f"v_add_u32 v{r}, s{self.s_delta}, v{r}")

def gemm_mainloop(a, NC, ring, addr_regs, reads, mfmas, need, s_cnt, tag, per=4, chunk_hook=None, first_hook=None):
    nr = len(reads(0, 0))
    def chunk(last, par):
        for s in range(4):
            st = s & 1
            if s == 3 and not last:
                a("s_waitcnt lgkmcnt(0)")
                a("s_barrier")
                ring.bump(addr_regs)
            nxt = [] if (s == 3 and last) else reads((s + 1) & 3, st ^ 1)
            ex = chunk_hook(s, last, par) if chunk_hook else None
            counted_step(a, mfmas(st, s, par), need, nxt, nr, per=per, extra=ex)
    a("s_barrier")
    if first_hook: first_hook()
    for x in reads(0, 0): a(x)
    return chunk

def gemm_loop2(a, NC, ring, addr_regs, reads, mfmas, need, s_cnt, tag, D=2, per=4, hook=None, first_hook=None, unroll=1, pre_loop=None,
               full=False, chunk_pre=None):
    nsets = 2 if D == 1 else 4
    nr = len(reads(0, 0))
    def chunk(ci, last):
        for s in range(4):
            st = s % nsets
            if s == (4 - D) % 4 and not last and (D < 4 or True):
                a("s_barrier")
                ring.bump(addr_regs)
            tgt = s + D
            if last and tgt >= 4: nxt = []
            else: nxt = reads(tgt % 4, tgt % nsets)
            ex = hook(ci, s, last) if hook else None
            mf = mfmas(st, s, ci)
            n = len(mf); k = 0; issued = 0
            for i in range(n):
                later = 0
                for j in range(1, D):
                    if not (last and s + j >= 4): later += nr
                cnt = (nr - need[i]) + later + issued
                a(f"s_waitcnt lgkmcnt({min(cnt, 15)})")
                a(mf[i])
                g = nxt[k:k+per] if i < n - 1 else nxt[k:]
                for x in g: a(x); issued += 1
                k += per
                if ex and i in ex:
                    for x in ex[i]: a(x)
    a("s_barrier")
    if first_hook: first_hook()
    for s in range(D):
        for x in reads(s, s % nsets): a(x)
    if pre_loop: pre_loop()
    if full:
        for ci in range(NC):
            if chunk_pre: chunk_pre(ci)
            chunk(ci, ci == NC - 1)
        return
    nloop = (NC - 1) // unroll
    rem = (NC - 1) - nloop * unroll
    if nloop > 0:
        L = a.newlabel(f"{tag}_loop")
        a(f"s_mov_b32 s{s_cnt}, {nloop}")
        a.label(L)
        for u in range(unroll): chunk(u, False)
        a(f"s_sub_u32 s{s_cnt}, s{s_cnt}, 1")
        a(f"s_cmp_lg_u32 s{s_cnt}, 0")
        a(f"s_cbranch_scc1 {L}")
    for u in range(rem): chunk(u, False)
    chunk(rem % unroll, True)


PERS = False
WS_FLAGS = 30 * MB
WS_EPOCH = 30 * MB + 4 * 32768
S_EXP, S_FL = 3, 92

def pers_init(a):
    a(f"s_load_dwordx2 s[96:97], s[0:1], {KA['ws']}")

def pers_init2(a):
    if not PERS: return
    a(f"s_add_u32 s{S_FL}, s96, {WS_FLAGS}")
    a(f"s_addc_u32 s{S_FL+1}, s97, 0")
    a(f"s_mov_b32 s{S_FL+2}, {5*32768}")
    a(f"s_mov_b32 s{S_FL+3}, 0x20000")
    a(f"s_add_u32 s96, s96, {WS_EPOCH}")
    a(f"s_addc_u32 s97, s97, 0")
    a(f"s_load_dword s{S_EXP}, s[96:97], 0")

def pers_init3(a):
    if not PERS: return
    a("s_waitcnt lgkmcnt(0)")
    a(f"s_add_u32 s{S_EXP}, s{S_EXP}, 1")

AGG = True
FL_STRIDE = 32768
EPOCH_OFF = 4 * FL_STRIDE
S_FID = 101

def grid_arrive(a, p):
    if not PERS: return
    L = a.newlabel("arr")
    a("s_waitcnt vmcnt(0) lgkmcnt(0)")
    a("s_barrier")
    a("v_lshrrev_b32 v1, 6, v0")
    a("s_nop 0")
    a("v_readfirstlane_b32 s96, v1")
    a("s_cmp_lg_u32 s96, 0")
    a(f"s_cbranch_scc1 {L}")
    a(f"s_cmp_eq_u32 s{S_FID}, -1")
    a(f"s_cbranch_scc1 {L}")
    a(f"s_lshl_b32 s96, s{S_FID}, 7")
    a(f"s_add_u32 s96, s96, {p*FL_STRIDE}")
    a(f"v_mov_b32 v1, s{S_EXP}")
    a("v_mov_b32 v2, 0")
    a("s_mov_b64 exec, 1")
    a(f"buffer_store_dword v1, v2, s[{S_FL}:{S_FL+3}], s96 offen sc1")
    a("s_mov_b64 exec, -1")
    a.label(L)

def dep_wait(a, p, v, lane, idx_code):
    if not PERS: return
    if idx_code is None:
        a("s_barrier")
        return
    Ld = a.newlabel("gwd"); L = a.newlabel("gw")
    a("s_cmp_lg_u32 s58, 0")
    a(f"s_cbranch_scc1 {Ld}")
    idx_code(v)
    a(f"v_lshlrev_b32 v{v}, 7, v{v}")
    a(f"s_mov_b32 s97, {p*FL_STRIDE}")
    a("s_mov_b32 s96, 0x200000")
    a.label(L)
    a(f"buffer_load_dword v{v+1}, v{v}, s[{S_FL}:{S_FL+3}], s97 offen sc1")
    a("s_waitcnt vmcnt(0)")
    a(f"v_cmp_ne_u32 vcc, s{S_EXP}, v{v+1}")
    a("s_sub_u32 s96, s96, 1")
    a("s_cmp_eq_u32 s96, 0")
    a(f"s_cbranch_scc1 {Ld}")
    a(f"s_cbranch_vccnz {L}")
    a.label(Ld)
    a("s_barrier")

def epoch_bump(a, lane):
    L = a.newlabel("eb"); Ld = a.newlabel("ebd"); Lx = a.newlabel("ebx")
    a("s_cmp_lg_u32 s58, 0")
    a(f"s_cbranch_scc1 {Lx}")
    a(f"v_lshlrev_b32 v4, 7, v{lane}")
    for i in range(1, 4): a(f"v_add_u32 v{4+i}, {64*128*i}, v4")
    a("s_mov_b32 s96, 0x200000")
    a.label(L)
    for i in range(4): a(f"buffer_load_dword v{8+i}, v{4+i}, s[{S_FL}:{S_FL+3}], 0 offen sc1")
    a("s_waitcnt vmcnt(0)")
    for i in range(4): a(f"v_xor_b32 v{8+i}, s{S_EXP}, v{8+i}")
    a("v_or_b32 v8, v8, v9")
    a("v_or_b32 v10, v10, v11")
    a("v_or_b32 v8, v8, v10")
    a("v_cmp_ne_u32 vcc, 0, v8")
    a("s_sub_u32 s96, s96, 1")
    a("s_cmp_eq_u32 s96, 0")
    a(f"s_cbranch_scc1 {Ld}")
    a(f"s_cbranch_vccnz {L}")
    a.label(Ld)
    a(f"v_mov_b32 v8, s{S_EXP}")
    a("v_mov_b32 v9, 0")
    a(f"s_mov_b32 s97, {EPOCH_OFF}")
    a("s_mov_b64 exec, 1")
    a(f"buffer_store_dword v8, v9, s[{S_FL}:{S_FL+3}], s97 offen sc1")
    a("s_mov_b64 exec, -1")
    a.label(Lx)
```

```python
from common import *
import common, struct
def STAMPS_ON(): return common.STAMPS
def f2u(x): return struct.unpack("<I", struct.pack("<f", x))[0]

X_OFF, WQ_OFF, WM_OFF, STAGE = 0, 16384, 16384 + 12288, 36864
S1, NC1 = 4, 8
T_RSTD, T_NMR, T_CS, T_CS4 = 0, 512, 1024, 1536
RING = 2048
LDS1 = RING + S1 * STAGE
STG_Q, PQ = RING, 208
STG_M, PM = RING + 128 * 208, 272
STG_P = STG_M + 64 * 272

LOG2E = 1.4426950408889634
kA = -2.0 * 0.7978845608028654 * LOG2E
kB = kA * 0.044715

def gen_p1(name="p1_kernel", abl=()):
    SC = common.SCF
    a = Asm('p1_')
    END = "P1_END"
    sX, sWQ, sWM, sQKV, sUG, sGS = 8, 12, 16, 20, 24, 28
    s_wave, s_rt, s_ct, s_kc, s_slot, s_cnt, s_t0, s_t1, s_t2 = 36, 37, 38, 39, 40, 41, 42, 43, 44
    s_bx, s_bq, s_bm, s_lx, s_lq, s_lm = 45, 46, 47, 48, 49, 50
    s_ones, s_delta, s_neg, s_pos, s_rs = 51, 52, 56, 57, 53
    v_lane = 2
    a(f"""
    s_cmp_ge_u32 s2, 256
    s_cbranch_scc1 {END}
    s_load_dwordx2 s[4:5], s[0:1], {KA['x']}
    s_load_dwordx2 s[6:7], s[0:1], {KA['w_qkv']}
    s_load_dwordx2 s[32:33], s[0:1], {KA['w_mlp_in']}
    s_load_dwordx2 s[34:35], s[0:1], {KA['ws']}
    """)
    stamp_zero(a)
    if STAMPS_ON():
        a("s_memrealtime s[64:65]")
        a("s_memtime s[66:67]")
    a(f"""
    v_lshrrev_b32 v1, 6, v0
    v_and_b32 v2, 63, v0
    v_readfirstlane_b32 s{s_wave}, v1
    s_and_b32 s{s_t0}, s2, 7
    s_lshr_b32 s{s_t1}, s2, 3
    s_lshr_b32 s{s_rt}, s{s_t0}, 1
    s_lshl_b32 s{s_rt}, s{s_rt}, 2
    s_and_b32 s{s_t2}, s{s_t1}, 3
    s_add_u32 s{s_rt}, s{s_rt}, s{s_t2}
    s_and_b32 s{s_ct}, s{s_t0}, 1
    s_lshl_b32 s{s_ct}, s{s_ct}, 3
    s_lshr_b32 s{s_kc}, s{s_t1}, 2
    s_add_u32 s{s_ct}, s{s_ct}, s{s_kc}
    s_lshr_b32 s{s_kc}, s{s_rt}, 1
    s_mov_b32 s58, s{s_wave}
    s_cmp_ge_u32 s{s_wave}, 4
    s_cbranch_scc1 P1_LOADER
    """)
    def out_srds():
        srd(a, sQKV, 34, 35, 2000 * 3072, WS_QKV)
        srd(a, sUG, 34, 35, 1024 * 4096, WS_UG)
        srd(a, sGS, 34, 35, 8 * 2 * 2048 * 4, WS_GST)
        stamp_init(a, 34, 35, 0)
    ring = Ring(a, S1, STAGE, s_rs, s_delta, s_neg, s_pos)

    V = Alloc(3, 256)
    vxa = V(4); vwq = V(1); vwm = V(2)
    vt = V(8, 2)
    fbase = V(48, 4)
    fx = [fbase, fbase + 4]
    fw = [[fbase + 8 + 20*st + 4*b for b in range(5)] for st in range(2)]
    acc = [V(16, 4) for _ in range(5)]
    csa = V(8, 4); vones = V(2, 2)
    xr = V(8, 4)
    ga = V(20, 4)
    sRS, sCP = 8, 12
    s_T = 59 if False else 45
    r_frag_addrs(a, vxa, vt, v_lane, s_wave, s_t0, RING + X_OFF)
    a(f"""
    s_lshl_b32 s{s_t0}, s{s_rt}, 7
    s_lshl_b32 s{s_t1}, s{s_ct}, 3
    s_add_u32 s{s_t0}, s{s_t0}, s{s_t1}
    s_lshl_b32 s{s_t1}, s{s_wave}, 1
    s_add_u32 s46, s{s_t0}, s{s_t1}
    s_lshl_b32 s{s_t1}, s46, 10
    v_lshlrev_b32 v{vt}, 4, v{v_lane}
    s_lshl_b32 s{s_T}, s{s_rt}, 4
    s_add_u32 s{s_T}, s{s_T}, s{s_ct}
    s_waitcnt lgkmcnt(0)
    """)
    srd(a, 16, 4, 5, 2000 * 1024)
    a(f"buffer_load_dwordx4 v[{xr}:{xr+3}], v{vt}, s[16:19], s{s_t1} offen")
    a(f"s_add_u32 s{s_t1}, s{s_t1}, 1024")
    a(f"buffer_load_dwordx4 v[{xr+4}:{xr+7}], v{vt}, s[16:19], s{s_t1} offen")
    srd(a, sRS, 34, 35, 2048 * 8, WS_RST)
    srd(a, sCP, 34, 35, 16 * 16 * 160 * 4, WS_CSP)
    pers_init2(a)
    out_srds()
    t_frag_common(a, vt, v_lane)
    a(f"""
    v_mul_u32_u24 v{vwq}, 192, v{vt}
    v_add_u32 v{vwq}, v{vwq}, v{vt+2}
    v_add_u32 v{vwq}, {RING}, v{vwq}
    """)
    t64_frag_addrs(a, vwm, vt, v_lane, RING)
    ring.init()
    for b in range(5):
        for i in range(16): a(f"v_mov_b32 v{acc[b]+i}, 0")
    for i in range(8): a(f"v_mov_b32 v{csa+i}, 0")
    a(f"v_mov_b32 v{vones}, 0x3f803f80")
    a(f"v_mov_b32 v{vones+1}, 0x3f803f80")
    a(f"s_mov_b32 s{s_ones}, 0x3f803f80")
    R = ga
    for i in range(4): a(f"v_mov_b32 v{R+i}, 0")
    a("s_waitcnt vmcnt(0)")
    for i in range(4):
        a(f"v_dot2_f32_bf16 v{R}, v{xr+i}, s{s_ones}, v{R}")
        a(f"v_dot2_f32_bf16 v{R+1}, v{xr+i}, v{xr+i}, v{R+1}")
        a(f"v_dot2_f32_bf16 v{R+2}, v{xr+4+i}, s{s_ones}, v{R+2}")
        a(f"v_dot2_f32_bf16 v{R+3}, v{xr+4+i}, v{xr+4+i}, v{R+3}")
    a(f"""
    s_nop 2
    v_permlane32_swap_b32 v{R}, v{R+1}
    v_permlane32_swap_b32 v{R+2}, v{R+3}
    v_add_f32 v{R}, v{R}, v{R+1}
    v_add_f32 v{R+2}, v{R+2}, v{R+3}
    s_nop 1
    v_permlane16_swap_b32 v{R}, v{R+2}
    v_add_f32 v{R}, v{R}, v{R+2}
    s_nop 1
    v_add_f32_dpp v{R}, v{R}, v{R} row_ror:8 row_mask:0xf bank_mask:0xf
    s_nop 1
    v_add_f32_dpp v{R}, v{R}, v{R} row_ror:4 row_mask:0xf bank_mask:0xf
    s_nop 1
    v_add_f32_dpp v{R}, v{R}, v{R} row_ror:2 row_mask:0xf bank_mask:0xf
    s_nop 1
    v_add_f32_dpp v{R}, v{R}, v{R} row_ror:1 row_mask:0xf bank_mask:0xf
    v_mov_b32 v{R+1}, v{R}
    s_nop 1
    v_permlane32_swap_b32 v{R}, v{R+1}
    v_mul_f32 v{R}, 0x3b000000, v{R}                ; mean
    v_mul_f32 v{R+1}, 0x3b000000, v{R+1}            ; E[x^2]
    v_fma_f32 v{R+1}, -v{R}, v{R}, v{R+1}
    v_max_f32 v{R+1}, 0, v{R+1}
    v_add_f32 v{R+1}, 0x3727c5ac, v{R+1}
    v_rsq_f32 v{R+2}, v{R+1}
    v_mul_f32 v{R+3}, -1.0, v{R}
    v_bfe_u32 v{R+4}, v{v_lane}, 4, 1
    v_mul_f32 v{R+3}, v{R+3}, v{R+2}
    v_add_u32 v{R+4}, s46, v{R+4}
    v_lshlrev_b32 v{R+4}, 3, v{R+4}
    v_and_b32 v{R+5}, 0x2f, v{v_lane}
    v_cmp_eq_u32 vcc, 0, v{R+5}
    s_and_saveexec_b64 s[54:55], vcc
    buffer_store_dwordx2 v[{R+2}:{R+3}], v{R+4}, s[{sRS}:{sRS+3}], 0 offen sc1
    s_mov_b64 exec, s[54:55]
    """)
    def reads(step, st):
        r = [f"ds_read_b128 v[{fx[st]}:{fx[st]+3}], v{vxa+step}"]
        for b in range(3): r += tr2(fw[st][b], vwq, WQ_OFF + 16*step*192 + 64*b, 192)
        for b in range(2): r += tr2(fw[st][3+b], vwm + b, WM_OFF + 16*step*128, 128)
        return r
    def mfmas(st, s, ci):
        m = []
        if "nomfma" in abl: return ["s_nop 0"] * 5
        for b in range(3):
            m.append(f"v_mfma_f32_32x32x16_bf16 v[{acc[b]}:{acc[b]+15}], v[{fw[st][b]}:{fw[st][b]+3}], v[{fx[st]}:{fx[st]+3}], v[{acc[b]}:{acc[b]+15}]")
        for b in range(3, 5):
            m.append(f"v_mfma_f32_32x32x16_bf16 v[{acc[b]}:{acc[b]+15}], v[{fx[st]}:{fx[st]+3}], v[{fw[st][b]}:{fw[st][b]+3}], v[{acc[b]}:{acc[b]+15}]")
        return m
    T4 = "v_mfma_f32_4x4x4_16b_bf16"
    def colsum(dst, f): return f"{T4} v[{dst}:{dst+3}], v[{vones}:{vones+1}], v[{f}:{f+1}], v[{dst}:{dst+3}]"
    def hook(ci, s, last):
        if ci != 0: return None
        st = s & 1
        L = a.newlabel("slab")
        ex = [f"s_and_b32 s{s_t0}, s{s_rt}, 1", f"s_cmp_lg_u32 s{s_t0}, {s >> 1}", f"s_cbranch_scc1 {L}"]
        for w in range(4):
            Lw = a.newlabel("slabw")
            f = fw[st][w]
            ex += [f"s_cmp_lg_u32 s{s_wave}, {w}", f"s_cbranch_scc1 {Lw}", colsum(csa, f)]
            if w == 0: ex += [colsum(csa + 4, fw[st][4]), "s_nop 0", colsum(csa, f + 2), colsum(csa + 4, fw[st][4] + 2)]
            else: ex += ["s_nop 1", colsum(csa, f + 2)]
            ex += [f"{Lw}:"]
        ex += [f"{L}:"]
        return {4: ex}
    G2 = ga + 8
    def chunk_pre(ci):
        if ci == 1:
            a(f"""
            v_mov_b32 v{csa+1}, v{csa}
            v_mov_b32 v{csa+5}, v{csa+4}
            s_nop 1
            v_permlane32_swap_b32 v{csa}, v{csa+1}
            v_permlane32_swap_b32 v{csa+4}, v{csa+5}
            v_add_f32 v{csa}, v{csa}, v{csa+1}
            v_add_f32 v{csa+4}, v{csa+4}, v{csa+5}
            v_and_b32 v{vt}, 31, v{v_lane}
            s_lshl_b32 s{s_t0}, s{s_wave}, 5
            v_add_u32 v{vt}, s{s_t0}, v{vt}
            v_lshlrev_b32 v{vt}, 2, v{vt}
            s_lshl_b32 s{s_t0}, s{s_ct}, 4
            s_add_u32 s{s_t0}, s{s_t0}, s{s_rt}
            s_mul_i32 s{s_t0}, s{s_t0}, 640
            s_mov_b32 exec_hi, 0
            buffer_store_dword v{csa}, v{vt}, s[{sCP}:{sCP+3}], s{s_t0} offen sc1
            s_cmp_lg_u32 s{s_wave}, 0
            s_cbranch_scc1 P1_pub4
            buffer_store_dword v{csa+4}, v{vt}, s[{sCP}:{sCP+3}], s{s_t0} offen offset:512 sc1
            P1_pub4:
            s_mov_b32 exec_hi, -1
            """)
        if ci == 2:
            a("s_waitcnt vmcnt(0)")
        if ci == 3:
            a(f"""
            s_cmp_lg_u32 s{s_wave}, 0
            s_cbranch_scc1 P1_noflag
            s_lshl_b32 s{s_t0}, s{s_T}, 2
            s_add_u32 s{s_t0}, s{s_t0}, {3*FL_STRIDE}
            s_waitcnt lgkmcnt(0)
            s_add_u32 s{s_t1}, s{S_EXP}, 1
            v_mov_b32 v{ga}, s{s_t1}
            v_mov_b32 v{ga+1}, 0
            s_mov_b64 exec, 1
            buffer_store_dword v{ga}, v{ga+1}, s[{S_FL}:{S_FL+3}], s{s_t0} offen sc1
            s_mov_b64 exec, -1
            P1_noflag:
            """)
        if ci == 5:
            a(f"""
            v_and_b32 v{ga+2}, 15, v{v_lane}
            s_lshl_b32 s{s_t0}, s{s_rt}, 4
            v_add_u32 v{ga+3}, s{s_t0}, v{ga+2}          ; (rt, j)
            v_lshlrev_b32 v{ga+4}, 4, v{ga+2}
            v_add_u32 v{ga+4}, s{s_ct}, v{ga+4}          ; (j, ct)
            v_cmp_gt_u32 vcc, 16, v{v_lane}
            v_cndmask_b32 v{ga+3}, v{ga+4}, v{ga+3}, vcc
            v_lshlrev_b32 v{ga+3}, 2, v{ga+3}
            s_mov_b32 s46, {3*FL_STRIDE}
            buffer_load_dword v{ga+2}, v{ga+3}, s[{S_FL}:{S_FL+3}], s46 offen sc1
            """)
        if ci == 6:
            a(f"""
            s_add_u32 s{s_t1}, s{S_EXP}, 1
            s_mov_b32 s{s_t2}, 0x200000
            P1_chk:
            s_waitcnt vmcnt(0)
            v_cmp_ne_u32 vcc, s{s_t1}, v{ga+2}
            s_sub_u32 s{s_t2}, s{s_t2}, 1
            s_cmp_eq_u32 s{s_t2}, 0
            s_cbranch_scc1 P1_chkd
            s_cbranch_vccz P1_chkd
            buffer_load_dword v{ga+2}, v{ga+3}, s[{S_FL}:{S_FL+3}], s46 offen sc1
            s_branch P1_chk
            P1_chkd:
            v_and_b32 v{ga}, 31, v{v_lane}
            s_lshl_b32 s{s_t0}, s{s_wave}, 5
            v_add_u32 v{ga}, s{s_t0}, v{ga}
            s_lshl_b32 s{s_t1}, s{s_rt}, 7
            v_add_u32 v{ga+1}, s{s_t1}, v{ga}
            v_lshlrev_b32 v{ga+1}, 3, v{ga+1}
            buffer_load_dwordx2 v[{csa+2}:{csa+3}], v{ga+1}, s[{sRS}:{sRS+3}], 0 offen sc1
            v_lshrrev_b32 v{ga+1}, 5, v{v_lane}
            v_mul_u32_u24 v{ga+1}, {8*640}, v{ga+1}
            v_lshl_add_u32 v{ga+1}, v{ga}, 2, v{ga+1}
            s_mul_i32 s{s_t0}, s{s_ct}, {16*640}
            """)
            for j in range(8):
                a(f"s_add_u32 s{s_t1}, s{s_t0}, {j*640}")
                a(f"buffer_load_dword v{ga+4+j}, v{ga+1}, s[{sCP}:{sCP+3}], s{s_t1} offen sc1")
            a(f"""
            v_and_b32 v{ga+2}, 31, v{v_lane}
            v_lshlrev_b32 v{ga+2}, 2, v{ga+2}
            v_lshrrev_b32 v{ga+3}, 5, v{v_lane}
            v_mul_u32_u24 v{ga+3}, {2*640}, v{ga+3}
            v_add_u32 v{ga+2}, v{ga+2}, v{ga+3}
            s_mul_i32 s{s_t1}, s{s_wave}, {4*640}
            s_add_u32 s{s_t1}, s{s_t1}, s{s_t0}
            s_add_u32 s{s_t1}, s{s_t1}, 512
            buffer_load_dword v{ga+12}, v{ga+2}, s[{sCP}:{sCP+3}], s{s_t1} offen sc1
            buffer_load_dword v{ga+13}, v{ga+2}, s[{sCP}:{sCP+3}], s{s_t1} offen offset:640 sc1
            """)
    a("s_waitcnt lgkmcnt(0)")
    gemm_loop2(a, NC1, ring, [vxa, vxa+1, vxa+2, vxa+3, vwq, vwm, vwm+1], reads, mfmas, [3, 5, 7, 9, 11], s_cnt, "P1",
               D=1, per=4, hook=hook, first_hook=lambda: stamp(a, 2), full=True, chunk_pre=chunk_pre)
    stamp(a, 3)
    a("s_waitcnt vmcnt(0)")
    for j in range(1, 8): a(f"v_add_f32 v{ga+4}, v{ga+4}, v{ga+4+j}")
    a(f"""
    v_add_f32 v{ga+12}, v{ga+12}, v{ga+13}
    v_mov_b32 v{ga+5}, v{ga+4}
    v_mov_b32 v{ga+13}, v{ga+12}
    s_nop 1
    v_permlane32_swap_b32 v{ga+4}, v{ga+5}
    v_permlane32_swap_b32 v{ga+12}, v{ga+13}
    v_add_f32 v{ga+4}, v{ga+4}, v{ga+5}
    v_add_f32 v{ga+12}, v{ga+12}, v{ga+13}
    v_lshlrev_b32 v{vt}, 2, v{ga}
    ds_write_b32 v{vt}, v{ga+4} offset:{T_CS}
    ds_write_b32 v{vt}, v{ga+12} offset:{T_CS4}
    ds_write_b32 v{vt}, v{csa+2} offset:{T_RSTD}
    ds_write_b32 v{vt}, v{csa+3} offset:{T_NMR}
    s_waitcnt lgkmcnt(0)
    """)
    a("s_barrier")
    stamp(a, 4)
    e = Alloc(fbase, fbase + 48)
    rs = e(16, 4); nm = e(16, 4); tp = e(4, 4); vcsl = e(2, 2); g2 = e(4, 4)
    t0 = vt; vh16 = vt + 2; vstq = vt + 3; vtk = vt + 4
    v_rn = csa + 2
    a(f"""
    v_lshrrev_b32 v{vh16}, 5, v{v_lane}
    v_lshlrev_b32 v{vh16}, 4, v{vh16}            ; h*16
    v_and_b32 v{t0}, 31, v{v_lane}
    s_lshl_b32 s{s_t0}, s{s_wave}, 5
    v_add_u32 v{vstq}, s{s_t0}, v{t0}
    v_mul_u32_u24 v{vstq}, {PQ}, v{vstq}
    v_lshrrev_b32 v{t0}, 1, v{vh16}
    v_add_u32 v{vstq}, v{vstq}, v{t0}
    """)
    bufs = [rs, nm]
    for r in range(4):
        a(f"ds_read_b128 v[{bufs[0]+4*r}:{bufs[0]+4*r+3}], v{vh16} offset:{T_CS + 8*r*4}")
    for b in range(3):
        cur = bufs[b & 1]
        if b < 2:
            for r in range(4):
                a(f"ds_read_b128 v[{bufs[(b+1)&1]+4*r}:{bufs[(b+1)&1]+4*r+3}], v{vh16} offset:{T_CS + (32*(b+1) + 8*r)*4}")
            a("s_waitcnt lgkmcnt(4)")
        else:
            a("s_waitcnt lgkmcnt(0)")
        for r in range(4):
            for p in range(2):
                c = cur + 4*r + 2*p; x = acc[b] + 4*r + 2*p
                a(f"v_pk_mul_f32 v[{c}:{c+1}], v[{c}:{c+1}], v[{v_rn}:{v_rn+1}] op_sel:[0,1] op_sel_hi:[1,1]")
                a(f"v_pk_fma_f32 v[{x}:{x+1}], v[{x}:{x+1}], v[{v_rn}:{v_rn+1}], v[{c}:{c+1}] op_sel_hi:[1,0,1]")
            x = acc[b] + 4*r
            a(f"v_cvt_pk_bf16_f32 v{tp+2*(r&1)}, v{x}, v{x+1}")
            a(f"v_cvt_pk_bf16_f32 v{tp+2*(r&1)+1}, v{x+2}, v{x+3}")
            a(f"ds_write_b64 v{vstq}, v[{tp+2*(r&1)}:{tp+2*(r&1)+1}] offset:{STG_Q + (32*b + 8*r)*2}")
    a(f"""
    s_lshl_b32 s{s_t0}, s{s_wave}, 7             ; 32w tokens * 4 B
    v_add_u32 v{vtk}, s{s_t0}, v{vh16}
    v_and_b32 v{t0}, 31, v{v_lane}
    v_lshlrev_b32 v{t0+1}, 2, v{t0}
    s_waitcnt lgkmcnt(0)
    s_barrier
    """)
    a(f"""
    ds_read_b32 v{vcsl}, v{t0+1} offset:{T_CS + 96*4}
    ds_read_b32 v{vcsl+1}, v{t0+1} offset:{T_CS4}
    ds_read_b32 v{g2}, v{t0+1} offset:{T_CS4 + 128}
    ds_read_b32 v{g2+1}, v{t0+1} offset:{T_CS4 + 256}
    ds_read_b32 v{g2+2}, v{t0+1} offset:{T_CS4 + 384}
    """)
    for r in range(4):
        a(f"ds_read_b128 v[{rs+4*r}:{rs+4*r+3}], v{vtk} offset:{T_RSTD + 8*r*4}")
        a(f"ds_read_b128 v[{nm+4*r}:{nm+4*r+3}], v{vtk} offset:{T_NMR + 8*r*4}")
    a(f"""
    v_mul_u32_u24 v{vstq}, {PM}, v{t0}
    s_lshl_b32 s{s_t0}, s{s_wave}, 6             ; 32w tokens * 2 B
    v_add_u32 v{vstq}, s{s_t0}, v{vstq}
    v_lshrrev_b32 v{t0+1}, 1, v{vh16}
    v_add_u32 v{vstq}, v{vstq}, v{t0+1}
    s_waitcnt lgkmcnt(0)
    v_add_f32 v{vcsl+1}, v{vcsl+1}, v{g2}
    v_add_f32 v{g2+1}, v{g2+1}, v{g2+2}
    v_add_f32 v{vcsl+1}, v{vcsl+1}, v{g2+1}
    """)
    for b in range(2):
        for r in range(4):
            for p in range(2):
                x = acc[3+b] + 4*r + 2*p; g = g2 + 2*p
                a(f"v_pk_mul_f32 v[{g}:{g+1}], v[{nm+4*r+2*p}:{nm+4*r+2*p+1}], v[{vcsl}:{vcsl+1}] op_sel:[0,{b}] op_sel_hi:[1,{b}]")
                a(f"v_pk_fma_f32 v[{x}:{x+1}], v[{x}:{x+1}], v[{rs+4*r+2*p}:{rs+4*r+2*p+1}], v[{g}:{g+1}]")
            x = acc[3+b] + 4*r
            a(f"v_cvt_pk_bf16_f32 v{tp+2*(r&1)}, v{x}, v{x+1}")
            a(f"v_cvt_pk_bf16_f32 v{tp+2*(r&1)+1}, v{x+2}, v{x+3}")
            a(f"ds_write_b64 v{vstq}, v[{tp+2*(r&1)}:{tp+2*(r&1)+1}] offset:{STG_M + 32*b*PM + 8*r*2}")
    a("s_waitcnt lgkmcnt(0)")
    stamp(a, 5)
    a("s_barrier")
    a("s_branch P1_GELU")

    def cs_final(l_cs, ng, lt, col_sgpr_list):
        for g in range(ng):
            a(f"""
            v_mov_b32 v{lt+4}, v{l_cs+g}
            s_nop 1
            v_permlane16_swap_b32 v{l_cs+g}, v{lt+4}
            v_add_f32 v{l_cs+g}, v{l_cs+g}, v{lt+4}
            v_mov_b32 v{lt+4}, v{l_cs+g}
            s_nop 1
            v_permlane32_swap_b32 v{l_cs+g}, v{lt+4}
            v_add_f32 v{l_cs+g}, v{l_cs+g}, v{lt+4}
            """)
    def grp_lane(lt):
        a(f"""
        v_lshrrev_b32 v{lt}, 4, v{v_lane}
        v_lshlrev_b32 v{lt}, 2, v{lt}
        v_bfe_u32 v{lt+1}, v{v_lane}, 2, 2
        v_add_u32 v{lt}, v{lt}, v{lt+1}
        v_and_b32 v{lt+1}, 3, v{v_lane}
        v_lshlrev_b32 v{lt+1}, 3, v{lt+1}
        """)

    a.label("P1_LOADER")
    vx, vq, vm = 3, 4, 7
    vt = 8
    a(f"s_sub_u32 s{s_wave}, s{s_wave}, 4")
    r_loader_voff(a, vx, vt, v_lane, s_wave, s_t0, 1024)
    a(f"""
    s_lshl_b32 s{s_bx}, s{s_rt}, 17              ; rt*128*1024
    s_lshl_b32 s{s_t0}, s{s_wave}, 13            ; 8 rows * 1024 * w
    s_add_u32 s{s_bx}, s{s_bx}, s{s_t0}
    s_lshl_b32 s{s_lx}, s{s_wave}, 10
    """)
    t64_loader_voff(a, vm, vt, v_lane, 2048)
    for jj in range(3):
        a(f"""
        v_add_u32 v{vt}, {64*jj}, v{v_lane}
        v_mul_u32_u24 v{vt+1}, 43691, v{vt}
        v_lshrrev_b32 v{vt+1}, 19, v{vt+1}          ; row = f/12
        v_mul_u32_u24 v{vt+2}, 12, v{vt+1}
        v_sub_u32 v{vt+2}, v{vt}, v{vt+2}           ; slot
        v_lshlrev_b32 v{vt+2}, 4, v{vt+2}
        v_mul_u32_u24 v{vt+1}, 3072, v{vt+1}
        v_add_u32 v{vq+jj}, v{vt+1}, v{vt+2}
        """)
    a(f"""
    s_mul_i32 s{s_bq}, s{s_wave}, {16*3072}
    s_mul_i32 s{s_t0}, s{s_ct}, 192
    s_add_u32 s{s_bq}, s{s_bq}, s{s_t0}
    s_mul_i32 s{s_bm}, s{s_wave}, {16*2048}
    s_lshl_b32 s{s_t0}, s{s_ct}, 7
    s_add_u32 s{s_bm}, s{s_bm}, s{s_t0}
    s_mul_i32 s{s_lq}, s{s_wave}, 3072
    s_add_u32 s{s_lq}, s{s_lq}, {WQ_OFF}
    s_lshl_b32 s{s_lm}, s{s_wave}, 11
    s_add_u32 s{s_lm}, s{s_lm}, {WM_OFF}
    s_waitcnt lgkmcnt(0)
    """)
    srd(a, sX, 4, 5, 2000 * 1024)
    srd(a, sWQ, 6, 7, 512 * 3072)
    srd(a, sWM, 32, 33, 512 * 2048)
    streams = [
        Stream(sX, [vx]*4, [i*32*1024 for i in range(4)], [X_OFF + i*4096 for i in range(4)], s_bx, 128, s_lx),
        Stream(sWQ, [vq, vq+1, vq+2], [0, 0, 0], [0, 1024, 2048], s_bq, 64*3072, s_lq),
        Stream(sWM, [vm, vm], [0, 8*2048], [0, 1024], s_bm, 64*2048, s_lm),
    ]
    def hook():
        pers_init2(a)
        out_srds()
    stamp(a, 2)
    loader_loop(a, streams, NC1, S1, STAGE, s_kc, s_slot, s_cnt, s_t0, s_t1, s_t2, lds_base=RING, hook=hook,
                ahead=(3 if 'ah3' in abl else 2))
    stamp(a, 3)

    if "nopf" not in abl:
        a(f"""
        s_load_dwordx2 s[8:9], s[0:1], {KA['w_att_out']}
        s_load_dwordx2 s[12:13], s[0:1], {KA['w_mlp_out']}
        s_load_dwordx2 s[16:17], s[0:1], {KA['w_merge']}
        v_and_b32 v3, 15, v{v_lane}
        s_lshl_b32 s{s_t0}, s2, 4
        v_add_u32 v3, s{s_t0}, v3
        v_lshlrev_b32 v3, 7, v3                      ; line*128
        s_waitcnt lgkmcnt(0)
        s_mov_b32 s10, {512*1024}
        s_mov_b32 s11, 0x20000
        s_mov_b32 s14, {512*1024}
        s_mov_b32 s15, 0x20000
        s_mov_b32 s18, {1024*1024}
        s_mov_b32 s19, 0x20000
        v_cmp_gt_u32 vcc, 16, v{v_lane}
        s_and_saveexec_b64 s[54:55], vcc
        s_cmp_eq_u32 s58, 4
        s_cbranch_scc0 P1_pf9
        buffer_load_dword v127, v3, s[8:11], 0 offen
        s_branch P1_pfd
        P1_pf9:
        s_cmp_eq_u32 s58, 5
        s_cbranch_scc0 P1_pf10
        buffer_load_dword v127, v3, s[12:15], 0 offen
        s_branch P1_pfd
        P1_pf10:
        s_sub_u32 s{s_t1}, s58, 6
        s_lshl_b32 s{s_t1}, s{s_t1}, 19
        buffer_load_dword v127, v3, s[16:19], s{s_t1} offen
        P1_pfd:
        s_mov_b64 exec, s[54:55]
        """)
    a("s_barrier")
    a(f"s_mul_i32 s{s_t1}, s{s_rt}, {128*3072}")
    a(f"s_mul_i32 s{s_t2}, s{s_ct}, 192")
    a(f"s_add_u32 s{s_t1}, s{s_t1}, s{s_t2}")
    d = 8
    for i in range(6):
        a(f"""
        v_add_u32 v3, {(256*i - 256) & 0xffffffff}, v0
        v_mul_u32_u24 v4, 43691, v3
        v_lshrrev_b32 v4, 19, v4              ; row
        v_mul_u32_u24 v5, 12, v4
        v_sub_u32 v5, v3, v5                  ; slot
        v_lshlrev_b32 v5, 4, v5
        v_mul_u32_u24 v6, {PQ}, v4
        v_add_u32 v{32+i}, v6, v5
        v_mul_u32_u24 v4, 3072, v4
        v_add_u32 v{40+i}, v4, v5
        """)
    a("s_barrier")
    for i in range(6):
        a(f"ds_read_b128 v[{d+4*i}:{d+4*i+3}], v{32+i} offset:{STG_Q}")
    for i in range(6):
        a(f"s_waitcnt lgkmcnt({5-i})")
        a(f"buffer_store_dwordx4 v[{d+4*i}:{d+4*i+3}], v{40+i}, s[{sQKV}:{sQKV+3}], s{s_t1} offen {SC}")
    a("s_barrier")

    a.label("P1_GELU")
    H = 48
    a(f"""
    v_lshrrev_b32 v4, 4, v0                       ; row 0..31
    v_and_b32 v5, 15, v0                          ; slot
    v_lshlrev_b32 v5, 4, v5
    v_mul_u32_u24 v6, {PM}, v4
    v_add_u32 v6, v6, v5
    ds_read_b128 v[{H}:{H+3}], v6 offset:{STG_M}
    ds_read_b128 v[{H+4}:{H+7}], v6 offset:{STG_M + 32*PM}
    v_lshl_add_u32 v7, v4, 12, v5
    s_lshl_b32 s{s_t2}, s{s_ct}, 18               ; 64 rows * 4096
    s_lshl_b32 s{s_t0}, s{s_rt}, 8                ; 128 tokens * 2 B
    s_add_u32 s{s_t2}, s{s_t2}, s{s_t0}
    """)
    X = 56; G = 72; cA, cB = 88, 89
    a(f"""
    v_mov_b32 v{cA}, {hex(f2u(kA))}
    v_mov_b32 v{cB}, {hex(f2u(kB))}
    s_waitcnt lgkmcnt(0)
    """)
    for i in range(8):
        a(f"v_lshlrev_b32 v{X+2*i}, 16, v{H+i}")
        a(f"v_and_b32 v{X+2*i+1}, 0xffff0000, v{H+i}")
    for i in range(16): a(f"v_mul_f32 v{G+i}, v{X+i}, v{X+i}")
    for i in range(16): a(f"v_fma_f32 v{G+i}, v{G+i}, v{cB}, v{cA}")
    for i in range(16): a(f"v_mul_f32 v{G+i}, v{G+i}, v{X+i}")
    for i in range(16): a(f"v_exp_f32 v{G+i}, v{G+i}")
    for i in range(16): a(f"v_add_f32 v{G+i}, 1.0, v{G+i}")
    for i in range(16): a(f"v_rcp_f32 v{G+i}, v{G+i}")
    for i in range(16): a(f"v_mul_f32 v{X+i}, v{X+i}, v{G+i}")
    for i in range(8): a(f"v_cvt_pk_bf16_f32 v{H+i}, v{X+2*i}, v{X+2*i+1}")
    a(f"buffer_store_dwordx4 v[{H}:{H+3}], v7, s[{sUG}:{sUG+3}], s{s_t2} offen {SC}")
    a(f"s_add_u32 s{s_t1}, s{s_t2}, {32*4096}")
    a(f"buffer_store_dwordx4 v[{H+4}:{H+7}], v7, s[{sUG}:{sUG+3}], s{s_t1} offen {SC}")
    a(f"s_cmp_lt_u32 s{s_ct}, 8")
    a("s_cbranch_scc1 P1_nostat")
    for i in range(8):
        a(f"v_mul_f32 v{G+i}, v{X+i}, v{X+i}")
        a(f"v_fma_f32 v{G+i}, v{X+8+i}, v{X+8+i}, v{G+i}")
        a(f"v_add_f32 v{X+i}, v{X+i}, v{X+8+i}")
    for i in range(8): a(f"v_permlane16_swap_b32 v{X+i}, v{G+i}")
    for i in range(8): a(f"v_add_f32 v{X+i}, v{X+i}, v{G+i}")
    for i in range(4): a(f"v_permlane32_swap_b32 v{X+i}, v{X+4+i}")
    for i in range(4): a(f"v_add_f32 v{X+i}, v{X+i}, v{X+4+i}")
    a(f"""
    v_lshlrev_b32 v4, 4, v0                       ; tid*16
    ds_write_b128 v4, v[{X}:{X+3}] offset:{STG_P}
    s_waitcnt lgkmcnt(0)
    s_barrier
    s_cmp_lg_u32 s58, 7
    s_cbranch_scc1 P1_nostat
    v_lshlrev_b32 v4, 4, v{v_lane}
    """)
    for w in range(8):
        a(f"ds_read_b128 v[{8+4*w}:{8+4*w+3}], v4 offset:{STG_P + w*1024}")
    a(f"""
    v_and_b32 v5, 15, v{v_lane}
    v_lshlrev_b32 v5, 3, v5                      ; 8*slot
    v_lshrrev_b32 v6, 5, v{v_lane}
    v_lshl_add_u32 v5, v6, 2, v5                  ; + 4*half
    s_lshl_b32 s{s_t0}, s{s_rt}, 7
    v_add_u32 v5, s{s_t0}, v5
    v_lshlrev_b32 v5, 2, v5
    v_bfe_u32 v6, v{v_lane}, 4, 1
    v_lshl_add_u32 v5, v6, 13, v5                 ; stat * 2048*4
    s_sub_u32 s{s_t0}, s{s_ct}, 8
    s_lshl_b32 s{s_t0}, s{s_t0}, 14
    s_waitcnt lgkmcnt(0)
    """)
    for w in range(1, 8):
        for i in range(4): a(f"v_add_f32 v{8+i}, v{8+i}, v{8+4*w+i}")
    a(f"buffer_store_dwordx4 v[8:11], v5, s[{sGS}:{sGS+3}], s{s_t0} offen {SC}")
    a.label("P1_nostat")
    if STAMPS_ON():
        a("s_waitcnt vmcnt(0)")
    stamp(a, 6)
    stamp_flush(a, 58)
    a.label(END)
    if common.PERS:
        pers_init3(a)
        a(f"s_lshl_b32 s{S_FID}, s{s_rt}, 4")
        a(f"s_add_u32 s{S_FID}, s{S_FID}, s{s_ct}")
        grid_arrive(a, 0)
    else: a("s_endpgm")
    return a.text(), dict(name=name, vgpr=max(V.hi, 96), sgpr=100, lds=LDS1, grid=256, block=512)
```

```python
from common import *
import common, struct
def STAMPS_ON(): return common.STAMPS
def f2u(x): return struct.unpack("<I", struct.pack("<f", x))[0]

NC = 8
LDS2 = 163840
Z_RS, Z_NM, Z_WP, Z_GN, Z_PG = 0, 1152, 2304, 27136, 608

WP_CH = 388

def conv_T_addr(a, vd, vt, v_lane, base):
    a(f"""
    v_lshrrev_b32 v{vt}, 4, v{v_lane}
    v_lshlrev_b32 v{vt}, 3, v{vt}
    v_and_b32 v{vt+1}, 15, v{v_lane}
    v_sub_u32 v{vt}, v{vt}, v{vt+1}
    v_add_u32 v{vt}, 15, v{vt}
    v_lshlrev_b32 v{vt}, 1, v{vt}
    v_and_b32 v{vt+1}, 1, v{vt+1}
    v_xor_b32 v{vt+1}, 1, v{vt+1}
    v_mul_u32_u24 v{vt+1}, 190, v{vt+1}
    v_add_u32 v{vt}, v{vt}, v{vt+1}
    v_add_u32 v{vd}, {base}, v{vt}
    """)

def conv_T_reads(dst, vaddr, s, ch3=0):
    o = ch3 * (WP_CH // 4) + 16 * s
    return [f"ds_read2_b32 v[{dst}:{dst+1}], v{vaddr} offset0:{o} offset1:{o+1}",
            f"ds_read2_b32 v[{dst+2}:{dst+3}], v{vaddr} offset0:{o+2} offset1:{o+3}"]

def filter_table_loads(a, s_dw_srd, s_c0bytes, nch, pitch_bytes, vt, nthreads=512):
    sh = nch.bit_length() - 1
    per = nthreads // nch
    rounds = (31 + per - 1) // per
    assert rounds <= 4
    for j in range(rounds):
        a(f"""
        v_lshrrev_b32 v{vt+5}, {sh}, v0
        v_add_u32 v{vt+5}, {per*j}, v{vt+5}          ; tap i
        v_and_b32 v{vt+6}, {nch-1}, v0                ; channel
        v_mul_u32_u24 v{vt+7}, {pitch_bytes}, v{vt+5}
        v_lshl_add_u32 v{vt+7}, v{vt+6}, 1, v{vt+7}
        v_cmp_gt_u32 vcc, 31, v{vt+5}
        v_cndmask_b32 v{vt+7}, -1, v{vt+7}, vcc
        buffer_load_ushort v{vt+8+j}, v{vt+7}, s[{s_dw_srd}:{s_dw_srd+3}], s{s_c0bytes} offen
        v_mul_u32_u24 v{vt+6}, {WP_CH}, v{vt+6}
        v_lshl_add_u32 v{vt+12+j}, v{vt+5}, 1, v{vt+6}
        """)
    return rounds

def filter_table_zero(a, nch, wp_base, vt, nthreads=512):
    ngran = (nch * WP_CH + 15) // 16
    a(f"""
    v_mov_b32 v{vt}, 0
    v_mov_b32 v{vt+1}, 0
    v_mov_b32 v{vt+2}, 0
    v_mov_b32 v{vt+3}, 0
    """)
    for j in range((ngran + nthreads - 1) // nthreads):
        a(f"""
        v_add_u32 v{vt+5}, {nthreads*j}, v0
        v_lshlrev_b32 v{vt+4}, 4, v{vt+5}
        v_cmp_gt_u32 vcc, {ngran}, v{vt+5}
        s_and_saveexec_b64 s[54:55], vcc
        ds_write_b128 v{vt+4}, v[{vt}:{vt+3}] offset:{wp_base}
        s_mov_b64 exec, s[54:55]
        """)

def filter_table_write(a, nch, wp_base, vt, rounds, nthreads=512):
    sh = nch.bit_length() - 1
    per = nthreads // nch
    for j in range(rounds):
        a(f"""
        v_lshrrev_b32 v{vt+5}, {sh}, v0
        v_add_u32 v{vt+5}, {per*j}, v{vt+5}
        v_cmp_gt_u32 vcc, 31, v{vt+5}
        s_and_saveexec_b64 s[54:55], vcc
        ds_write_b16 v{vt+12+j}, v{vt+8+j} offset:{wp_base + 32}
        ds_write_b16 v{vt+12+j}, v{vt+8+j} offset:{wp_base + 192 + 30}
        s_mov_b64 exec, s[54:55]
        """)

def build_filter_table(a, s_dw_srd, s_c0bytes, nch, pitch_bytes, wp_base, vt, s_t, nthreads=512):
    filter_table_zero(a, nch, wp_base, vt, nthreads)
    rounds = filter_table_loads(a, s_dw_srd, s_c0bytes, nch, pitch_bytes, vt, nthreads)
    a("s_waitcnt lgkmcnt(0)")
    a("s_barrier")
    a("s_waitcnt vmcnt(0)")
    filter_table_write(a, nch, wp_base, vt, rounds, nthreads)

def gen_p2(name="p2_kernel", abl=()):
    SC = common.SCF
    a = Asm('p2_')
    END = "P2_END"
    sA, sB, sO1, sO2, sU, sG = 8, 12, 16, 20, 24, 28
    s_wave, s_i0, s_i1, s_kc, s_slot, s_cnt, s_t0, s_t1, s_t2 = 36, 37, 38, 39, 40, 41, 42, 43, 44
    s_b0, s_b1, s_l0, s_l1 = 45, 46, 48, 49
    s_b, s_delta, s_neg, s_pos, s_rs = 51, 52, 56, 57, 53
    s_xcd, s_idx = 47, 50
    v_lane = 2
    a(f"""
    s_cmp_ge_u32 s2, 256
    s_cbranch_scc1 {END}
    s_load_dwordx2 s[4:5], s[0:1], {KA['ws']}
    s_load_dwordx2 s[6:7], s[0:1], {KA['w_att_out']}
    s_load_dwordx2 s[32:33], s[0:1], {KA['dw_csgu']}
    """)
    stamp_zero(a)
    if STAMPS_ON():
        a("s_memrealtime s[64:65]")
        a("s_memtime s[66:67]")
    a(f"""
    v_lshrrev_b32 v1, 6, v0
    v_and_b32 v2, 63, v0
    v_readfirstlane_b32 s{s_wave}, v1
    s_and_b32 s{s_xcd}, s2, 7
    s_lshr_b32 s{s_idx}, s2, 3
    s_mov_b32 s58, s{s_wave}
    s_waitcnt lgkmcnt(0)
    """)
    stamp_init(a, 4, 5, 1)
    a(f"s_cmp_ge_u32 s{s_idx}, 16")
    a("s_cbranch_scc1 P2_VROLE")

    K_OFF, Q_OFF, STAGE, S = 0, 16384, 32768, 5
    a(f"""
    s_lshr_b32 s{s_b}, s{s_xcd}, 2                 ; batch
    s_and_b32 s{s_t0}, s{s_xcd}, 3                 ; quadrant
    s_lshr_b32 s{s_i0}, s{s_t0}, 1
    s_lshl_b32 s{s_i0}, s{s_i0}, 2
    s_and_b32 s{s_t1}, s{s_idx}, 3
    s_add_u32 s{s_i0}, s{s_i0}, s{s_t1}            ; qt
    s_and_b32 s{s_i1}, s{s_t0}, 1
    s_lshl_b32 s{s_i1}, s{s_i1}, 2
    s_lshr_b32 s{s_t2}, s{s_idx}, 2
    s_add_u32 s{s_i1}, s{s_i1}, s{s_t2}            ; kt
    s_lshl_b32 s{s_t1}, s{s_t1}, 1
    s_add_u32 s{s_kc}, s{s_t1}, s{s_t2}
    s_and_b32 s{s_kc}, s{s_kc}, 7
    s_mul_i32 s{s_t0}, s{s_b}, {1000*3072}
    s_add_u32 s{sA}, s4, s{s_t0}
    s_addc_u32 s{sA+1}, s5, 0
    s_mov_b32 s{sA+2}, {1000*3072}
    s_mov_b32 s{sA+3}, 0x20000
    s_lshl_b32 s{s_t0}, s{s_b}, 21                 ; batch * 1024*2048
    s_add_u32 s{s_t0}, s{s_t0}, {WS_PT}
    s_add_u32 s{sO1}, s4, s{s_t0}
    s_addc_u32 s{sO1+1}, s5, 0
    s_mov_b32 s{sO1+2}, {1000*2048}
    s_mov_b32 s{sO1+3}, 0x20000
    """)
    if "norot" in abl: a(f"s_mov_b32 s{s_kc}, 0")
    srd(a, sO2, 4, 5, 2*8*2*1024*4, WS_SST)
    if common.PERS:
        a(f"s_lshl_b32 s{S_FID}, s{s_b}, 6")
        a(f"s_lshl_b32 s{s_t0}, s{s_i0}, 3")
        a(f"s_add_u32 s{S_FID}, s{S_FID}, s{s_t0}")
        a(f"s_add_u32 s{S_FID}, s{S_FID}, s{s_i1}")
    def S_deps(v):
        a(f"""
        s_mul_i32 s96, s{s_b}, 1000
        s_lshl_b32 s97, s{s_i0}, 7
        s_add_u32 s97, s97, s96
        s_lshr_b32 s97, s97, 7
        s_lshl_b32 s100, s{s_i1}, 7
        s_add_u32 s100, s100, s96
        s_lshr_b32 s100, s100, 7
        v_min_u32 v{v+1}, 23, v{v_lane}
        v_cmp_lt_u32 vcc, 11, v{v+1}                  ; k part
        v_mov_b32 v{v+2}, s97
        v_mov_b32 v{v+3}, s100
        v_cndmask_b32 v{v+2}, v{v+2}, v{v+3}, vcc
        v_subrev_u32 v{v+3}, 12, v{v+1}
        v_cndmask_b32 v{v+3}, v{v+1}, v{v+3}, vcc     ; 0..11
        v_mov_b32 v{v+4}, 0
        v_mov_b32 v{v+5}, 5
        v_cndmask_b32 v{v+4}, v{v+4}, v{v+5}, vcc
        v_cmp_lt_u32 vcc, 5, v{v+3}
        v_subrev_u32 v{v+5}, 6, v{v+3}
        v_cndmask_b32 v{v+3}, v{v+3}, v{v+5}, vcc     ; 0..5
        v_add_u32 v{v+4}, v{v+4}, v{v+3}
        v_mov_b32 v{v+5}, 0
        v_mov_b32 v{v+3}, s{s_b}
        v_cndmask_b32 v{v+5}, v{v+5}, v{v+3}, vcc
        v_add_u32 v{v+2}, v{v+2}, v{v+5}
        v_min_u32 v{v+2}, 15, v{v+2}
        v_lshl_add_u32 v{v}, v{v+2}, 4, v{v+4}
        """)
    a(f"s_cmp_ge_u32 s{s_wave}, 4")
    a("s_cbranch_scc1 P2_S_LOADER")
    V = Alloc(3, 256)
    vq = V(4); vk = V(4); vt = V(8, 2)
    fq = [V(4, 4) for _ in range(4)]
    fk = [[V(4, 4) for _ in range(4)] for _ in range(4)]
    acc = [V(16, 4) for _ in range(4)]
    r_frag_addrs(a, vq, vt, v_lane, s_wave, s_t0, Q_OFF)
    r_frag_addrs(a, vk, vt, v_lane, None, s_t0, K_OFF)
    ring = Ring(a, S, STAGE, s_rs, s_delta, s_neg, s_pos); ring.init()
    for b in range(4):
        for i in range(16): a(f"v_mov_b32 v{acc[b]+i}, 0")
    def reads(step, st):
        r = [f"ds_read_b128 v[{fq[st]}:{fq[st]+3}], v{vq+step}"]
        for b in range(4): r.append(f"ds_read_b128 v[{fk[st][b]}:{fk[st][b]+3}], v{vk+step} offset:{b*4096}")
        return r
    def mfmas(st, s, par):
        return [f"v_mfma_f32_32x32x16_bf16 v[{acc[b]}:{acc[b]+15}], v[{fk[st][b]}:{fk[st][b]+3}], v[{fq[st]}:{fq[st]+3}], v[{acc[b]}:{acc[b]+15}]" for b in range(4)]
    dep_wait(a, 0, vt, v_lane, S_deps)
    gemm_loop2(a, NC, ring, [vq+i for i in range(4)] + [vk+i for i in range(4)], reads, mfmas, [2, 3, 4, 5], s_cnt, "S", D=2, per=2,
               first_hook=lambda: stamp(a, 2))
    stamp(a, 3)
    vm = V(2, 2); vl = V(4, 4); cS = V(2, 2); tp = V(4, 4); vst = V(1)
    CS = 1.4426950408889634 / (512 ** 0.5)
    a(f"s_cmp_lg_u32 s{s_i1}, 7")
    a("s_cbranch_scc1 P2_S_nomask")
    for i in range(4, 16): a(f"v_mov_b32 v{acc[3]+i}, 0xff800000")
    a.label("P2_S_nomask")
    allr = [acc[b] + i for b in range(4) for i in range(16)]
    a(f"v_max3_f32 v{vm}, v{allr[0]}, v{allr[1]}, v{allr[2]}")
    a(f"v_max3_f32 v{vm+1}, v{allr[3]}, v{allr[4]}, v{allr[5]}")
    k = 6; t = 0
    while k < 64:
        if k + 1 < 64:
            a(f"v_max3_f32 v{vm+t}, v{allr[k]}, v{allr[k+1]}, v{vm+t}"); k += 2
        else:
            a(f"v_max_f32 v{vm+t}, v{allr[k]}, v{vm+t}"); k += 1
        t ^= 1
    a(f"""
    v_max_f32 v{vm}, v{vm}, v{vm+1}
    v_mov_b32 v{vm+1}, v{vm}
    s_nop 1
    v_permlane32_swap_b32 v{vm}, v{vm+1}
    v_max_f32 v{vm}, v{vm}, v{vm+1}
    v_mul_f32 v{vm}, {hex(f2u(CS))}, v{vm}
    v_sub_f32 v{vm+1}, 0, v{vm}
    v_mov_b32 v{cS}, {hex(f2u(CS))}
    v_mov_b32 v{cS+1}, {hex(f2u(CS))}
    v_mov_b32 v{vl}, 0
    v_mov_b32 v{vl+1}, 0
    v_mov_b32 v{vl+2}, 0
    v_mov_b32 v{vl+3}, 0
    v_and_b32 v{vt}, 31, v{v_lane}
    s_lshl_b32 s{s_t0}, s{s_wave}, 5
    v_add_u32 v{vt}, s{s_t0}, v{vt}
    v_mul_u32_u24 v{vst}, 272, v{vt}
    v_lshrrev_b32 v{vt+1}, 5, v{v_lane}
    v_lshl_add_u32 v{vst}, v{vt+1}, 3, v{vst}        ; + h*8 bytes
    s_barrier
    """)
    for b in range(4):
        for r in range(4):
            x = acc[b] + 4*r
            for p in range(2):
                a(f"v_pk_fma_f32 v[{x+2*p}:{x+2*p+1}], v[{x+2*p}:{x+2*p+1}], v[{cS}:{cS+1}], v[{vm}:{vm+1}] op_sel:[0,0,1] op_sel_hi:[1,1,1]")
            for i in range(4): a(f"v_exp_f32 v{x+i}, v{x+i}")
            a(f"v_pk_add_f32 v[{vl}:{vl+1}], v[{vl}:{vl+1}], v[{x}:{x+1}]")
            a(f"v_pk_add_f32 v[{vl+2}:{vl+3}], v[{vl+2}:{vl+3}], v[{x+2}:{x+3}]")
            a(f"v_cvt_pk_bf16_f32 v{tp+2*(r&1)}, v{x}, v{x+1}")
            a(f"v_cvt_pk_bf16_f32 v{tp+2*(r&1)+1}, v{x+2}, v{x+3}")
            a(f"ds_write_b64 v{vst}, v[{tp+2*(r&1)}:{tp+2*(r&1)+1}] offset:{(32*b + 8*r)*2}")
    a(f"""
    v_add_f32 v{vl}, v{vl}, v{vl+1}
    v_add_f32 v{vl+2}, v{vl+2}, v{vl+3}
    v_add_f32 v{vl}, v{vl}, v{vl+2}
    v_mov_b32 v{vl+1}, v{vl}
    s_nop 1
    v_permlane32_swap_b32 v{vl}, v{vl+1}
    v_add_f32 v{vl}, v{vl}, v{vl+1}
    v_cmp_gt_u32 vcc, 32, v{v_lane}
    s_nop 1
    v_cndmask_b32 v{vl}, v{vl}, v{vm}, vcc
    s_lshl_b32 s{s_t0}, s{s_i0}, 7
    v_add_u32 v{vt}, s{s_t0}, v{vt}
    v_lshlrev_b32 v{vt}, 2, v{vt}
    v_lshrrev_b32 v{vt+1}, 5, v{v_lane}
    v_lshl_add_u32 v{vt}, v{vt+1}, 12, v{vt}         ; stat * 1024*4
    s_lshl_b32 s{s_t0}, s{s_b}, 3
    s_add_u32 s{s_t0}, s{s_t0}, s{s_i1}
    s_lshl_b32 s{s_t0}, s{s_t0}, 13                 ; (b*8+kt) * 2*1024*4
    buffer_store_dword v{vl}, v{vt}, s[{sO2}:{sO2+3}], s{s_t0} offen {SC}
    s_waitcnt lgkmcnt(0)
    """)
    stamp(a, 5)
    a("s_barrier")
    a("s_branch P2_S_STORE")
    a.label("P2_S_LOADER")
    vo, vt_l = 3, 8
    a(f"s_sub_u32 s{s_wave}, s{s_wave}, 4")
    r_loader_voff(a, vo, vt_l, v_lane, s_wave, s_t0, 3072)
    a(f"""
    s_lshl_b32 s{s_b0}, s{s_i1}, 7
    s_lshl_b32 s{s_t0}, s{s_wave}, 3
    s_add_u32 s{s_b0}, s{s_b0}, s{s_t0}
    s_mul_i32 s{s_b0}, s{s_b0}, 3072
    s_add_u32 s{s_b0}, s{s_b0}, 1024               ; k rows
    s_lshl_b32 s{s_b1}, s{s_i0}, 7
    s_add_u32 s{s_b1}, s{s_b1}, s{s_t0}
    s_mul_i32 s{s_b1}, s{s_b1}, 3072               ; q rows
    s_lshl_b32 s{s_l0}, s{s_wave}, 10
    """)
    streams = [
        Stream(sA, [vo]*4, [i*32*3072 for i in range(4)], [Q_OFF + i*4096 for i in range(4)], s_b1, 128, s_l0, dep=True),
        Stream(sA, [vo]*4, [i*32*3072 for i in range(4)], [K_OFF + i*4096 for i in range(4)], s_b0, 128, s_l0, dep=True),
    ]
    dep_wait(a, 0, 12, v_lane, None)
    stamp(a, 2)
    loader_loop(a, streams, NC, S, STAGE, s_kc, s_slot, s_cnt, s_t0, s_t1, s_t2, ahead=3)
    stamp(a, 3)
    a("s_barrier")
    a("s_barrier")
    a.label("P2_S_STORE")
    a(f"""
    s_lshl_b32 s{s_t1}, s{s_i0}, 18              ; qt*128*2048
    s_lshl_b32 s{s_t2}, s{s_i1}, 8               ; kt*256
    s_add_u32 s{s_t1}, s{s_t1}, s{s_t2}
    """)
    for i in range(4):
        a(f"""
        v_add_u32 v3, {512*i}, v0
        v_lshrrev_b32 v4, 4, v3
        v_and_b32 v5, 15, v3
        v_lshlrev_b32 v5, 4, v5
        v_mul_u32_u24 v6, 272, v4
        v_add_u32 v6, v6, v5
        ds_read_b128 v[{8+4*i}:{8+4*i+3}], v6
        v_lshl_add_u32 v{40+i}, v4, 11, v5
        """)
    a("s_waitcnt lgkmcnt(0)")
    for i in range(4):
        a(f"buffer_store_dwordx4 v[{8+4*i}:{8+4*i+3}], v{40+i}, s[{sO1}:{sO1+3}], s{s_t1} offen {SC}")
    a("s_branch P2_FIN")

    a.label("P2_VROLE")
    a(f"s_cmp_ge_u32 s{s_idx}, 24")
    a("s_cbranch_scc1 P2_ZROLE")
    V_OFF, W_OFF, STAGE, S = 0, 16384, 32768, 5
    a(f"""
    s_sub_u32 s{s_idx}, s{s_idx}, 16
    s_lshr_b32 s{s_t0}, s{s_idx}, 2
    s_lshl_b32 s{s_i0}, s{s_xcd}, 1
    s_add_u32 s{s_i0}, s{s_i0}, s{s_t0}            ; rt
    s_and_b32 s{s_i1}, s{s_idx}, 3
    s_mov_b32 s{s_kc}, s{s_idx}
    """)
    if "norot" in abl: a(f"s_mov_b32 s{s_kc}, 0")
    srd(a, sA, 4, 5, 2000 * 3072, WS_QKV)
    srd(a, sB, 6, 7, 512 * 1024)
    srd(a, sO1, 4, 5, 2000 * 1024, WS_VP)
    if common.PERS:
        a(f"s_lshl_b32 s{S_FID}, s{s_i0}, 2")
        a(f"s_add_u32 s{S_FID}, s{S_FID}, s{s_i1}")
        a(f"s_add_u32 s{S_FID}, s{S_FID}, 128")
    def V_deps(v):
        a(f"""
        v_min_u32 v{v+1}, 5, v{v_lane}
        s_lshl_b32 s96, s{s_i0}, 4
        s_add_u32 s96, s96, 10
        v_add_u32 v{v}, s96, v{v+1}
        """)
    a(f"s_cmp_ge_u32 s{s_wave}, 4")
    a("s_cbranch_scc1 P2_V_LOADER")
    V2 = Alloc(3, 256)
    vv = V2(4); vw = V2(2); vt = V2(8, 2)
    fv = [[V2(4, 4) for _ in range(2)] for _ in range(4)]
    fw = [[V2(4, 4) for _ in range(2)] for _ in range(4)]
    acc = [[V2(16, 4) for _ in range(2)] for _ in range(2)]
    tp = V2(4, 4); vst = V2(1)
    s_wc, s_wt = 24, 25
    a(f"s_and_b32 s{s_wc}, s{s_wave}, 1")
    a(f"s_lshl_b32 s{s_wc}, s{s_wc}, 1")
    a(f"s_lshr_b32 s{s_wt}, s{s_wave}, 1")
    a(f"s_lshl_b32 s{s_wt}, s{s_wt}, 1")
    r_frag_addrs(a, vv, vt, v_lane, s_wt, s_t0, V_OFF)
    t128_frag_addr_blk(a, vw, vt, v_lane, W_OFF, s_wc)
    a(f"s_add_u32 s{s_t1}, s{s_wc}, 1")
    t128_frag_addr_blk(a, vw + 1, vt, v_lane, W_OFF, s_t1)
    ring = Ring(a, S, STAGE, s_rs, s_delta, s_neg, s_pos); ring.init()
    for cb in range(2):
        for tb in range(2):
            for i in range(16): a(f"v_mov_b32 v{acc[cb][tb]+i}, 0")
    def reads(step, st):
        r = [f"ds_read_b128 v[{fv[st][0]}:{fv[st][0]+3}], v{vv+step}"]
        r += tr2(fw[st][0], vw, 16*step*256, 256)
        r += [f"ds_read_b128 v[{fv[st][1]}:{fv[st][1]+3}], v{vv+step} offset:4096"]
        r += tr2(fw[st][1], vw + 1, 16*step*256, 256)
        return r
    def mfmas(st, s, par):
        return [f"v_mfma_f32_32x32x16_bf16 v[{acc[cb][tb]}:{acc[cb][tb]+15}], v[{fw[st][cb]}:{fw[st][cb]+3}], v[{fv[st][tb]}:{fv[st][tb]+3}], v[{acc[cb][tb]}:{acc[cb][tb]+15}]"
                for cb, tb in ((0, 0), (0, 1), (1, 0), (1, 1))]
    dep_wait(a, 0, vt, v_lane, V_deps)
    gemm_loop2(a, NC, ring, [vv+i for i in range(4)] + [vw, vw+1], reads, mfmas, [3, 4, 6, 6], s_cnt, "V", D=2, per=2,
               first_hook=lambda: stamp(a, 2))
    stamp(a, 3)
    a(f"""
    v_and_b32 v{vt}, 31, v{v_lane}
    s_lshl_b32 s{s_t0}, s{s_wt}, 5
    v_add_u32 v{vt}, s{s_t0}, v{vt}
    v_mul_u32_u24 v{vst}, 272, v{vt}
    s_lshl_b32 s{s_t0}, s{s_wc}, 6
    v_add_u32 v{vst}, s{s_t0}, v{vst}
    v_lshrrev_b32 v{vt+1}, 5, v{v_lane}
    v_lshl_add_u32 v{vst}, v{vt+1}, 3, v{vst}
    s_barrier
    """)
    for cb in range(2):
        for tb in range(2):
            for r in range(4):
                x = acc[cb][tb] + 4*r
                a(f"v_cvt_pk_bf16_f32 v{tp+2*(r&1)}, v{x}, v{x+1}")
                a(f"v_cvt_pk_bf16_f32 v{tp+2*(r&1)+1}, v{x+2}, v{x+3}")
                a(f"ds_write_b64 v{vst}, v[{tp+2*(r&1)}:{tp+2*(r&1)+1}] offset:{tb*32*272 + (32*cb + 8*r)*2}")
    a("s_waitcnt lgkmcnt(0)")
    stamp(a, 5)
    a("s_barrier")
    a("s_branch P2_V_STORE")
    a.label("P2_V_LOADER")
    vo, vo2, vt_l = 3, 4, 8
    a(f"s_sub_u32 s{s_wave}, s{s_wave}, 4")
    r_loader_voff(a, vo, vt_l, v_lane, s_wave, s_t0, 3072)
    t128_loader_voff(a, vo2, vt_l, v_lane, 1024)
    a(f"""
    s_lshl_b32 s{s_b0}, s{s_i0}, 7
    s_lshl_b32 s{s_t0}, s{s_wave}, 3
    s_add_u32 s{s_b0}, s{s_b0}, s{s_t0}
    s_mul_i32 s{s_b0}, s{s_b0}, 3072
    s_add_u32 s{s_b0}, s{s_b0}, 2048               ; v columns
    s_lshl_b32 s{s_b1}, s{s_wave}, 14              ; 16 rows * 1024
    s_lshl_b32 s{s_t0}, s{s_i1}, 8
    s_add_u32 s{s_b1}, s{s_b1}, s{s_t0}
    s_lshl_b32 s{s_l0}, s{s_wave}, 10
    s_lshl_b32 s{s_l1}, s{s_wave}, 12
    s_add_u32 s{s_l1}, s{s_l1}, {W_OFF}
    """)
    streams = [
        Stream(sA, [vo]*4, [i*32*3072 for i in range(4)], [V_OFF + i*4096 for i in range(4)], s_b0, 128, s_l0, dep=True),
        Stream(sB, [vo2]*4, [i*4*1024 for i in range(4)], [i*1024 for i in range(4)], s_b1, 64*1024, s_l1),
    ]
    dep_wait(a, 0, 12, v_lane, None)
    stamp(a, 2)
    loader_loop(a, streams, NC, S, STAGE, s_kc, s_slot, s_cnt, s_t0, s_t1, s_t2, ahead=3)
    stamp(a, 3)
    a("s_barrier")
    a("s_barrier")
    a.label("P2_V_STORE")
    a(f"""
    s_lshl_b32 s{s_t1}, s{s_i0}, 17              ; rt*128*1024
    s_lshl_b32 s{s_t2}, s{s_i1}, 8               ; ct*256
    s_add_u32 s{s_t1}, s{s_t1}, s{s_t2}
    """)
    for i in range(4):
        a(f"""
        v_add_u32 v3, {512*i}, v0
        v_lshrrev_b32 v4, 4, v3
        v_and_b32 v5, 15, v3
        v_lshlrev_b32 v5, 4, v5
        v_mul_u32_u24 v6, 272, v4
        v_add_u32 v6, v6, v5
        ds_read_b128 v[{8+4*i}:{8+4*i+3}], v6
        v_lshl_add_u32 v{40+i}, v4, 10, v5
        """)
    a("s_waitcnt lgkmcnt(0)")
    for i in range(4):
        a(f"buffer_store_dwordx4 v[{8+4*i}:{8+4*i+3}], v{40+i}, s[{sO1}:{sO1+3}], s{s_t1} offen {SC}")
    a("s_branch P2_FIN")

    a.label("P2_ZROLE")
    NCH = 64
    s_c0, s_t0g, s_flat = s_i0, s_i1, s_b0
    a(f"""
    s_lshl_b32 s{s_c0}, s{s_xcd}, 6                ; c0
    s_sub_u32 s{s_t0}, s{s_idx}, 24                ; tg
    s_lshr_b32 s{s_b}, s{s_t0}, 2
    s_and_b32 s{s_t0g}, s{s_t0}, 3
    s_lshl_b32 s{s_t0g}, s{s_t0g}, 8               ; t0
    s_mul_i32 s{s_flat}, s{s_b}, 1000
    s_add_u32 s{s_flat}, s{s_flat}, s{s_t0g}
    """)
    srd(a, sG, 4, 5, 8*2*2048*4, WS_GST)
    srd(a, sU, 4, 5, 1024*4096, WS_UG)
    srd(a, sO2, 4, 5, 512*4096, WS_ZT)
    srd(a, sB, 32, 33, 31*1024)
    sM = 98
    if common.PERS:
        a(f"s_lshl_b32 s{S_FID}, s{s_xcd}, 3")
        a(f"s_add_u32 s{S_FID}, s{S_FID}, s{s_idx}")
        a(f"s_add_u32 s{S_FID}, s{S_FID}, {192 - 24}")
    def z_deps(v):
        a(f"""
        s_max_u32 s96, s{s_flat}, 16
        s_sub_u32 s96, s96, 16
        s_lshr_b32 s96, s96, 7
        s_add_u32 s97, s{s_flat}, 271
        s_lshr_b32 s97, s97, 7
        s_min_u32 s97, s97, 15
        v_min_u32 v{v+1}, 35, v{v_lane}
        v_mul_u32_u24 v{v+2}, 7282, v{v+1}
        v_lshrrev_b32 v{v+2}, 16, v{v+2}              ; l / 9
        v_mul_u32_u24 v{v+3}, 9, v{v+2}
        v_sub_u32 v{v+3}, v{v+1}, v{v+3}              ; l % 9
        v_add_u32 v{v+2}, s96, v{v+2}
        v_min_u32 v{v+2}, s97, v{v+2}
        v_add_u32 v{v+4}, 8, v{v+3}
        v_mov_b32 v{v+5}, s{s_xcd}
        v_cmp_eq_u32 vcc, 8, v{v+3}
        v_cndmask_b32 v{v+4}, v{v+4}, v{v+5}, vcc
        v_lshl_add_u32 v{v}, v{v+2}, 4, v{v+4}
        """)
    dep_wait(a, 0, 8, v_lane, z_deps)
    a(f"""
    v_mul_u32_u24 v6, 58255, v0
    v_lshrrev_b32 v6, 21, v6                       ; r0
    v_mul_u32_u24 v7, 36, v6
    v_sub_u32 v7, v0, v7                           ; slot
    v_lshlrev_b32 v5, 4, v7
    v_lshlrev_b32 v49, 1, v5
    s_add_u32 s{s_t1}, s{s_c0}, 512
    s_lshl_b32 s{s_t1}, s{s_t1}, 12
    s_lshl_b32 s{s_t2}, s{s_flat}, 1
    s_add_u32 s{s_t1}, s{s_t1}, s{s_t2}
    s_sub_u32 s{s_t1}, s{s_t1}, 32                 ; origin t0-16
    """)
    for j in range(5):
        a(f"""
        v_add_u32 v3, {14*j}, v6                     ; row
        v_lshl_add_u32 v54, v3, 12, v5               ; global offset
        v_mul_u32_u24 v4, {Z_PG}, v3
        v_add_u32 v{44+j}, v4, v5                    ; LDS offset in GN
        v_cmp_gt_u32 vcc, {NCH}, v3
        v_cmp_gt_u32 s[54:55], 504, v0
        s_and_b64 vcc, vcc, s[54:55]
        v_cndmask_b32 v54, -1, v54, vcc
        v_cndmask_b32 v{44+j}, {Z_PG*NCH}, v{44+j}, vcc      ; invalid -> dummy row behind the tile
        buffer_load_dwordx4 v[{24+4*j}:{24+4*j+3}], v54, s[{sU}:{sU+3}], s{s_t1} offen {SC}
        """.replace(f"v_cmp_gt_u32 s[54:55], 504, v0", "v_mov_b32 v4, 504\n        v_cmp_gt_u32 s[54:55], v4, v0").replace(f"v_cndmask_b32 v{44+j}, {Z_PG*NCH}, v{44+j}, vcc", f"v_mov_b32 v4, {Z_PG*NCH}\n        v_cndmask_b32 v{44+j}, v4, v{44+j}, vcc"))
    a(f"""
    v_add_u32 v3, s{s_t0g}, v0
    v_subrev_u32 v3, 16, v3                        ; t = t0 - 16 + tid
    v_cmp_gt_u32 vcc, 1000, v3
    s_mov_b64 s[{sM}:{sM+1}], vcc
    v_add_u32 v4, s{s_flat}, v0
    v_subrev_u32 v4, 16, v4
    v_lshlrev_b32 v4, 2, v4
    v_cndmask_b32 v4, -1, v4, vcc
    """)
    for p_ in range(8):
        for st in range(2):
            a(f"s_mov_b32 s{s_t0}, {p_*16384 + st*8192}")
            a(f"buffer_load_dword v{8+2*p_+st}, v4, s[{sG}:{sG+3}], s{s_t0} offen {SC}")
    a(f"s_lshl_b32 s{s_t2}, s{s_c0}, 1")
    rounds = filter_table_loads(a, sB, s_t2, NCH, 1024, 60)
    vG, vMask = 92, 93
    a(f"""
    v_and_b32 v5, 15, v{v_lane}
    v_lshlrev_b32 v5, 5, v5                        ; 16*b*2
    v_lshrrev_b32 v6, 4, v{v_lane}                 ; g
    v_lshl_add_u32 v{vG}, v6, 3, v5                 ; (16b + 4g)*2 bytes
    v_lshrrev_b32 v7, 1, v{vG}
    v_add_u32 v7, s{s_t0g}, v7                      ; t
    v_cmp_gt_u32 vcc, 1000, v7
    v_cndmask_b32 v{vMask}, -1, v{vG}, vcc
    s_lshl_b32 s{s_t0}, s{s_wave}, 3
    s_add_u32 s{s_t0}, s{s_t0}, s{s_c0}
    s_lshl_b32 s{s_t0}, s{s_t0}, 12
    s_lshl_b32 s{s_t1}, s{s_flat}, 1
    s_add_u32 s{s_l0}, s{s_t0}, s{s_t1}
    """)
    U = 96
    for c in range(8):
        a(f"s_add_u32 s{s_t1}, s{s_l0}, {c*4096}")
        a(f"buffer_load_dwordx2 v[{U+2*c}:{U+2*c+1}], v{vG}, s[{sU}:{sU+3}], s{s_t1} offen {SC}")
    filter_table_zero(a, NCH, Z_WP, 60)
    a(f"""
    v_lshrrev_b32 v3, 1, v0
    v_mul_u32_u24 v3, {Z_PG}, v3
    v_and_b32 v4, 1, v0
    v_lshl_add_u32 v3, v4, 4, v3
    v_cmp_gt_u32 vcc, {2*NCH}, v0
    s_and_saveexec_b64 s[54:55], vcc
    ds_write_b128 v3, v[60:63] offset:{Z_GN + 576}
    s_mov_b64 exec, s[54:55]
    s_waitcnt lgkmcnt(0)
    s_barrier
    s_waitcnt vmcnt({8})
    """)
    stamp(a, 2)
    filter_table_write(a, NCH, Z_WP, 60, rounds)
    a(f"""
    v_add_f32 v8, v8, v10
    v_add_f32 v9, v9, v11
    v_add_f32 v12, v12, v14
    v_add_f32 v13, v13, v15
    v_add_f32 v16, v16, v18
    v_add_f32 v17, v17, v19
    v_add_f32 v20, v20, v22
    v_add_f32 v21, v21, v23
    v_add_f32 v8, v8, v12
    v_add_f32 v9, v9, v13
    v_add_f32 v16, v16, v20
    v_add_f32 v17, v17, v21
    v_add_f32 v8, v8, v16
    v_add_f32 v9, v9, v17
    v_mul_f32 v8, 0x3b000000, v8
    v_mul_f32 v9, 0x3b000000, v9
    v_fma_f32 v9, -v8, v8, v9
    v_max_f32 v9, 0, v9
    v_add_f32 v9, 0x3727c5ac, v9
    v_rsq_f32 v9, v9
    s_nop 0
    v_cndmask_b32 v9, 0, v9, s[{sM}:{sM+1}]
    v_mul_f32 v8, -1.0, v8
    v_mul_f32 v8, v8, v9
    v_lshlrev_b32 v10, 2, v0
    v_cmp_gt_u32 vcc, 288, v0
    s_and_saveexec_b64 s[54:55], vcc
    ds_write_b32 v10, v9 offset:{Z_RS}
    ds_write_b32 v10, v8 offset:{Z_NM}
    s_mov_b64 exec, s[54:55]
    s_waitcnt lgkmcnt(0)
    s_barrier
    ds_read_b128 v[8:11], v49 offset:{Z_RS}
    ds_read_b128 v[12:15], v49 offset:{Z_RS+16}
    ds_read_b128 v[16:19], v49 offset:{Z_NM}
    ds_read_b128 v[20:23], v49 offset:{Z_NM+16}
    s_waitcnt lgkmcnt(0)
    """)
    for j in range(5):
        d = 24 + 4*j
        for i in range(4):
            t = 56 + 2*(i & 1)
            a(f"v_lshlrev_b32 v{t}, 16, v{d+i}")
            a(f"v_and_b32 v{t+1}, 0xffff0000, v{d+i}")
            a(f"v_fma_f32 v{t}, v{t}, v{8+2*i}, v{16+2*i}")
            a(f"v_fma_f32 v{t+1}, v{t+1}, v{9+2*i}, v{17+2*i}")
            a(f"v_cvt_pk_bf16_f32 v{d+i}, v{t}, v{t+1}")
        a(f"ds_write_b128 v{44+j}, v[{d}:{d+3}] offset:{Z_GN}")
    a("s_waitcnt lgkmcnt(0)")
    a("s_barrier")
    stamp(a, 3)
    vT, vB = 8, 9
    conv_T_addr(a, vT, 12, v_lane, Z_WP)
    a(f"""
    s_mul_i32 s{s_t0}, s{s_wave}, {8*WP_CH}
    v_add_u32 v{vT}, s{s_t0}, v{vT}
    v_and_b32 v12, 15, v{v_lane}
    v_lshlrev_b32 v12, 5, v12                      ; 16*b*2
    v_lshrrev_b32 v13, 4, v{v_lane}                ; g
    v_lshl_add_u32 v{vB}, v13, 4, v12               ; + 8g*2
    s_mul_i32 s{s_t0}, s{s_wave}, {8*Z_PG}
    s_add_u32 s{s_t0}, s{s_t0}, {Z_GN}
    v_add_u32 v{vB}, s{s_t0}, v{vB}
    v_add_u32 v10, {3*WP_CH}, v{vT}
    v_add_u32 v11, {6*WP_CH}, v{vT}
    """)
    D = 112
    vTb = [vT, 10, 11]
    for half in range(2):
        FB = 16
        for c in range(4):
            ch = 4*half + c
            base = FB + 16*c
            for s in range(2):
                for x in conv_T_reads(base + 8*s, vTb[ch // 3], s, ch % 3): a(x)
                a(f"ds_read_b128 v[{base+8*s+4}:{base+8*s+7}], v{vB} offset:{ch*Z_PG + 64*s}")
            if c == 1: a("s_waitcnt lgkmcnt(6)")
            if c == 2: a("s_waitcnt lgkmcnt(9)")
        if half == 0: a("s_waitcnt vmcnt(0)")
        for c in range(4):
            base = FB + 16*c
            a(f"s_waitcnt lgkmcnt({min(15, 6*(3-c))})" if c < 3 else "s_waitcnt lgkmcnt(0)")
            a(f"v_mfma_f32_16x16x32_bf16 v[{D+4*c}:{D+4*c+3}], v[{base}:{base+3}], v[{base+4}:{base+7}], 0")
            a(f"v_mfma_f32_16x16x32_bf16 v[{D+4*c}:{D+4*c+3}], v[{base+8}:{base+11}], v[{base+12}:{base+15}], v[{D+4*c}:{D+4*c+3}]")
        for c in range(4):
            ch = 4*half + c
            u = U + 2*ch; d = D + 4*c
            a(f"""
            v_lshlrev_b32 v84, 16, v{u}
            v_and_b32 v85, 0xffff0000, v{u}
            v_lshlrev_b32 v86, 16, v{u+1}
            v_and_b32 v87, 0xffff0000, v{u+1}
            v_mul_f32 v84, v84, v{d}
            v_mul_f32 v85, v85, v{d+1}
            v_mul_f32 v86, v86, v{d+2}
            v_mul_f32 v87, v87, v{d+3}
            v_cvt_pk_bf16_f32 v{u}, v84, v85
            v_cvt_pk_bf16_f32 v{u+1}, v86, v87
            s_add_u32 s{s_t1}, s{s_l0}, {ch*4096}
            buffer_store_dwordx2 v[{u}:{u+1}], v{vMask}, s[{sO2}:{sO2+3}], s{s_t1} offen {SC}
            """)
    a.label("P2_FIN")
    if STAMPS_ON():
        a("s_waitcnt vmcnt(0)")
    stamp(a, 6)
    stamp_flush(a, 58)
    a.label(END)
    if common.PERS: grid_arrive(a, 1)
    else: a("s_endpgm")
    return a.text(), dict(name=name, vgpr=max(V.hi, V2.hi, 128), sgpr=100, lds=LDS2, grid=256, block=512)
```

```python
from common import *
import common, struct
from p2 import conv_T_addr, build_filter_table, conv_T_reads, WP_CH
def STAMPS_ON(): return common.STAMPS
def f2u(x): return struct.unpack("<I", struct.pack("<f", x))[0]

LDS3 = 4096 + 5 * 24576

def prologue(a, END, ptrs, s_wave, s_xcd, s_idx, phase):
    a(f"s_cmp_ge_u32 s2, 256")
    a(f"s_cbranch_scc1 {END}")
    for reg, nm in ptrs:
        a(f"s_load_dwordx2 s[{reg}:{reg+1}], s[0:1], {KA[nm]}")
    stamp_zero(a)
    if STAMPS_ON():
        a("s_memrealtime s[64:65]")
        a("s_memtime s[66:67]")
    a(f"""
    v_lshrrev_b32 v1, 6, v0
    v_and_b32 v2, 63, v0
    v_readfirstlane_b32 s{s_wave}, v1
    s_and_b32 s{s_xcd}, s2, 7
    s_lshr_b32 s{s_idx}, s2, 3
    s_mov_b32 s58, s{s_wave}
    s_waitcnt lgkmcnt(0)
    """)

def store_T_tile(a, sO, s_rowbase, s_tbase_bytes, s_valid_gran, stg_pitch=272):
    for i in range(2):
        a(f"""
        v_add_u32 v3, {512*i}, v0
        v_lshrrev_b32 v4, 4, v3
        v_and_b32 v5, 15, v3
        v_cmp_gt_u32 vcc, s{s_valid_gran}, v5
        v_lshlrev_b32 v5, 4, v5
        v_mul_u32_u24 v6, {stg_pitch}, v4
        v_add_u32 v6, v6, v5
        ds_read_b128 v[{8+4*i}:{8+4*i+3}], v6
        v_lshl_add_u32 v{40+i}, v4, 12, v5
        v_cndmask_b32 v{40+i}, -1, v{40+i}, vcc
        """)
    a("s_waitcnt lgkmcnt(0)")
    for i in range(2):
        a(f"buffer_store_dwordx4 v[{8+4*i}:{8+4*i+3}], v{40+i}, s[{sO}:{sO+3}], s{s_rowbase} offen")

def gen_p3(name="p3_kernel", abl=()):
    a = Asm('p3_')
    END = "P3_END"
    sA, sB, sO, sS = 8, 12, 16, 20
    s_wave, s_i0, s_i1, s_kc, s_slot, s_cnt, s_t0, s_t1, s_t2 = 36, 37, 38, 39, 40, 41, 42, 43, 44
    s_b0, s_b1, s_l0, s_l1 = 45, 46, 48, 49
    s_b, s_delta, s_neg, s_pos, s_rs = 51, 52, 56, 57, 53
    s_xcd, s_idx = 47, 50
    s_kt, s_ob, s_vg = 24, 25, 26
    v_lane = 2
    RING = 4096
    prologue(a, END, [(4, 'ws'), (6, 'w_mlp_out')], s_wave, s_xcd, s_idx, 2)
    stamp_init(a, 4, 5, 2)
    srd(a, sO, 4, 5, 1024 * 4096, WS_MT)
    a(f"s_cmp_ge_u32 s{s_idx}, 16")
    a("s_cbranch_scc1 P3_LOC")
    A_OFF, B_OFF, STAGE, S, NC = 0, 16384, 24576, 5, 16
    a(f"""
    s_lshr_b32 s{s_b}, s{s_xcd}, 2
    s_and_b32 s{s_i0}, s{s_xcd}, 3
    s_lshl_b32 s{s_i0}, s{s_i0}, 1
    s_lshr_b32 s{s_t0}, s{s_idx}, 3
    s_add_u32 s{s_i0}, s{s_i0}, s{s_t0}            ; tt
    s_and_b32 s{s_i1}, s{s_idx}, 7                 ; ct
    s_lshl_b32 s{s_t0}, s{s_t0}, 2
    s_add_u32 s{s_kt}, s{s_i1}, s{s_t0}
    s_and_b32 s{s_kt}, s{s_kt}, 7
    s_lshl_b32 s{s_kc}, s{s_kt}, 1
    s_lshl_b32 s{s_t0}, s{s_b}, 21
    s_add_u32 s{s_t0}, s{s_t0}, {WS_PT}
    s_add_u32 s{sA}, s4, s{s_t0}
    s_addc_u32 s{sA+1}, s5, 0
    s_mov_b32 s{sA+2}, {1000*2048}
    s_mov_b32 s{sA+3}, 0x20000
    s_mul_i32 s{s_t0}, s{s_b}, {1000*1024}
    s_add_u32 s{s_t0}, s{s_t0}, {WS_VP}
    s_add_u32 s{sB}, s4, s{s_t0}
    s_addc_u32 s{sB+1}, s5, 0
    s_mov_b32 s{sB+2}, {1000*1024}
    s_mov_b32 s{sB+3}, 0x20000
    s_lshl_b32 s{s_ob}, s{s_i1}, 18
    s_mul_i32 s{s_t0}, s{s_b}, 1000
    s_lshl_b32 s{s_t1}, s{s_i0}, 7
    s_add_u32 s{s_t0}, s{s_t0}, s{s_t1}
    s_lshl_b32 s{s_t0}, s{s_t0}, 1
    s_add_u32 s{s_ob}, s{s_ob}, s{s_t0}
    s_sub_u32 s{s_vg}, 1000, s{s_t1}
    s_lshr_b32 s{s_vg}, s{s_vg}, 3
    s_min_u32 s{s_vg}, s{s_vg}, 16
    """)
    if "norot" in abl:
        a(f"s_mov_b32 s{s_kc}, 0")
        a(f"s_mov_b32 s{s_kt}, 0")
    srd(a, sS, 4, 5, 2*8*2*1024*4, WS_SST)
    a(f"s_cmp_ge_u32 s{s_wave}, 4")
    a("s_cbranch_scc1 P3_PV_LOADER")
    V = Alloc(3, 256)
    va = V(4); vb = V(2); vt = V(8, 2)
    fa = [V(4, 4) for _ in range(4)]
    fb = [[V(4, 4) for _ in range(2)] for _ in range(4)]
    tmp = [[V(16, 4) for _ in range(2)] for _ in range(2)]
    acc = [V(16, 4) for _ in range(2)]
    sc = V(16, 4)
    vsc = V(1); tp = V(4, 4); vst = V(1)
    a(f"s_cmp_ge_u32 s{s_wave}, 2")
    a("s_cbranch_scc1 P3_noscale")
    M = tmp[0][0]; Ls = tmp[0][1]
    a(f"""
    s_lshl_b32 s{s_t0}, s{s_i0}, 7
    v_add_u32 v{vt}, s{s_t0}, v0
    v_lshlrev_b32 v{vt}, 2, v{vt}
    s_lshl_b32 s{s_t1}, s{s_b}, 16                 ; b*8*2*1024*4
    """)
    for k in range(8):
        a(f"s_add_u32 s{s_t2}, s{s_t1}, {k*8192}")
        a(f"buffer_load_dword v{M+k}, v{vt}, s[{sS}:{sS+3}], s{s_t2} offen")
        a(f"s_add_u32 s{s_t2}, s{s_t1}, {k*8192 + 4096}")
        a(f"buffer_load_dword v{Ls+k}, v{vt}, s[{sS}:{sS+3}], s{s_t2} offen")
    a("s_waitcnt vmcnt(0)")
    a(f"v_max3_f32 v{vt+1}, v{M}, v{M+1}, v{M+2}")
    a(f"v_max3_f32 v{vt+1}, v{M+3}, v{M+4}, v{vt+1}")
    a(f"v_max3_f32 v{vt+1}, v{M+5}, v{M+6}, v{vt+1}")
    a(f"v_max_f32 v{vt+1}, v{M+7}, v{vt+1}")
    for k in range(8): a(f"v_sub_f32 v{M+k}, v{M+k}, v{vt+1}")
    for k in range(8): a(f"v_exp_f32 v{M+k}, v{M+k}")
    a(f"v_mul_f32 v{vt+2}, v{M}, v{Ls}")
    for k in range(1, 8): a(f"v_fma_f32 v{vt+2}, v{M+k}, v{Ls+k}, v{vt+2}")
    a(f"v_rcp_f32 v{vt+2}, v{vt+2}")
    a(f"v_lshlrev_b32 v{vt+3}, 2, v0")
    for k in range(8):
        a(f"v_mul_f32 v{M+k}, v{M+k}, v{vt+2}")
        a(f"ds_write_b32 v{vt+3}, v{M+k} offset:{k*512}")
    a("s_waitcnt lgkmcnt(0)")
    a.label("P3_noscale")
    r_frag_addrs(a, va, vt, v_lane, s_wave, s_t0, RING + A_OFF)
    t64_frag_addrs(a, vb, vt, v_lane, RING + B_OFF)
    ring = Ring(a, S, STAGE, s_rs, s_delta, s_neg, s_pos); ring.init()
    for b in range(2):
        for i in range(16): a(f"v_mov_b32 v{acc[b]+i}, 0")
    a(f"""
    v_lshrrev_b32 v{vsc}, 5, v{v_lane}
    v_lshlrev_b32 v{vsc}, 4, v{vsc}
    s_lshl_b32 s{s_t0}, s{s_wave}, 7
    v_add_u32 v{vsc}, s{s_t0}, v{vsc}
    """)
    def reads(step, st):
        r = [f"ds_read_b128 v[{fa[st]}:{fa[st]+3}], v{va+step}"]
        for b in range(2): r += tr2(fb[st][b], vb + b, 16*step*128, 128)
        return r
    regs = [va+i for i in range(4)] + [vb, vb+1]
    def mfmas(st, s, ci):
        par = (ci >> 1) & 1
        out = []
        for b in range(2):
            c = "0" if ((ci & 1) == 0 and s == 0) else f"v[{tmp[par][b]}:{tmp[par][b]+15}]"
            out.append(f"v_mfma_f32_32x32x16_bf16 v[{tmp[par][b]}:{tmp[par][b]+15}], v[{fa[st]}:{fa[st]+3}], v[{fb[st][b]}:{fb[st][b]+3}], {c}")
        return out
    def fold(par):
        return [f"v_fma_f32 v{acc[b]+i}, v{tmp[par][b]+i}, v{sc+i}, v{acc[b]+i}" for b in range(2) for i in range(16)]
    def hook(ci, s, last):
        par = (ci >> 1) & 1
        ex = {}
        if (ci & 1) == 0:
            lo, hi = {0: (0, 0), 1: (0, 11), 2: (11, 22), 3: (22, 32)}[s]
            f = fold(par ^ 1)[lo:hi]
            ex = {0: f[:len(f)//2], 1: f[len(f)//2:]}
        else:
            if s == 0:
                ex = {1: [f"s_lshl_b32 s{s_t0}, s{s_kt}, 9", f"v_add_u32 v{vt}, s{s_t0}, v{vsc}"] +
                         [f"ds_read_b128 v[{sc+4*r}:{sc+4*r+3}], v{vt} offset:{32*r}" for r in range(4)] +
                         [f"s_add_u32 s{s_kt}, s{s_kt}, 1", f"s_and_b32 s{s_kt}, s{s_kt}, 7"]}
        return ex
    def pre():
        pass
    for b in range(2):
        for i in range(16): a(f"v_mov_b32 v{tmp[1][b]+i}, 0")
    for i in range(16): a(f"v_mov_b32 v{sc+i}, 0")
    gemm_loop2(a, NC, ring, regs, reads, mfmas, [3, 5], s_cnt, "PV", D=2, per=3, hook=hook, unroll=4,
               first_hook=lambda: stamp(a, 2))
    a("s_waitcnt lgkmcnt(0)")
    for x in fold(1): a(x)
    stamp(a, 3)
    def t_epilogue(acc):
        a(f"""
        v_and_b32 v{vt}, 31, v{v_lane}
        v_mul_u32_u24 v{vst}, 272, v{vt}
        s_lshl_b32 s{s_t0}, s{s_wave}, 6
        v_add_u32 v{vst}, s{s_t0}, v{vst}
        v_lshrrev_b32 v{vt+1}, 5, v{v_lane}
        v_lshl_add_u32 v{vst}, v{vt+1}, 3, v{vst}
        s_barrier
        """)
        for b in range(2):
            for r in range(4):
                x = acc[b] + 4*r
                a(f"v_cvt_pk_bf16_f32 v{tp+2*(r&1)}, v{x}, v{x+1}")
                a(f"v_cvt_pk_bf16_f32 v{tp+2*(r&1)+1}, v{x+2}, v{x+3}")
                a(f"ds_write_b64 v{vst}, v[{tp+2*(r&1)}:{tp+2*(r&1)+1}] offset:{32*b*272 + 8*r*2}")
        a("s_waitcnt lgkmcnt(0)")
        a("s_barrier")
    t_epilogue(acc)
    a("s_branch P3_STORE")
    a.label("P3_PV_LOADER")
    vo, vo2, vt_l = 3, 4, 8
    a(f"s_sub_u32 s{s_wave}, s{s_wave}, 4")
    r_loader_voff(a, vo, vt_l, v_lane, s_wave, s_t0, 2048)
    t64_loader_voff(a, vo2, vt_l, v_lane, 1024)
    a(f"""
    s_lshl_b32 s{s_b0}, s{s_i0}, 7
    s_lshl_b32 s{s_t0}, s{s_wave}, 3
    s_add_u32 s{s_b0}, s{s_b0}, s{s_t0}
    s_lshl_b32 s{s_b0}, s{s_b0}, 11                ; P rows * 2048
    s_lshl_b32 s{s_b1}, s{s_wave}, 14
    s_lshl_b32 s{s_t0}, s{s_i1}, 7
    s_add_u32 s{s_b1}, s{s_b1}, s{s_t0}
    s_lshl_b32 s{s_l0}, s{s_wave}, 10
    s_lshl_b32 s{s_l1}, s{s_wave}, 11
    s_add_u32 s{s_l1}, s{s_l1}, {B_OFF}
    """)
    streams = [
        Stream(sA, [vo]*4, [i*32*2048 for i in range(4)], [A_OFF + i*4096 for i in range(4)], s_b0, 128, s_l0),
        Stream(sB, [vo2]*2, [0, 8*1024], [0, 1024], s_b1, 64*1024, s_l1),
    ]
    stamp(a, 2)
    loader_loop(a, streams, NC, S, STAGE, s_kc, s_slot, s_cnt, s_t0, s_t1, s_t2, lds_base=RING, ahead=3)
    stamp(a, 3)
    a("s_barrier")
    a("s_barrier")
    a("s_branch P3_STORE")

    a.label("P3_LOC")
    A_OFF, B_OFF, STAGE, S, NC = 0, 16384, 24576, 5, 8
    a(f"""
    s_sub_u32 s{s_idx}, s{s_idx}, 16
    s_lshr_b32 s{s_t0}, s{s_idx}, 3
    s_lshl_b32 s{s_i0}, s{s_xcd}, 1
    s_add_u32 s{s_i0}, s{s_i0}, s{s_t0}
    s_and_b32 s{s_i1}, s{s_idx}, 7                 ; ct
    s_lshl_b32 s{s_t0}, s{s_t0}, 2
    s_add_u32 s{s_kc}, s{s_i1}, s{s_t0}
    s_and_b32 s{s_kc}, s{s_kc}, 7
    s_add_u32 s{s_ob}, s{s_i1}, 8
    s_lshl_b32 s{s_ob}, s{s_ob}, 18
    s_lshl_b32 s{s_t1}, s{s_i0}, 7
    s_lshl_b32 s{s_t0}, s{s_t1}, 1
    s_add_u32 s{s_ob}, s{s_ob}, s{s_t0}
    s_sub_u32 s{s_vg}, 2000, s{s_t1}
    s_lshr_b32 s{s_vg}, s{s_vg}, 3
    s_min_u32 s{s_vg}, s{s_vg}, 16
    """)
    if "norot" in abl: a(f"s_mov_b32 s{s_kc}, 0")
    srd(a, sA, 4, 5, 512 * 4096, WS_ZT)
    srd(a, sB, 6, 7, 512 * 1024)
    a(f"s_cmp_ge_u32 s{s_wave}, 4")
    a("s_cbranch_scc1 P3_LOC_LOADER")
    V2 = Alloc(3, 256)
    va = V2(1); vb = V2(2); vt = V2(8, 2)
    fa = [V2(4, 4) for _ in range(4)]
    fb = [[V2(4, 4) for _ in range(2)] for _ in range(4)]
    acc2 = [V2(16, 4) for _ in range(2)]
    tp = V2(4, 4); vst = V2(1)
    t128_frag_addr_blk(a, va, vt, v_lane, RING + A_OFF, s_wave)
    t64_frag_addrs(a, vb, vt, v_lane, RING + B_OFF)
    ring = Ring(a, S, STAGE, s_rs, s_delta, s_neg, s_pos); ring.init()
    for b in range(2):
        for i in range(16): a(f"v_mov_b32 v{acc2[b]+i}, 0")
    def reads2(step, st):
        r = tr2(fa[st], va, 16*step*256, 256)
        for b in range(2): r += tr2(fb[st][b], vb + b, 16*step*128, 128)
        return r
    def mfmas2(st, s, par):
        return [f"v_mfma_f32_32x32x16_bf16 v[{acc2[b]}:{acc2[b]+15}], v[{fa[st]}:{fa[st]+3}], v[{fb[st][b]}:{fb[st][b]+3}], v[{acc2[b]}:{acc2[b]+15}]" for b in range(2)]
    gemm_loop2(a, NC, ring, [va, vb, vb+1], reads2, mfmas2, [4, 6], s_cnt, "L", D=2, per=3, first_hook=lambda: stamp(a, 2))
    stamp(a, 3)
    t_epilogue(acc2)
    a("s_branch P3_STORE")
    a.label("P3_LOC_LOADER")
    a(f"s_sub_u32 s{s_wave}, s{s_wave}, 4")
    t128_loader_voff(a, vo, vt_l, v_lane, 4096)
    t64_loader_voff(a, vo2, vt_l, v_lane, 1024)
    a(f"""
    s_lshl_b32 s{s_b0}, s{s_wave}, 16              ; 16 rows * 4096
    s_lshl_b32 s{s_t0}, s{s_i0}, 8                 ; 128 tokens * 2 B
    s_add_u32 s{s_b0}, s{s_b0}, s{s_t0}
    s_lshl_b32 s{s_b1}, s{s_wave}, 14
    s_lshl_b32 s{s_t0}, s{s_i1}, 7
    s_add_u32 s{s_b1}, s{s_b1}, s{s_t0}
    s_lshl_b32 s{s_l0}, s{s_wave}, 12              ; 16 rows * 256 B
    s_lshl_b32 s{s_l1}, s{s_wave}, 11
    s_add_u32 s{s_l1}, s{s_l1}, {B_OFF}
    """)
    streams = [
        Stream(sA, [vo]*4, [i*4*4096 for i in range(4)], [A_OFF + i*1024 for i in range(4)], s_b0, 64*4096, s_l0),
        Stream(sB, [vo2]*2, [0, 8*1024], [0, 1024], s_b1, 64*1024, s_l1),
    ]
    stamp(a, 2)
    loader_loop(a, streams, NC, S, STAGE, s_kc, s_slot, s_cnt, s_t0, s_t1, s_t2, lds_base=RING, ahead=3)
    stamp(a, 3)
    a("s_barrier")
    a("s_barrier")
    a.label("P3_STORE")
    store_T_tile(a, sO, s_ob, None, s_vg)
    if STAMPS_ON():
        a("s_waitcnt vmcnt(0)")
    stamp(a, 6)
    stamp_flush(a, 58)
    a.label(END)
    a("s_endpgm")
    return a.text(), dict(name=name, vgpr=max(V.hi, V2.hi, 64), sgpr=100, lds=LDS3, grid=256, block=512)


def gen_p3b(name="p3b_kernel"):
    a = Asm('p3b_')
    END = "P3B_END"
    sM, sO, sD = 8, 12, 16
    s_wave, s_xcd, s_idx, s_t0, s_t1, s_t2, s_c, s_b = 36, 37, 38, 42, 43, 44, 45, 46
    v_lane = 2
    prologue(a, END, [(4, 'ws'), (6, 'dw_merge')], s_wave, s_xcd, s_idx, 3)
    stamp_init(a, 4, 5, 3)
    srd(a, sM, 4, 5, 1024 * 4096, WS_MT)
    srd(a, sO, 4, 5, 1024 * 4096, WS_MPT)
    srd(a, sD, 6, 7, 31 * 2048)
    WP = 0
    a(f"""
    s_lshl_b32 s{s_c}, s2, 2                        ; c0 = 4*wg
    s_lshr_b32 s{s_b}, s{s_wave}, 2
    s_and_b32 s{s_t0}, s{s_wave}, 3
    s_add_u32 s{s_t1}, s{s_c}, s{s_t0}              ; channel
    s_lshl_b32 s{s_t1}, s{s_t1}, 12
    s_mul_i32 s{s_t2}, s{s_b}, 2000
    s_add_u32 s47, s{s_t1}, s{s_t2}
    """)
    vB, vG = 3, 4
    a(f"""
    v_and_b32 v5, 15, v{v_lane}
    v_lshrrev_b32 v6, 4, v{v_lane}                  ; g
    v_lshlrev_b32 v7, 4, v5                         ; 16 b
    v_lshl_add_u32 v{vB}, v6, 3, v7
    v_lshl_add_u32 v{vG}, v6, 2, v7                  ; 16b + 4g
    """)
    F = 24
    R = 56
    O = 64
    for grp in range(4):
        for s in range(2):
            a(f"""
            v_add_u32 v8, {256*grp - 16 + 32*s + 4096}, v{vB}
            v_subrev_u32 v8, 4096, v8
            v_cmp_gt_u32 vcc, 1000, v8
            v_lshlrev_b32 v8, 1, v8
            v_cndmask_b32 v8, -1, v8, vcc
            buffer_load_dwordx4 v[{F+8*grp+4*s}:{F+8*grp+4*s+3}], v8, s[{sM}:{sM+3}], s47 offen
            """)
        a(f"""
        v_add_u32 v8, {256*grp}, v{vG}
        v_cmp_gt_u32 vcc, 1000, v8
        v_lshlrev_b32 v8, 1, v8
        v_cndmask_b32 v{O+grp}, -1, v8, vcc
        buffer_load_dwordx2 v[{R+2*grp}:{R+2*grp+1}], v{O+grp}, s[{sM}:{sM+3}], s47 offen
        """)
    a(f"s_lshl_b32 s{s_t2}, s{s_c}, 1")
    build_filter_table(a, sD, s_t2, 4, 2048, WP, 72, s_t0)
    a("s_waitcnt lgkmcnt(0)")
    a("s_barrier")
    vT = 9
    conv_T_addr(a, vT, 10, v_lane, WP)
    a(f"""
    s_and_b32 s{s_t0}, s{s_wave}, 3
    s_mul_i32 s{s_t0}, s{s_t0}, {WP_CH}
    v_add_u32 v{vT}, s{s_t0}, v{vT}
    """)
    for x in conv_T_reads(12, vT, 0) + conv_T_reads(16, vT, 1): a(x)
    D = 88
    for grp in range(4):
        r = R + 2*grp; d = D + 4*grp
        a(f"""
        v_lshlrev_b32 v{d}, 16, v{r}
        v_and_b32 v{d+1}, 0xffff0000, v{r}
        v_lshlrev_b32 v{d+2}, 16, v{r+1}
        v_and_b32 v{d+3}, 0xffff0000, v{r+1}
        """)
    a("s_waitcnt lgkmcnt(0)")
    for s in range(2):
        for grp in range(4):
            d = D + 4*grp
            a(f"v_mfma_f32_16x16x32_bf16 v[{d}:{d+3}], v[{12+4*s}:{12+4*s+3}], v[{F+8*grp+4*s}:{F+8*grp+4*s+3}], v[{d}:{d+3}]")
    for grp in range(4):
        d = D + 4*grp; r = R + 2*grp
        a(f"v_cvt_pk_bf16_f32 v{r}, v{d}, v{d+1}")
        a(f"v_cvt_pk_bf16_f32 v{r+1}, v{d+2}, v{d+3}")
        a(f"buffer_store_dwordx2 v[{r}:{r+1}], v{O+grp}, s[{sO}:{sO+3}], s47 offen")
    if STAMPS_ON():
        a("s_waitcnt vmcnt(0)")
    stamp(a, 6)
    stamp_flush(a, 58)
    a.label(END)
    a("s_endpgm")
    return a.text(), dict(name=name, vgpr=108, sgpr=100, lds=2048, grid=256, block=512)


def gen_p4(name="p4_kernel", abl=(), phase=4):
    a = Asm('p4_')
    END = "P4_END"
    sA, sB, sO, sX = 8, 12, 16, 20
    s_wave, s_i0, s_i1, s_kc, s_slot, s_cnt, s_t0, s_t1, s_t2 = 36, 37, 38, 39, 40, 41, 42, 43, 44
    s_b0, s_b1, s_l0, s_l1 = 45, 46, 48, 49
    s_delta, s_neg, s_pos, s_rs = 52, 56, 57, 53
    s_xcd, s_idx, s_wn, s_wt = 47, 50, 24, 25
    v_lane = 2
    A_OFF, B_OFF, STAGE, S, NC = 0, 98304, 8192, 8, 16
    NRES = 12
    prologue(a, END, [(4, 'ws'), (6, 'w_merge'), (32, 'x'), (34, 'out')], s_wave, s_xcd, s_idx, 4)
    stamp_init(a, 4, 5, phase)
    a(f"""
    s_lshr_b32 s{s_t0}, s{s_idx}, 3
    s_lshl_b32 s{s_i0}, s{s_xcd}, 2
    s_add_u32 s{s_i0}, s{s_i0}, s{s_t0}
    s_and_b32 s{s_i1}, s{s_idx}, 7                 ; nt
    s_lshl_b32 s{s_t0}, s{s_t0}, 2
    s_lshl_b32 s{s_kc}, s{s_i1}, 1
    s_add_u32 s{s_kc}, s{s_kc}, s{s_t0}
    s_and_b32 s{s_kc}, s{s_kc}, 15
    """)
    if "norot" in abl: a(f"s_mov_b32 s{s_kc}, 0")
    srd(a, sA, 6, 7, 1024 * 1024)
    srd(a, sB, 4, 5, 1024 * 4096, WS_MPT)
    srd(a, sO, 34, 35, 2000 * 1024)
    srd(a, sX, 32, 33, 2000 * 1024)
    a(f"""
    v_lshrrev_b32 v4, 3, v0
    v_and_b32 v5, 7, v0
    v_lshlrev_b32 v5, 4, v5
    v_lshl_add_u32 v70, v4, 10, v5
    s_lshl_b32 s{s_t1}, s{s_i0}, 16              ; tt*64*1024
    s_lshl_b32 s{s_t2}, s{s_i1}, 7
    s_add_u32 s26, s{s_t1}, s{s_t2}
    """)
    a(f"s_cmp_ge_u32 s{s_wave}, 4")
    a("s_cbranch_scc1 P4_LOADER")
    V = Alloc(3, 68)
    va = V(1); vb = V(1); vt = V(8, 2)
    fa = [V(4, 4) for _ in range(4)]
    fb = [V(4, 4) for _ in range(4)]
    acc = V(16, 4)
    vst = V(1)
    a(f"s_and_b32 s{s_wn}, s{s_wave}, 1")
    a(f"s_lshr_b32 s{s_wt}, s{s_wave}, 1")
    t64_frag_addr_blk(a, va, vt, v_lane, A_OFF, s_wn, s_t0)
    t64_frag_addr_blk(a, vb, vt, v_lane, B_OFF, s_wt, s_t0)
    class Ring2(Ring):
        nb = 0
        def bump(self, regs):
            Ring.bump(self, regs)
            self.nb += 1
            d = 8192 if self.nb != NRES else -(NRES - 1) * 8192
            a(f"v_add_u32 v{va}, {d & 0xffffffff}, v{va}")
    ring = Ring2(a, S, STAGE, s_rs, s_delta, s_neg, s_pos); ring.init()
    for i in range(16): a(f"v_mov_b32 v{acc+i}, 0")
    def reads(step, st):
        return tr2(fa[st], va, 16*step*128, 128) + tr2(fb[st], vb, 16*step*128, 128)
    def mfmas(st, s, par):
        return [f"v_mfma_f32_32x32x16_bf16 v[{acc}:{acc+15}], v[{fa[st]}:{fa[st]+3}], v[{fb[st]}:{fb[st]+3}], v[{acc}:{acc+15}]"]
    def M_deps(v):
        a(f"""
        s_lshl_b32 s96, s{s_i0}, 6
        s_add_u32 s97, s96, 63
        s_min_u32 s97, s97, 1999
        s_min_u32 s96, s96, 1999
        v_mov_b32 v{v+1}, s96
        v_mov_b32 v{v+2}, s97
        v_bfe_u32 v{v+3}, v{v_lane}, 3, 1
        v_bfe_u32 v{v+4}, v{v_lane}, 2, 1
        v_cmp_lt_u32 vcc, 15, v{v_lane}
        v_cndmask_b32 v{v+3}, v{v+3}, v{v+4}, vcc
        v_cmp_eq_u32 vcc, 1, v{v+3}
        v_cndmask_b32 v{v+1}, v{v+1}, v{v+2}, vcc     ; token T
        v_cmp_le_u32 vcc, 1000, v{v+1}                ; batch
        v_subrev_u32 v{v+2}, 1000, v{v+1}
        v_cndmask_b32 v{v+1}, v{v+1}, v{v+2}, vcc     ; t
        v_mov_b32 v{v+2}, 0
        v_mov_b32 v{v+3}, 1
        v_cndmask_b32 v{v+2}, v{v+2}, v{v+3}, vcc     ; b
        v_mul_u32_u24 v{v+3}, 683, v{v+1}
        v_lshrrev_b32 v{v+3}, 16, v{v+3}              ; t / 96
        v_mul_u32_u24 v{v+4}, 11, v{v+2}
        v_add_u32 v{v+3}, v{v+3}, v{v+4}              ; b*11 + t/96
        v_and_b32 v{v+4}, 7, v{v_lane}
        v_lshl_add_u32 v{v+3}, v{v+3}, 3, v{v+4}
        v_lshrrev_b32 v{v+4}, 7, v{v+1}
        v_lshl_add_u32 v{v+4}, v{v+2}, 3, v{v+4}      ; b*8 + t/128
        v_and_b32 v{v+5}, 3, v{v_lane}
        v_lshl_add_u32 v{v+4}, v{v+4}, 2, v{v+5}
        v_add_u32 v{v+4}, 176, v{v+4}
        v_cmp_lt_u32 vcc, 15, v{v_lane}
        v_cndmask_b32 v{v}, v{v+3}, v{v+4}, vcc
        """)
    dep_wait(a, 2, vt, v_lane, M_deps)
    gemm_loop2(a, NC, ring, [vb], reads, mfmas, [4], s_cnt, "M", D=4, per=4, first_hook=lambda: stamp(a, 2), full=True)
    stamp(a, 3)
    a(f"""
    v_and_b32 v{vt}, 31, v{v_lane}
    s_lshl_b32 s{s_t0}, s{s_wt}, 5
    v_add_u32 v{vt}, s{s_t0}, v{vt}
    v_mul_u32_u24 v{vst}, 272, v{vt}
    s_lshl_b32 s{s_t0}, s{s_wn}, 7
    v_add_u32 v{vst}, s{s_t0}, v{vst}
    v_lshrrev_b32 v{vt+1}, 5, v{v_lane}
    v_lshl_add_u32 v{vst}, v{vt+1}, 4, v{vst}
    s_barrier
    """)
    for r in range(4):
        a(f"ds_write_b128 v{vst}, v[{acc+4*r}:{acc+4*r+3}] offset:{32*r}")
    a("s_waitcnt lgkmcnt(0)")
    a("s_barrier")
    a("s_branch P4_STORE")
    a.label("P4_LOADER")
    vo, vo2, vt_l = 3, 4, 8
    a(f"s_sub_u32 s{s_wave}, s{s_wave}, 4")
    t64_loader_voff(a, vo, vt_l, v_lane, 1024)
    t64_loader_voff(a, vo2, vt_l, v_lane, 4096)
    a(f"""
    s_lshl_b32 s{s_b0}, s{s_wave}, 14              ; 16 rows * 1024
    s_lshl_b32 s{s_t0}, s{s_i1}, 7
    s_add_u32 s{s_b0}, s{s_b0}, s{s_t0}
    s_lshl_b32 s{s_b1}, s{s_wave}, 16              ; 16 rows * 4096
    s_lshl_b32 s{s_t0}, s{s_i0}, 7                 ; 64 tokens * 2 B
    s_add_u32 s{s_b1}, s{s_b1}, s{s_t0}
    s_lshl_b32 s{s_l0}, s{s_wave}, 11
    s_mov_b32 s{s_l1}, s{s_l0}
    """)
    issued = []
    def issueW(kc):
        for j in range(2):
            a(f"s_add_u32 m0, s{s_l0}, {A_OFF + (kc % NRES)*8192 + j*1024}")
            a(f"s_add_u32 s{s_t2}, s{s_b0}, {kc*64*1024 + j*8*1024}")
            a(f"buffer_load_dwordx4 v{vo}, s[{sA}:{sA+3}], s{s_t2} offen lds")
            issued.append(("W", kc))
    def issueA(c):
        for j in range(2):
            a(f"s_add_u32 m0, s{s_l0}, {B_OFF + (c % S)*8192 + j*1024}")
            a(f"s_add_u32 s{s_t2}, s{s_b1}, {c*64*4096 + j*8*4096}")
            a(f"buffer_load_dwordx4 v{vo2}, s[{sB}:{sB+3}], s{s_t2} offen {common.SCF} lds")
            issued.append(("A", c))
    def wait_for(tag):
        last = max(i for i, t in enumerate(issued) if t == tag)
        a(f"s_waitcnt vmcnt({len(issued) - 1 - last})")
    for kc in range(NRES): issueW(kc)
    dep_wait(a, 2, 12, v_lane, None)
    stamp(a, 2)
    AH = 6
    for c in range(AH): issueA(c)
    wait_for(("A", 0))
    a("s_barrier")
    for c in range(NC - 1):
        if c + AH < NC: issueA(c + AH)
        if 2 <= c < 2 + (NC - NRES): issueW(NRES + c - 2)
        wait_for(("A", c + 1))
        a("s_barrier")
    stamp(a, 3)
    a("s_barrier")
    a("s_barrier")
    a.label("P4_STORE")
    a(f"""
    buffer_load_dwordx4 v[20:23], v70, s[{sX}:{sX+3}], s26 offen
    v_lshrrev_b32 v4, 3, v0
    v_and_b32 v5, 7, v0
    v_mul_u32_u24 v6, 272, v4
    v_lshl_add_u32 v6, v5, 5, v6
    ds_read_b128 v[8:11], v6
    ds_read_b128 v[12:15], v6 offset:16
    s_waitcnt vmcnt(0) lgkmcnt(0)
    """)
    for i in range(4):
        a(f"""
        v_lshlrev_b32 v24, 16, v{20+i}
        v_and_b32 v25, 0xffff0000, v{20+i}
        v_add_f32 v24, v24, v{8+2*i}
        v_add_f32 v25, v25, v{9+2*i}
        v_cvt_pk_bf16_f32 v{20+i}, v24, v25
        """)
    a(f"buffer_store_dwordx4 v[20:23], v70, s[{sO}:{sO+3}], s26 offen")
    if STAMPS_ON():
        a("s_waitcnt vmcnt(0)")
    stamp(a, 6)
    stamp_flush(a, 58)
    a.label(END)
    a("s_endpgm")
    return a.text(), dict(name=name, vgpr=72, sgpr=100, lds=163840, grid=256, block=512)
```

```python
from common import *
import common, struct
from p2 import conv_T_addr, conv_T_reads, WP_CH
from p3 import prologue
def STAMPS_ON(): return common.STAMPS


def tap_loads(a, sD, s_c0bytes, nch, vt, vdat, nthreads):
    sh = nch.bit_length() - 1
    per = nthreads // nch
    rounds = (31 + per - 1) // per
    for j in range(rounds):
        a(f"""
        v_lshrrev_b32 v{vt}, {sh}, v0
        v_add_u32 v{vt}, {per*j}, v{vt}              ; tap
        v_and_b32 v{vt+1}, {nch-1}, v0                ; channel
        v_lshlrev_b32 v{vt+2}, 11, v{vt}              ; tap*2048
        v_lshl_add_u32 v{vt+2}, v{vt+1}, 1, v{vt+2}
        v_cmp_gt_u32 vcc, 31, v{vt}
        v_cndmask_b32 v{vt+2}, -1, v{vt+2}, vcc
        buffer_load_ushort v{vdat+j}, v{vt+2}, s[{sD}:{sD+3}], s{s_c0bytes} offen
        """)
    return rounds

def tap_writes(a, nch, wp_base, vt, vdat, rounds, nthreads, vbase=0):
    sh = nch.bit_length() - 1
    per = nthreads // nch
    a(f"""
    v_and_b32 v{vt+1}, {nch-1}, v0
    v_mul_u32_u24 v{vt+1}, {WP_CH}, v{vt+1}
    v_lshrrev_b32 v{vt}, {sh}, v0
    v_lshl_add_u32 v{vt+1}, v{vt}, 1, v{vt+1}
    """)
    if vbase: a(f"v_add_u32 v{vt+1}, {vbase}, v{vt+1}")
    for j in range(rounds):
        last = (per * (j + 1) > 31)
        if last:
            a(f"""
            v_add_u32 v{vt+2}, {per*j}, v{vt}
            v_cmp_gt_u32 vcc, 31, v{vt+2}
            s_and_saveexec_b64 s[54:55], vcc
            """)
        a(f"ds_write_b16 v{vt+1}, v{vdat+j} offset:{wp_base + 32 + 2*per*j}")
        a(f"ds_write_b16 v{vt+1}, v{vdat+j} offset:{wp_base + 192 + 30 + 2*per*j}")
        if last: a("s_mov_b64 exec, s[54:55]")

def zero_fill(a, base, nbytes, vt, nthreads, vbase=0):
    a(f"""
    v_mov_b32 v{vt}, 0
    v_mov_b32 v{vt+1}, 0
    v_mov_b32 v{vt+2}, 0
    v_mov_b32 v{vt+3}, 0
    """)
    ngran = (nbytes + 15) // 16
    for j in range((ngran + nthreads - 1) // nthreads):
        a(f"""
        v_add_u32 v{vt+5}, {nthreads*j}, v0
        v_lshlrev_b32 v{vt+4}, 4, v{vt+5}
        """)
        if vbase: a(f"v_add_u32 v{vt+4}, {vbase}, v{vt+4}")
        if nthreads * (j + 1) > ngran:
            a(f"""
            v_cmp_gt_u32 vcc, {ngran}, v{vt+5}
            s_and_saveexec_b64 s[54:55], vcc
            ds_write_b128 v{vt+4}, v[{vt}:{vt+3}] offset:{base}
            s_mov_b64 exec, s[54:55]
            """)
        else:
            a(f"ds_write_b128 v{vt+4}, v[{vt}:{vt+3}] offset:{base}")

def conv_stage(a, s_w8, nch_per_wave, nblk, raw_base, raw_pitch, wp_base, sO, s_orow, s_tvalid, s_t0, s_t1, v_lane):
    vT, vB, vC, vS, vT2, vB2 = 8, 9, 10, 11, 6, 7
    conv_T_addr(a, vT, 12, v_lane, wp_base)
    a(f"""
    s_mul_i32 s{s_t0}, s{s_w8}, {nch_per_wave*WP_CH}
    v_add_u32 v{vT}, s{s_t0}, v{vT}
    v_lshrrev_b32 v13, 4, v{v_lane}                 ; g
    v_lshlrev_b32 v12, 3, v13                       ; 4g*2 bytes
    v_sub_u32 v{vT2}, v{vT}, v12                     ; 8g -> 4g elements
    v_and_b32 v12, 15, v{v_lane}
    v_min_u32 v14, {nblk-1}, v12
    v_lshlrev_b32 v14, 5, v14                       ; 16*b*2 (clamped)
    v_lshl_add_u32 v{vB}, v13, 4, v14                ; + 8g*2
    s_mul_i32 s{s_t0}, s{s_w8}, {nch_per_wave*raw_pitch}
    s_add_u32 s{s_t0}, s{s_t0}, {raw_base}
    v_add_u32 v{vB}, s{s_t0}, v{vB}
    v_lshl_add_u32 v{vC}, v13, 3, v14                ; (16b + 4g)*2
    v_add_u32 v{vC}, s{s_t0}, v{vC}
    v_lshlrev_b32 v15, 4, v12
    v_and_b32 v12, 2, v13
    v_lshl_add_u32 v15, v12, 2, v15
    v_cmp_gt_u32 vcc, s{s_tvalid}, v15
    v_lshlrev_b32 v15, 1, v15
    v_and_b32 v12, 1, v13
    v_lshl_add_u32 v15, v12, 12, v15
    v_cndmask_b32 v{vS}, -1, v15, vcc
    s_mul_i32 s{s_t0}, s{s_w8}, {nch_per_wave*4096}
    s_add_u32 s{s_t0}, s{s_t0}, s{s_orow}
    """)
    NG = nch_per_wave // 2
    def regs(slot, c): return 16 + 32*slot + 16*c
    D = 80; VTX = 96
    def issue(g):
        slot = g & 1
        tb0 = VTX + 2*slot; tb1 = tb0 + 1
        a(f"v_add_u32 v{tb0}, {(2*g)*WP_CH}, v{vT}")
        a(f"v_add_u32 v{tb1}, {(2*g)*WP_CH}, v{vT2}")
        for c in range(2):
            ch = 2*g + c; r = regs(slot, c); o = c * (WP_CH // 4)
            a(f"ds_read2_b32 v[{r}:{r+1}], v{tb0} offset0:{o} offset1:{o+1}")
            a(f"ds_read2_b32 v[{r+2}:{r+3}], v{tb0} offset0:{o+2} offset1:{o+3}")
            a(f"ds_read_b128 v[{r+4}:{r+7}], v{vB} offset:{ch*raw_pitch}")
            a(f"ds_read2_b32 v[{r+8}:{r+9}], v{tb1} offset0:{o+16} offset1:{o+17}")
            a(f"ds_read_b64 v[{r+10}:{r+11}], v{vC} offset:{ch*raw_pitch + 64}")
            a(f"ds_read_b64 v[{r+12}:{r+13}], v{vC} offset:{ch*raw_pitch + 32}")
    def process(g, more):
        slot = g & 1
        for c in range(2):
            r = regs(slot, c); d = D + 8*slot + 4*c
            a(f"s_waitcnt lgkmcnt({min(15, (6 if c == 0 else 0) + (12 if more else 0))})")
            a(f"""
            v_lshlrev_b32 v{d}, 16, v{r+12}
            v_and_b32 v{d+1}, 0xffff0000, v{r+12}
            v_lshlrev_b32 v{d+2}, 16, v{r+13}
            v_and_b32 v{d+3}, 0xffff0000, v{r+13}
            """)
            a(f"v_mfma_f32_16x16x32_bf16 v[{d}:{d+3}], v[{r}:{r+3}], v[{r+4}:{r+7}], v[{d}:{d+3}]")
        if g > 0: finish(g - 1)
        for c in range(2):
            r = regs(slot, c); d = D + 8*slot + 4*c
            a(f"v_mfma_f32_16x16x16_bf16 v[{d}:{d+3}], v[{r+8}:{r+9}], v[{r+10}:{r+11}], v[{d}:{d+3}]")
    def finish(g):
        slot = g & 1
        d0 = D + 8*slot; o = 100 + 4*slot
        a(f"v_cvt_pk_bf16_f32 v{o}, v{d0}, v{d0+1}")
        a(f"v_cvt_pk_bf16_f32 v{o+1}, v{d0+2}, v{d0+3}")
        a(f"v_cvt_pk_bf16_f32 v{o+2}, v{d0+4}, v{d0+5}")
        a(f"v_cvt_pk_bf16_f32 v{o+3}, v{d0+6}, v{d0+7}")
        a(f"v_permlane16_swap_b32 v{o}, v{o+2}")
        a(f"v_permlane16_swap_b32 v{o+1}, v{o+3}")
        a(f"s_add_u32 s{s_t1}, s{s_t0}, {2*g*4096}")
        a(f"buffer_store_dwordx4 v[{o}:{o+3}], v{vS}, s[{sO}:{sO+3}], s{s_t1} offen {common.SCF}")
    issue(0)
    for g in range(NG):
        more = g + 1 < NG
        if more:
            a("s_waitcnt lgkmcnt(3)")
            issue(g + 1)
        process(g, more)
    finish(NG - 1)

def gen_p3f(name="p3_kernel", abl=()):
    SC = common.SCF
    a = Asm('p3_')
    END = "P3_END"
    sA, sB, sO, sS, sD = 8, 12, 16, 20, 28
    s_wave, s_i0, s_i1, s_kc, s_slot, s_cnt, s_t0, s_t1, s_t2 = 36, 37, 38, 39, 40, 41, 42, 43, 44
    s_b0, s_b1, s_l0, s_l1 = 45, 46, 48, 49
    s_b, s_delta, s_neg, s_pos, s_rs = 51, 52, 56, 57, 53
    s_xcd, s_idx = 47, 50
    s_kt, s_ob, s_tv, s_c0b = 24, 25, 26, 27
    v_lane = 2
    prologue(a, END, [(4, 'ws'), (6, 'w_mlp_out'), (32, 'dw_merge')], s_wave, s_xcd, s_idx, 2)
    if common.PERS:
        a(f"s_mov_b32 s{S_FID}, -1")
        a(f"s_cmp_lt_u32 s{s_idx}, 30")
        a("s_cbranch_scc1 P3_WORK")
        a("s_cmp_lg_u32 s2, 255")
        a(f"s_cbranch_scc1 {END}")
        epoch_bump(a, v_lane)
        a(f"s_branch {END}")
        a.label("P3_WORK")
    else:
        a(f"s_cmp_ge_u32 s{s_idx}, 30")
        a(f"s_cbranch_scc1 {END}")
    stamp_init(a, 4, 5, 2)
    srd(a, sO, 4, 5, 1024 * 4096, WS_MPT)
    srd(a, sD, 32, 33, 31 * 2048)
    a(f"s_lshr_b32 s{s_b}, s{s_xcd}, 2")
    a(f"s_cmp_ge_u32 s{s_idx}, 22")
    a("s_cbranch_scc1 P3_LOC")
    RING = 4096
    A_OFF, B_OFF, STAGE, S, NC = 0, 16384, 24576, 5, 16
    RAW, RP = 0, 272
    WPB = RING + S * STAGE
    a(f"""
    s_and_b32 s{s_t0}, s{s_xcd}, 3
    s_mul_i32 s{s_t0}, s{s_t0}, 22
    s_add_u32 s{s_t0}, s{s_t0}, s{s_idx}           ; j
    s_lshr_b32 s{s_i0}, s{s_t0}, 3                 ; tt
    s_and_b32 s{s_i1}, s{s_t0}, 7                  ; ct
    s_mov_b32 s{s_kt}, s{s_i1}
    """)
    if "norot" in abl: a(f"s_mov_b32 s{s_kt}, 0")
    a(f"""
    s_lshl_b32 s{s_kc}, s{s_kt}, 1
    s_lshl_b32 s{s_t0}, s{s_b}, 21
    s_add_u32 s{s_t0}, s{s_t0}, {WS_PT - 16*2048}
    s_add_u32 s{sA}, s4, s{s_t0}
    s_addc_u32 s{sA+1}, s5, 0
    s_mov_b32 s{sA+2}, {1016*2048}
    s_mov_b32 s{sA+3}, 0x20000
    s_mul_i32 s{s_t0}, s{s_b}, {1000*1024}
    s_add_u32 s{s_t0}, s{s_t0}, {WS_VP}
    s_add_u32 s{sB}, s4, s{s_t0}
    s_addc_u32 s{sB+1}, s5, 0
    s_mov_b32 s{sB+2}, {1000*1024}
    s_mov_b32 s{sB+3}, 0x20000
    s_mul_i32 s{s_t1}, s{s_i0}, 96
    s_lshl_b32 s{s_ob}, s{s_i1}, 18
    s_mul_i32 s{s_t0}, s{s_b}, 1000
    s_add_u32 s{s_t0}, s{s_t0}, s{s_t1}
    s_lshl_b32 s{s_t0}, s{s_t0}, 1
    s_add_u32 s{s_ob}, s{s_ob}, s{s_t0}
    s_sub_u32 s{s_tv}, 1000, s{s_t1}
    s_min_u32 s{s_tv}, s{s_tv}, 96
    s_lshl_b32 s{s_c0b}, s{s_i1}, 7
    """)
    srd(a, sS, 4, 5, 2*8*2*1024*4, WS_SST)
    if common.PERS:
        a(f"s_mul_i32 s{S_FID}, s{s_b}, 88")
        a(f"s_lshl_b32 s{s_t0}, s{s_i0}, 3")
        a(f"s_add_u32 s{S_FID}, s{S_FID}, s{s_t0}")
        a(f"s_add_u32 s{S_FID}, s{S_FID}, s{s_i1}")
    def PV_deps(v):
        a(f"""
        s_mul_i32 s96, s{s_i0}, 96
        s_add_u32 s97, s96, 111
        s_min_u32 s97, s97, 999
        s_lshr_b32 s97, s97, 7                       ; qb
        s_max_u32 s96, s96, 16
        s_sub_u32 s96, s96, 16
        s_lshr_b32 s96, s96, 7                       ; qa
        v_mov_b32 v{v+1}, s96
        v_mov_b32 v{v+2}, s97
        v_cmp_lt_u32 vcc, 7, v{v_lane}
        v_cndmask_b32 v{v+1}, v{v+1}, v{v+2}, vcc
        v_and_b32 v{v+2}, 7, v{v_lane}
        v_lshl_add_u32 v{v+1}, v{v+1}, 3, v{v+2}
        s_lshl_b32 s96, s{s_b}, 6
        v_add_u32 v{v+1}, s96, v{v+1}                 ; S id
        v_min_u32 v{v+2}, 24, v{v_lane}
        v_subrev_u32 v{v+2}, 16, v{v+2}
        s_mul_i32 s96, s{s_b}, 7
        v_add_u32 v{v+2}, s96, v{v+2}
        s_lshl_b32 s97, s{s_b}, 3
        s_add_u32 s97, s97, 7
        v_min_u32 v{v+2}, s97, v{v+2}
        s_lshr_b32 s96, s{s_i1}, 1
        s_add_u32 s96, s96, 128
        v_lshl_add_u32 v{v+2}, v{v+2}, 2, s96
        v_cmp_lt_u32 vcc, 15, v{v_lane}
        v_cndmask_b32 v{v}, v{v+1}, v{v+2}, vcc
        """)
    rounds = tap_loads(a, sD, s_c0b, 64, 16, 24, 512)
    zero_fill(a, 0, 64 * WP_CH, 8, 512, vbase=WPB)
    a("s_waitcnt vmcnt(0) lgkmcnt(0)")
    a("s_barrier")
    tap_writes(a, 64, 0, 16, 24, rounds, 512, vbase=WPB)
    a("s_waitcnt lgkmcnt(0)")
    a(f"s_cmp_ge_u32 s{s_wave}, 4")
    a("s_cbranch_scc1 P3_PV_LOADER")
    V = Alloc(3, 256)
    va = V(4); vb = V(2); vt = V(8, 2)
    fa = [V(4, 4) for _ in range(4)]
    fb = [[V(4, 4) for _ in range(2)] for _ in range(4)]
    tmp = [[V(16, 4) for _ in range(2)] for _ in range(2)]
    acc = [V(16, 4) for _ in range(2)]
    sc = V(16, 4)
    vsc = V(1); tp = V(4, 4); vst = V(1)
    r_frag_addrs(a, va, vt, v_lane, s_wave, s_t0, RING + A_OFF)
    t64_frag_addrs(a, vb, vt, v_lane, RING + B_OFF)
    for b in range(2):
        for i in range(16): a(f"v_mov_b32 v{acc[b]+i}, 0")
    dep_wait(a, 1, tmp[1][0], v_lane, PV_deps)
    a(f"s_cmp_ge_u32 s{s_wave}, 2")
    a("s_cbranch_scc1 P3_noscale")
    M = tmp[0][0]; Ls = tmp[0][1]
    a(f"""
    s_mul_i32 s{s_t0}, s{s_i0}, 96
    v_add_u32 v{vt}, s{s_t0}, v0
    v_subrev_u32 v{vt}, 16, v{vt}                   ; t
    v_cmp_gt_u32 vcc, 1000, v{vt}
    s_mov_b64 s[98:99], vcc
    v_lshlrev_b32 v{vt}, 2, v{vt}
    v_cndmask_b32 v{vt}, -1, v{vt}, vcc
    s_lshl_b32 s{s_t1}, s{s_b}, 16                 ; b*8*2*1024*4
    """)
    for k in range(8):
        a(f"s_add_u32 s{s_t2}, s{s_t1}, {k*8192}")
        a(f"buffer_load_dword v{M+k}, v{vt}, s[{sS}:{sS+3}], s{s_t2} offen {SC}")
        a(f"s_add_u32 s{s_t2}, s{s_t1}, {k*8192 + 4096}")
        a(f"buffer_load_dword v{Ls+k}, v{vt}, s[{sS}:{sS+3}], s{s_t2} offen {SC}")
    a("s_waitcnt vmcnt(0)")
    a(f"v_max3_f32 v{vt+1}, v{M}, v{M+1}, v{M+2}")
    a(f"v_max3_f32 v{vt+1}, v{M+3}, v{M+4}, v{vt+1}")
    a(f"v_max3_f32 v{vt+1}, v{M+5}, v{M+6}, v{vt+1}")
    a(f"v_max_f32 v{vt+1}, v{M+7}, v{vt+1}")
    for k in range(8): a(f"v_sub_f32 v{M+k}, v{M+k}, v{vt+1}")
    for k in range(8): a(f"v_exp_f32 v{M+k}, v{M+k}")
    a(f"v_mul_f32 v{vt+2}, v{M}, v{Ls}")
    for k in range(1, 8): a(f"v_fma_f32 v{vt+2}, v{M+k}, v{Ls+k}, v{vt+2}")
    a(f"v_rcp_f32 v{vt+2}, v{vt+2}")
    a(f"v_lshlrev_b32 v{vt+3}, 2, v0")
    a(f"v_cndmask_b32 v{vt+2}, 0, v{vt+2}, s[98:99]")
    for k in range(8):
        a(f"v_mul_f32 v{M+k}, v{M+k}, v{vt+2}")
        a(f"ds_write_b32 v{vt+3}, v{M+k} offset:{k*512}")
    a("s_waitcnt lgkmcnt(0)")
    a.label("P3_noscale")
    ring = Ring(a, S, STAGE, s_rs, s_delta, s_neg, s_pos); ring.init()
    a(f"""
    v_lshrrev_b32 v{vsc}, 5, v{v_lane}
    v_lshlrev_b32 v{vsc}, 4, v{vsc}
    s_lshl_b32 s{s_t0}, s{s_wave}, 7
    v_add_u32 v{vsc}, s{s_t0}, v{vsc}
    """)
    def reads(step, st):
        r = [f"ds_read_b128 v[{fa[st]}:{fa[st]+3}], v{va+step}"]
        for b in range(2): r += tr2(fb[st][b], vb + b, 16*step*128, 128)
        return r
    regs = [va+i for i in range(4)] + [vb, vb+1]
    def mfmas(st, s, ci):
        par = (ci >> 1) & 1
        out = []
        for b in range(2):
            c = "0" if ((ci & 1) == 0 and s == 0) else f"v[{tmp[par][b]}:{tmp[par][b]+15}]"
            out.append(f"v_mfma_f32_32x32x16_bf16 v[{tmp[par][b]}:{tmp[par][b]+15}], v[{fa[st]}:{fa[st]+3}], v[{fb[st][b]}:{fb[st][b]+3}], {c}")
        return out
    def fold(par):
        return [f"v_fma_f32 v{acc[b]+i}, v{tmp[par][b]+i}, v{sc+i}, v{acc[b]+i}" for b in range(2) for i in range(16)]
    def hook(ci, s, last):
        par = (ci >> 1) & 1
        ex = {}
        if (ci & 1) == 0:
            lo, hi = {0: (0, 0), 1: (0, 11), 2: (11, 22), 3: (22, 32)}[s]
            f = fold(par ^ 1)[lo:hi]
            ex = {0: f[:len(f)//2], 1: f[len(f)//2:]}
        elif s == 0:
            ex = {1: [f"s_lshl_b32 s{s_t0}, s{s_kt}, 9", f"v_add_u32 v{vt}, s{s_t0}, v{vsc}"] +
                     [f"ds_read_b128 v[{sc+4*r}:{sc+4*r+3}], v{vt} offset:{32*r}" for r in range(4)] +
                     [f"s_add_u32 s{s_kt}, s{s_kt}, 1", f"s_and_b32 s{s_kt}, s{s_kt}, 7"]}
        return ex
    for b in range(2):
        for i in range(16): a(f"v_mov_b32 v{tmp[1][b]+i}, 0")
    for i in range(16): a(f"v_mov_b32 v{sc+i}, 0")
    gemm_loop2(a, NC, ring, regs, reads, mfmas, [3, 5], s_cnt, "PV", D=2, per=3, hook=hook, unroll=4,
               first_hook=lambda: stamp(a, 2))
    a("s_waitcnt lgkmcnt(0)")
    for x in fold(1): a(x)
    stamp(a, 3)
    a(f"""
    v_and_b32 v{vt}, 31, v{v_lane}
    v_mul_u32_u24 v{vst}, {RP}, v{vt}
    s_lshl_b32 s{s_t0}, s{s_wave}, 6
    v_add_u32 v{vst}, s{s_t0}, v{vst}
    v_lshrrev_b32 v{vt+1}, 5, v{v_lane}
    v_lshl_add_u32 v{vst}, v{vt+1}, 3, v{vst}
    s_barrier
    """)
    for b in range(2):
        for r in range(4):
            x = acc[b] + 4*r
            a(f"v_cvt_pk_bf16_f32 v{tp+2*(r&1)}, v{x}, v{x+1}")
            a(f"v_cvt_pk_bf16_f32 v{tp+2*(r&1)+1}, v{x+2}, v{x+3}")
            a(f"ds_write_b64 v{vst}, v[{tp+2*(r&1)}:{tp+2*(r&1)+1}] offset:{RAW + 32*b*RP + 8*r*2}")
    a("s_waitcnt lgkmcnt(0)")
    stamp(a, 5)
    a("s_barrier")
    a("s_branch P3_PV_CONV")
    a.label("P3_PV_LOADER")
    vo, vo1, vo2, vt_l = 3, 5, 4, 8
    a(f"s_sub_u32 s{s_wave}, s{s_wave}, 4")
    r_loader_voff(a, vo, vt_l, v_lane, s_wave, s_t0, 2048)
    t64_loader_voff(a, vo2, vt_l, v_lane, 1024)
    a(f"""
    v_mov_b32 v{vo1}, v{vo}
    s_cmp_lg_u32 s{s_i0}, 0
    s_cbranch_scc1 P3_pv_v
    s_cmp_ge_u32 s{s_wave}, 2
    s_cbranch_scc1 P3_pv_v
    v_mov_b32 v{vo1}, 0x7ff00000
    P3_pv_v:
    s_mul_i32 s{s_b0}, s{s_i0}, 96
    s_lshl_b32 s{s_t0}, s{s_wave}, 3
    s_add_u32 s{s_b0}, s{s_b0}, s{s_t0}
    s_lshl_b32 s{s_b0}, s{s_b0}, 11
    s_lshl_b32 s{s_b1}, s{s_wave}, 14
    s_lshl_b32 s{s_t0}, s{s_i1}, 7
    s_add_u32 s{s_b1}, s{s_b1}, s{s_t0}
    s_lshl_b32 s{s_l0}, s{s_wave}, 10
    s_lshl_b32 s{s_l1}, s{s_wave}, 11
    s_add_u32 s{s_l1}, s{s_l1}, {B_OFF}
    """)
    streams = [
        Stream(sA, [vo1, vo, vo, vo], [i*32*2048 for i in range(4)], [A_OFF + i*4096 for i in range(4)], s_b0, 128, s_l0, dep=True),
        Stream(sB, [vo2]*2, [0, 8*1024], [0, 1024], s_b1, 64*1024, s_l1, dep=True),
    ]
    dep_wait(a, 1, 16, v_lane, None)
    stamp(a, 2)
    loader_loop(a, streams, NC, S, STAGE, s_kc, s_slot, s_cnt, s_t0, s_t1, s_t2, lds_base=RING, ahead=3)
    stamp(a, 3)
    a("s_barrier")
    a("s_barrier")
    a.label("P3_PV_CONV")
    conv_stage(a, 58, 8, 6, RAW, RP, WPB, sO, s_ob, s_tv, s_t0, s_t1, v_lane)
    a("s_branch P3_FIN")

    a.label("P3_LOC")
    A_OFF, B_OFF, STAGE, S, NC = 0, 20480, 36864, 4, 8
    RP2 = 336
    WPB2 = 128 * RP2
    TAPR = 240
    a(f"""
    s_sub_u32 s{s_idx}, s{s_idx}, 22
    s_and_b32 s{s_t0}, s{s_xcd}, 3
    s_lshl_b32 s{s_i0}, s{s_t0}, 1
    s_lshr_b32 s{s_t0}, s{s_idx}, 2
    s_add_u32 s{s_i0}, s{s_i0}, s{s_t0}            ; tt
    s_and_b32 s{s_i1}, s{s_idx}, 3
    s_mov_b32 s{s_kc}, s{s_idx}
    """)
    if "norot" in abl: a(f"s_mov_b32 s{s_kc}, 0")
    a(f"""
    s_lshl_b32 s{s_t1}, s{s_i0}, 7                 ; t_o = 128 tt
    s_add_u32 s{s_ob}, s{s_i1}, 4
    s_lshl_b32 s{s_ob}, s{s_ob}, 19
    s_mul_i32 s{s_t0}, s{s_b}, 1000
    s_add_u32 s{s_t0}, s{s_t0}, s{s_t1}
    s_lshl_b32 s{s_t0}, s{s_t0}, 1
    s_mov_b32 s{s_kt}, s{s_t0}                     ; flat t_o * 2
    s_add_u32 s{s_ob}, s{s_ob}, s{s_t0}
    s_sub_u32 s{s_tv}, 1000, s{s_t1}
    s_min_u32 s{s_tv}, s{s_tv}, 128
    s_lshl_b32 s{s_c0b}, s{s_i1}, 8
    s_add_u32 s{s_c0b}, s{s_c0b}, 1024             ; (512 + 128nt)*2
    """)
    srd(a, sA, 4, 5, 512 * 4096 + 64, WS_ZT - 64)
    srd(a, sB, 6, 7, 512 * 1024)
    rounds2 = tap_loads(a, sD, s_c0b, 128, 16, TAPR, 512)
    if common.PERS:
        a(f"s_lshl_b32 s{S_FID}, s{s_b}, 5")
        a(f"s_lshl_b32 s{s_t0}, s{s_i0}, 2")
        a(f"s_add_u32 s{S_FID}, s{S_FID}, s{s_t0}")
        a(f"s_add_u32 s{S_FID}, s{S_FID}, s{s_i1}")
        a(f"s_add_u32 s{S_FID}, s{S_FID}, 176")
    def L_deps(v):
        a(f"""
        s_lshl_b32 s96, s{s_i0}, 7
        s_add_u32 s97, s96, 143
        s_min_u32 s97, s97, 999
        s_lshr_b32 s97, s97, 8                       ; gb
        s_max_u32 s96, s96, 16
        s_sub_u32 s96, s96, 16
        s_lshr_b32 s96, s96, 8                       ; ga
        v_mov_b32 v{v+1}, s96
        v_mov_b32 v{v+2}, s97
        v_bfe_u32 v{v+3}, v{v_lane}, 3, 1
        v_cmp_eq_u32 vcc, 1, v{v+3}
        v_cndmask_b32 v{v+1}, v{v+1}, v{v+2}, vcc
        s_lshl_b32 s96, s{s_b}, 2
        s_add_u32 s96, s96, 192
        v_add_u32 v{v+1}, s96, v{v+1}
        v_and_b32 v{v+2}, 7, v{v_lane}
        v_lshl_add_u32 v{v}, v{v+2}, 3, v{v+1}
        """)
    a(f"s_cmp_ge_u32 s{s_wave}, 4")
    a("s_cbranch_scc1 P3_LOC_LOADER")
    V2 = Alloc(3, 256)
    va = V2(1); vb = V2(1); vt = V2(8, 2)
    fa = [[V2(4, 4) for _ in range(5)] for _ in range(2)]
    fb = [V2(4, 4) for _ in range(2)]
    acc2 = [V2(16, 4) for _ in range(5)]
    tp = V2(4, 4); vst = V2(1)
    t_frag_common(a, vt, v_lane)
    a(f"""
    v_mul_u32_u24 v{va}, 320, v{vt}
    v_add_u32 v{va}, v{va}, v{vt+2}
    """)
    t128_frag_addr_blk(a, vb, vt, v_lane, B_OFF, s_wave)
    ring = Ring(a, S, STAGE, s_rs, s_delta, s_neg, s_pos); ring.init()
    for b in range(5):
        for i in range(16): a(f"v_mov_b32 v{acc2[b]+i}, 0")
    def reads2(step, st):
        r = tr2(fb[st], vb, 16*step*256, 256)
        for b in range(5): r += tr2(fa[st][b], va, A_OFF + 16*step*320 + 64*b, 320)
        return r
    def mfmas2(st, s, par):
        return [f"v_mfma_f32_32x32x16_bf16 v[{acc2[b]}:{acc2[b]+15}], v[{fa[st][b]}:{fa[st][b]+3}], v[{fb[st]}:{fb[st]+3}], v[{acc2[b]}:{acc2[b]+15}]" for b in range(5)]
    dep_wait(a, 1, vt, v_lane, L_deps)
    gemm_loop2(a, NC, ring, [va, vb], reads2, mfmas2, [4, 6, 8, 10, 12], s_cnt, "L", D=1, per=4, first_hook=lambda: stamp(a, 2))
    stamp(a, 3)
    a(f"""
    v_and_b32 v{vt}, 31, v{v_lane}
    s_lshl_b32 s{s_t0}, s{s_wave}, 5
    v_add_u32 v{vt}, s{s_t0}, v{vt}
    v_mul_u32_u24 v{vst}, {RP2}, v{vt}
    v_lshrrev_b32 v{vt+1}, 5, v{v_lane}
    v_lshl_add_u32 v{vst}, v{vt+1}, 3, v{vst}
    s_barrier
    """)
    for b in range(5):
        for r in range(4):
            x = acc2[b] + 4*r
            a(f"v_cvt_pk_bf16_f32 v{tp+2*(r&1)}, v{x}, v{x+1}")
            a(f"v_cvt_pk_bf16_f32 v{tp+2*(r&1)+1}, v{x+2}, v{x+3}")
            a(f"ds_write_b64 v{vst}, v[{tp+2*(r&1)}:{tp+2*(r&1)+1}] offset:{(32*b + 8*r)*2}")
    a("s_waitcnt vmcnt(0) lgkmcnt(0)")
    a("s_barrier")
    a("s_branch P3_LOC_TAPS")
    a.label("P3_LOC_LOADER")
    vz, vo2, vt_l = 3, 8, 10
    a(f"s_sub_u32 s{s_wave}, s{s_wave}, 4")
    a(f"s_lshl_b32 s{s_t0}, s{s_i0}, 7")
    for j in range(5):
        a(f"""
        v_add_u32 v{vt_l}, {64*j}, v{v_lane}
        v_mul_u32_u24 v{vt_l+1}, 52429, v{vt_l}
        v_lshrrev_b32 v{vt_l+1}, 20, v{vt_l+1}        ; row = f/20
        v_mul_u32_u24 v{vt_l+2}, 20, v{vt_l+1}
        v_sub_u32 v{vt_l+2}, v{vt_l}, v{vt_l+2}       ; slot
        v_lshlrev_b32 v{vt_l+3}, 3, v{vt_l+2}
        v_add_u32 v{vt_l+3}, s{s_t0}, v{vt_l+3}
        v_subrev_u32 v{vt_l+3}, 16, v{vt_l+3}
        v_cmp_gt_u32 vcc, 1000, v{vt_l+3}
        v_lshlrev_b32 v{vt_l+2}, 4, v{vt_l+2}
        v_lshl_add_u32 v{vz+j}, v{vt_l+1}, 12, v{vt_l+2}
        v_mov_b32 v{vt_l+3}, 0x7ff00000
        v_cndmask_b32 v{vz+j}, v{vt_l+3}, v{vz+j}, vcc
        """)
    t128_loader_voff(a, vo2, vt_l, v_lane, 1024)
    a(f"""
    s_lshl_b32 s{s_b0}, s{s_wave}, 16              ; 16 rows * 4096
    s_add_u32 s{s_b0}, s{s_b0}, s{s_kt}
    s_add_u32 s{s_b0}, s{s_b0}, 32
    s_lshl_b32 s{s_b1}, s{s_wave}, 14
    s_lshl_b32 s{s_t0}, s{s_i1}, 8
    s_add_u32 s{s_b1}, s{s_b1}, s{s_t0}
    s_mul_i32 s{s_l0}, s{s_wave}, 5120
    s_lshl_b32 s{s_l1}, s{s_wave}, 12
    s_add_u32 s{s_l1}, s{s_l1}, {B_OFF}
    """)
    streams = [
        Stream(sA, [vz+j for j in range(5)], [0]*5, [A_OFF + j*1024 for j in range(5)], s_b0, 64*4096, s_l0, dep=True),
        Stream(sB, [vo2]*4, [i*4*1024 for i in range(4)], [i*1024 for i in range(4)], s_b1, 64*1024, s_l1),
    ]
    dep_wait(a, 1, 16, v_lane, None)
    stamp(a, 2)
    loader_loop(a, streams, NC, S, STAGE, s_kc, s_slot, s_cnt, s_t0, s_t1, s_t2, ahead=2)
    stamp(a, 3)
    a("s_barrier")
    a("v_subrev_u32 v0, 256, v0")
    zero_fill(a, WPB2, 128 * WP_CH, 8, 256)
    a("v_add_u32 v0, 256, v0")
    a("s_waitcnt vmcnt(0) lgkmcnt(0)")
    a("s_barrier")
    a.label("P3_LOC_TAPS")
    tap_writes(a, 128, WPB2, 16, TAPR, rounds2, 512)
    a("s_waitcnt lgkmcnt(0)")
    stamp(a, 5)
    a("s_barrier")
    a.label("P3_LOC_CONV")
    conv_stage(a, 58, 16, 8, 0, RP2, WPB2, sO, s_ob, s_tv, s_t0, s_t1, v_lane)
    a.label("P3_FIN")
    if STAMPS_ON():
        a("s_waitcnt vmcnt(0)")
    stamp(a, 6)
    stamp_flush(a, 58)
    a.label(END)
    if common.PERS: grid_arrive(a, 2)
    else: a("s_endpgm")
    return a.text(), dict(name=name, vgpr=248, sgpr=100, lds=max(4096 + 5*24576 + 64*WP_CH + 16, 4*36864), grid=256, block=512)
```
